```python
import torch

def _softmax(x, axis=-1):
    return torch.softmax(x, dim=axis)

def _gelu(x):
    return torch.nn.functional.gelu(x, approximate='tanh')

def _silu(x):
    return torch.nn.functional.silu(x)

def _sigmoid(x):
    return torch.sigmoid(x)

def _layernorm(x, axis=-1, eps=1e-05):
    m = x.mean(dim=axis, keepdim=True)
    v = x.var(dim=axis, keepdim=True, unbiased=False)
    return (x - m) / torch.sqrt(v + eps)

def _scatter_add(tgt, idx, src, axis=0):
    return tgt.clone().index_add_(axis, idx, src)

def _segment_sum(src, seg, n):
    out = torch.zeros((n,) + src.shape[1:], dtype=src.dtype)
    return out.index_add_(0, seg, src)

def _pad(x, pw):
    flat = tuple((v for pair in reversed(pw) for v in pair))
    return torch.nn.functional.pad(x, flat)
kernel_name = 'concat_heads__spectral_gfnet__memory_aug_recurrent_mem_tr__prompt'

def setup_inputs():

    _w = lambda a: (lambda t: t.to(torch.bfloat16) if t.is_floating_point() else t)(torch.as_tensor(a))

    def _A_setup():
        B, S, D = (1, 2048, 576)
        Df = D // 2 + 1
        return {'x': _w((lambda *s: torch.randn(*s, dtype=torch.bfloat16) * 0.05)(B, S, D)), 'w_r': _w((lambda *s: torch.randn(*s, dtype=torch.bfloat16) * 3.2)(S, Df) * 0.02), 'w_i': _w((lambda *s: torch.randn(*s, dtype=torch.bfloat16) * 3.2)(S, Df) * 0.02)}
    _A_in = _A_setup()

    def _B_setup():
        B, S, Dm = (1, 2048, 576)
        H, Dh = (32, 128)
        M, seg = (8, 32)
        seg = min(seg, S)
        S = S // seg * seg
        return {'x': _w((lambda *s: torch.randn(*s, dtype=torch.bfloat16) * 0.05)(B, S, Dm)), 'mem0': _w((lambda *s: torch.randn(*s, dtype=torch.bfloat16) * 0.4)(B, M, Dm)), 'Wq': _w((lambda *s: torch.randn(*s, dtype=torch.bfloat16) * 6.4)(Dm, H, Dh) * Dm ** (-0.5)), 'Wk': _w((lambda *s: torch.randn(*s, dtype=torch.bfloat16) * 6.4)(Dm, H, Dh) * Dm ** (-0.5)), 'Wv': _w((lambda *s: torch.randn(*s, dtype=torch.bfloat16) * 0.4)(Dm, H, Dh) * Dm ** (-0.5)), 'Wo': _w((lambda *s: torch.randn(*s, dtype=torch.bfloat16) * 0.4)(H, Dh, Dm) * (H * Dh) ** (-0.5)), 'seg_len': seg}
    _B_in = _B_setup()
    return {'A_x': _A_in['x'], 'A_w_r': _A_in['w_r'], 'A_w_i': _A_in['w_i'], 'B_x': _B_in['x'], 'B_mem0': _B_in['mem0'], 'B_Wq': _B_in['Wq'], 'B_Wk': _B_in['Wk'], 'B_Wv': _B_in['Wv'], 'B_Wo': _B_in['Wo'], 'B_seg_len': _B_in['seg_len']}

def reference(A_x, A_w_r, A_w_i, B_x, B_mem0, B_Wq, B_Wk, B_Wv, B_Wo, B_seg_len):

    def _A_ref(x, w_r, w_i):
        B, S, D = x.shape
        X = (lambda x, axes=(-2, -1): torch.fft.rfft2(x.float(), dim=axes))(x, axes=(-2, -1))
        W = w_r + 1j * w_i
        X = X * W
        y = (lambda x, s, axes=(-2, -1): torch.fft.irfft2(x, s=s, dim=axes).to(torch.bfloat16))(X, (S, D), axes=(-2, -1))
        return y

    def _B_ref(x, mem0, Wq, Wk, Wv, Wo, seg_len):
        B, S, Dm = x.shape
        H, Dh = (Wq.shape[1], Wq.shape[2])
        M = mem0.shape[1]
        scale = Dh ** (-0.5)
        n_seg = S // seg_len
        L = M + seg_len
        idx = torch.arange(L)
        mask = (idx[:, None] < M) | (idx[:, None] >= idx[None, :])
        mem = mem0
        outs = []
        for s in range(n_seg):
            xs = x[:, s * seg_len:(s + 1) * seg_len, :].clone()
            h = torch.concatenate([mem, xs], axis=1)
            q = torch.einsum('btd,dhe->bhte', h, Wq)
            k = torch.einsum('btd,dhe->bhte', h, Wk)
            v = torch.einsum('btd,dhe->bhte', h, Wv)
            scores = torch.einsum('bhqe,bhke->bhqk', q, k) * scale
            scores = torch.where(mask[None, None], scores, -1000000000.0)
            p = _softmax(scores, axis=-1)
            o = torch.einsum('bhqk,bhke->bhqe', p, v)
            o = torch.einsum('bhte,hed->btd', o, Wo)
            mem = o[:, :M, :].clone()
            outs.append(o[:, M:, :])
        return torch.concatenate(outs, axis=1)
    a = _A_ref(A_x, A_w_r, A_w_i)
    b = _B_ref(B_x, B_mem0, B_Wq, B_Wk, B_Wv, B_Wo, B_seg_len)
    return torch.concatenate([a, b], axis=-1)
```

```python
import re

_REG = re.compile(r'^(v|a|s)(\d+)$')
_RNG = re.compile(r'^(v|a|s)\[(\d+):(\d+)\]$')

def regs_of(op):
    op = op.strip()
    if op.startswith('-'): op = op[1:]
    if op.startswith('abs(') and op.endswith(')'): op = op[4:-1]
    if op.startswith('|') and op.endswith('|'): op = op[1:-1]
    m = _REG.match(op)
    if m: return {(m.group(1), int(m.group(2)))}
    m = _RNG.match(op)
    if m: return {(m.group(1), i) for i in range(int(m.group(2)), int(m.group(3)) + 1)}
    if op in ('vcc', 'exec', 'm0', 'scc'): return {('x', op)}
    if op in ('vcc_lo', 'vcc_hi'): return {('x', 'vcc')}
    if op in ('exec_lo', 'exec_hi'): return {('x', 'exec')}
    return set()

def split_ops(s):
    out, depth, cur = [], 0, ''
    for ch in s:
        if ch in '[(': depth += 1
        if ch in '])': depth -= 1
        if ch == ',' and depth == 0:
            out.append(cur.strip()); cur = ''
        else: cur += ch
    if cur.strip(): out.append(cur.strip())
    return out

TRANS = ('v_exp_f32', 'v_log_f32', 'v_rcp_f32', 'v_rsq_f32', 'v_sqrt_f32', 'v_sin_f32', 'v_cos_f32', 'v_rcp_iflag_f32')

def mfma_passes(mn):
    if '32x32x16' in mn or '32x32x8' in mn or 'smfmac_f32_32x32x32' in mn: return 8
    if '16x16x32' in mn or '16x16x16' in mn or 'smfmac_f32_16x16x64' in mn: return 4
    if '4x4x4' in mn: return 2
    raise ValueError(mn)

class Inst:
    __slots__ = ('text', 'mn', 'kind', 'dst', 'src', 'srcC', 'srcAB', 'states', 'dpp', 'passes', 'wide_store_data')
    def __init__(self, text):
        self.text = text
        t = text.split(';')[0].strip()
        parts = t.split(None, 1)
        mn = parts[0]; rest = parts[1] if len(parts) > 1 else ''
        self.mn = mn
        self.dpp = ('_dpp' in mn) or (' row_' in t) or ('quad_perm' in t)
        ops = split_ops(rest)
        if ops:
            last = ops[-1].split()
            ops[-1] = last[0] if last else ''
        self.dst = set(); self.src = set(); self.srcC = set(); self.srcAB = set()
        self.states = 1; self.passes = 0; self.wide_store_data = set()
        R = [regs_of(o) for o in ops]
        if mn == 's_nop':
            self.kind = 'nop'; self.states = int(rest.strip(), 0) + 1
        elif mn.startswith('v_mfma') :
            self.kind = 'mfma'; self.passes = mfma_passes(mn)
            self.dst = R[0]; self.srcAB = R[1] | R[2]; self.srcC = R[3] if len(R) > 3 else set()
            self.src = self.srcAB | self.srcC
        elif mn.startswith('v_smfmac'):
            self.kind = 'mfma'; self.passes = mfma_passes(mn)
            self.dst = R[0]; self.srcAB = R[1] | R[2] | R[3]; self.srcC = R[0]
            self.src = self.srcAB | self.srcC
        elif mn.startswith('v_cmpx'):
            self.kind = 'valu'; self.dst = R[0] | {('x', 'exec')}; self.src = set().union(*R[1:])
        elif mn.startswith('v_cmp'):
            self.kind = 'valu'; self.dst = R[0]; self.src = set().union(*R[1:])
        elif mn.startswith('v_permlane') and 'swap' in mn:
            self.kind = 'permlane'; self.dst = R[0] | R[1]; self.src = R[0] | R[1]
        elif mn.startswith('v_swap'):
            self.kind = 'valu'; self.dst = R[0] | R[1]; self.src = R[0] | R[1]
        elif mn.startswith('v_readfirstlane') or mn.startswith('v_readlane'):
            self.kind = 'readlane'; self.dst = R[0]; self.src = set().union(*R[1:])
        elif mn.startswith('v_writelane'):
            self.kind = 'valu'; self.dst = R[0]; self.src = set().union(*R)
        elif mn.startswith('v_'):
            self.kind = 'trans' if any(mn.startswith(x) for x in TRANS) else 'valu'
            self.dst = R[0]
            if mn.startswith(('v_add_co', 'v_sub_co', 'v_addc_co', 'v_subb_co', 'v_subrev_co', 'v_mad_u64_u32', 'v_div_scale')):
                self.dst = R[0] | R[1]; self.src = set().union(*R[2:])
            else:
                self.src = set().union(*R[1:]) if len(R) > 1 else set()
            if mn.startswith(('v_fmac', 'v_mac', 'v_dot2c', 'v_pk_fmac')) or self.dpp or 'sdwa' in mn:
                self.src |= R[0]
            if mn.startswith('v_cndmask') and len(R) == 3: self.src |= {('x', 'vcc')}
        elif mn.startswith(('buffer_load', 'global_load', 'flat_load')):
            self.kind = 'vmem'
            if ' lds' in t or mn.startswith('global_load_lds'):
                self.src = set().union(*R) | {('x', 'm0')}
                self.kind = 'vmem_lds'
            else:
                self.dst = R[0]; self.src = set().union(*R[1:])
        elif mn.startswith(('buffer_store', 'global_store', 'buffer_atomic', 'global_atomic')):
            self.kind = 'vmem'; self.src = set().union(*R)
            if 'atomic' in mn and ' sc0' in t: self.dst = R[0]
            if 'x4' in mn or 'x3' in mn:
                self.wide_store_data = R[0] if mn.startswith('buffer') else R[1]
        elif mn.startswith(('buffer_wbl2', 'buffer_inv')):
            self.kind = 'vmem'
        elif mn.startswith('ds_'):
            self.kind = 'ds'
            if mn.startswith(('ds_read', 'ds_bpermute', 'ds_permute', 'ds_swizzle')) or '_rtn' in mn:
                self.dst = R[0]; self.src = set().union(*R[1:]) if len(R) > 1 else set()
            else:
                self.src = set().union(*R)
        elif mn.startswith('s_'):
            self.kind = 'salu'
            if mn.startswith(('s_cmp', 's_bitcmp', 's_cbranch', 's_branch', 's_waitcnt', 's_barrier', 's_endpgm', 's_sleep', 's_setprio', 's_setpc')):
                self.src = set().union(*R) if R else set()
            else:
                self.dst = R[0] if R else set(); self.src = set().union(*R[1:]) if len(R) > 1 else set()
                if 'saveexec' in mn: self.dst = self.dst | {('x', 'exec')}
            if mn.startswith(('s_load', 's_buffer_load', 's_memtime', 's_memrealtime', 's_atomic')): self.kind = 'smem'
        else:
            raise ValueError('unknown instr: ' + text)

VALUISH = ('valu', 'trans', 'permlane', 'readlane')
XDL_D_TO_OTHER = {2: 5, 4: 8, 8: 12, 16: 20}
XDL_D_TO_C_OVERLAP = {2: 4, 4: 6, 8: 10, 16: 18}
XDL_C_WAR = {2: 1, 4: 3, 8: 7, 16: 15}

def need(p, c):
    n = 0
    pv = {r for r in p.dst if r[0] in 'va'}
    ps = {r for r in p.dst if r[0] == 's' or r == ('x', 'vcc')}
    if p.kind == 'mfma':
        if c.kind == 'mfma':
            if p.dst & c.srcAB: n = max(n, XDL_D_TO_OTHER[p.passes])
            if p.dst & c.srcC:
                if p.dst == c.srcC and p.passes == c.passes: n = max(n, 2 if p.passes == 2 else 0)
                else: n = max(n, XDL_D_TO_C_OVERLAP[p.passes])
            elif p.dst & c.dst: n = max(n, XDL_D_TO_C_OVERLAP[p.passes])
        elif c.kind in VALUISH or c.kind in ('vmem', 'vmem_lds', 'ds'):
            if p.dst & (c.src | c.dst): n = max(n, XDL_D_TO_OTHER[p.passes])
        if c.kind in VALUISH and (p.srcC & c.dst): n = max(n, XDL_C_WAR[p.passes])
    if p.kind in VALUISH:
        if c.kind == 'mfma' and pv & c.src: n = max(n, 2)
        if c.kind == 'mfma' and ('x', 'exec') in p.dst: n = max(n, 4)
        if c.dpp and pv & c.src: n = max(n, 2)
        if c.dpp and ('x', 'exec') in p.dst: n = max(n, 5)
        if c.kind == 'permlane' and pv & c.src: n = max(n, 2)
        if c.kind == 'permlane' and ('x', 'exec') in p.dst: n = max(n, 4)
        if c.kind == 'readlane' and pv & c.src: n = max(n, 1)
        if c.kind == 'readlane' and ('x', 'exec') in p.dst: n = max(n, 4)
        if c.kind == 'readlane' and ps & c.src: n = max(n, 4)
        if c.kind in VALUISH and ps & c.src: n = max(n, 2)
        if c.kind in ('vmem', 'vmem_lds') and ps & c.src: n = max(n, 5)
        if c.kind == 'salu' and ps & c.src: n = max(n, 1)
        if p.kind == 'trans' and c.kind in VALUISH + ('mfma',) and pv & c.src: n = max(n, 1)
        if ('sdwa' in p.mn or 'op_sel' in p.text) and c.kind in VALUISH and pv & (c.src | c.dst): n = max(n, 1)
    if p.kind == 'salu' and ('x', 'm0') in p.dst and c.kind == 'vmem_lds': n = max(n, 1)
    if p.wide_store_data and c.kind in VALUISH + ('mfma',) and p.wide_store_data & c.dst: n = max(n, 2)
    if p.wide_store_data and c.kind in ('vmem', 'ds') and p.wide_store_data & c.dst: n = max(n, 1)
    return n

class Asm:
    def __init__(self):
        self.items = []
        self.uid = 0
        self.mfma_time = True
    def __call__(self, text):
        for line in text.strip('\n').split('\n'):
            s = line.strip()
            if not s: continue
            if s.startswith(';') or s.startswith('.') and not s.endswith(':'):
                self.items.append(s)
            elif s.split(';')[0].strip().endswith(':'):
                self.items.append(s)
            else:
                self.items.append(Inst(s))
    def label(self, base='L'):
        self.uid += 1
        return f'{base}_{self.uid}'
    def render(self):
        out = []
        win = []
        clk = 0; pipe_free = 0
        for it in self.items:
            if isinstance(it, str):
                out.append(it)
                if it.split(';')[0].strip().endswith(':'): pipe_free = 0
                continue
            t_issue = max(clk, pipe_free) if it.kind == 'mfma' else clk
            req = 0
            for p, d, tp in win:
                have = d
                if p.kind == 'mfma' and self.mfma_time: have = max(d, (t_issue - tp)//4 - 1)
                r = need(p, it) - have
                if r > req: req = r
            while req > 0:
                k = min(req, 16)
                if it.kind == 'mfma' and self.mfma_time:
                    pass
                out.append(f'    s_nop {k-1}   ; auto')
                win = [(p, d + k, tp) for p, d, tp in win]
                clk += 4*k
                req -= k
                t_issue = max(clk, pipe_free) if it.kind == 'mfma' else clk
                req = 0
                for p, d, tp in win:
                    have = d
                    if p.kind == 'mfma' and self.mfma_time: have = max(d, (t_issue - tp)//4 - 1)
                    req = max(req, need(p, it) - have)
            out.append('    ' + it.text)
            if it.kind == 'mfma': pipe_free = t_issue + 4*it.passes
            clk = t_issue + 4*it.states
            win = [(p, d + it.states, tp) for p, d, tp in win if d + it.states < 24]
            win.append((it, 0, t_issue))
        return '\n'.join(out) + '\n'
    def branch_check(self):
        lab = {}
        for i, it in enumerate(self.items):
            if isinstance(it, str) and it.split(';')[0].strip().endswith(':'):
                lab[it.split(';')[0].strip()[:-1]] = i
        probs = []
        for i, it in enumerate(self.items):
            if isinstance(it, Inst) and (it.mn.startswith('s_cbranch') or it.mn == 's_branch'):
                tgt = it.text.split(';')[0].split()[-1]
                if tgt not in lab: continue
                win = []; d = 0; j = i
                while j >= 0 and d < 24:
                    x = self.items[j]
                    if isinstance(x, Inst):
                        win.append((x, d)); d += x.states
                    j -= 1
                j = lab[tgt]; d2 = 0
                while j < len(self.items) and d2 < 24:
                    x = self.items[j]
                    if isinstance(x, Inst):
                        for p, dp in win:
                            if need(p, x) > dp + d2:
                                probs.append(f'branch {it.text} : {p.text} -> {x.text} need {need(p,x)} have {dp+d2}')
                        d2 += x.states
                        if x.mn in ('s_branch', 's_endpgm', 's_setpc_b64'): break
                    j += 1
        return probs

def kernel_header(name):
    return f""".globl {name}
.p2align 8
.type {name},@function
{name}:
"""

def kernel_desc(name, vgpr=512, sgpr=102, accum=256, kernarg=104):
    return f""".p2align 6
.amdhsa_kernel {name}
  .amdhsa_next_free_vgpr {vgpr}
  .amdhsa_next_free_sgpr {sgpr}
  .amdhsa_accum_offset {accum}
  .amdhsa_group_segment_fixed_size 0
  .amdhsa_kernarg_size {kernarg}
  .amdhsa_user_sgpr_count 2
  .amdhsa_user_sgpr_kernarg_segment_ptr 1
  .amdhsa_system_sgpr_workgroup_id_x 1
.end_amdhsa_kernel
"""
```

```python
from common import *
import layouts as L

LDS_SC  = 0
LDS_OB  = 5120
LDS_DUMMY = 7168
LDS_WV  = 8192
LDS_WO  = 16384

L16, PBST, SEL2, SEL2b, MW, MR, OW, WOA, IDX, ORD, T0, T1 = range(12)
SEL, PUB, TAGV, FLG = 12, 16, 18, 19
def AF(c): return 20 + 4*(c % 7)
Q0, K0, Q1, K1, VA0, VA1 = 48, 52, 56, 60, 64, 68
KX, VX = 72, 80

def wreg(tile, c):
    idx = tile*9 + c
    if idx == 53: return None
    if idx < 32: return f'a[{8*idx}:{8*idx+7}]'
    b = 88 + 8*(idx-32)
    return f'v[{b}:{b+7}]'
ACC = [Q0, K0, Q1, K1, VA0, VA1]

sW, sH, sSTEP, sTMP, sTMP2, sTO = 12, 13, 14, 15, 16, 17
sMBRD, sMBWR, sMBNX = 18, 19, 20
sPBR = 22
sKV, sMH = 23, 25
sRED = 26
sMLO, sMHI = 28, 30
sMG = 32
sC = 34
sRT = 37
sWV = 38
sMB4, sMB8 = 39, 21
sPROF = 40
sPBW = 52

def smf(acc, a, b): return f'v_smfmac_f32_16x16x64_bf16 {vr(acc)}, {vr(a)}, {b}, v{IDX}'
mfma = mfma16

def consts(a):
    C, G, G1, X, Y, Z = AF(0), AF(0)+1, AF(0)+2, AF(0)+3, AF(1), AF(1)+1
    a(f'''
    v_and_b32 v{X}, 63, v0
    v_lshlrev_b32 v{L16}, 4, v{X}
    v_and_b32 v{C}, 15, v{X}              ; c
    v_lshrrev_b32 v{G}, 4, v{X}           ; g
    v_and_b32 v{G1}, 1, v{G}              ; g&1
    v_lshrrev_b32 v{PBST}, 1, v{G}
    v_lshlrev_b32 v{PBST}, 12, v{PBST}
    v_lshl_add_u32 v{PBST}, v{G1}, 6, v{PBST}
    v_lshl_add_u32 v{PBST}, v{C}, 3, v{PBST}
    v_mov_b32 v{Y}, {OOB}
    v_cmp_gt_u32 vcc, 8, v{C}
    v_cndmask_b32 v{PBST}, v{Y}, v{PBST}, vcc
    v_and_b32 v{Z}, 7, v{C}
    v_lshlrev_b32 v{Z}, 4, v{Z}
    v_lshrrev_b32 v{T0}, 3, v{C}           ; hb
    v_lshl_add_u32 v{MR}, v{T0}, 3, v{Z}       ; (c&7)*16 + hb*8
    v_lshl_add_u32 v{ORD}, v{G}, 7, v{Z}
    v_add_u32 v{ORD}, {LDS_OB}, v{ORD}
    v_lshl_add_u32 v{OW}, v{G}, 7, v{MR}
    s_lshl_b32 s{sTMP}, s{sW}, 9
    s_add_u32 s{sTMP}, s{sTMP}, {LDS_OB}
    v_add_u32 v{OW}, s{sTMP}, v{OW}
    v_lshl_add_u32 v{MR}, v{G1}, 7, v{MR}
    v_add_u32 v{MR}, 1024, v{MR}
    s_mul_i32 s{sTMP}, s{sW}, 1280
    s_mov_b32 s{sSCW}, s{sTMP}
    v_lshlrev_b32 v{MW}, 7, v{G1}
    v_lshl_add_u32 v{MW}, v{C}, 4, v{MW}
    v_add_u32 v{MW}, s{sTMP}, v{MW}
    v_add_u32 v{MW}, 1024, v{MW}
    s_mul_i32 s{sTMP}, s{sW}, 36864
    s_add_u32 s{sTMP}, s{sTMP}, {LDS_WO}
    v_add_u32 v{WOA}, s{sTMP}, v{L16}
    s_mov_b32 s{sMLO}, 0x00ff00ff
    s_mov_b32 s{sMLO+1}, 0x00ff00ff
    s_mov_b32 s{sMHI}, 0xff00ff00
    s_mov_b32 s{sMHI+1}, 0xff00ff00
    s_mov_b32 s{sMG}, -1
    s_mov_b32 s{sMG+1}, 0
    s_mov_b32 s66, 0
    s_mov_b32 s67, 0x00ff00ff
    s_mov_b32 s{sC}, 0x3e0293ee            ; 128^-0.5 * log2(e) = 0.12751743
    s_mov_b32 s{sC+1}, 0x3e0293ee
    s_lshl_b32 s{sWV}, s{sW}, 11
    s_add_u32 s{sWV}, s{sWV}, {LDS_WV}
    ''')
    a(f'''
    v_and_b32 v{SEL}, 7, v{C}
    v_lshlrev_b32 v{SEL+1}, 2, v{G1}
    v_sub_u32 v{SEL}, v{SEL}, v{SEL+1}
    v_lshrrev_b32 v{SEL+1}, 3, v{C}
    v_lshlrev_b32 v{SEL+1}, 2, v{SEL+1}
    v_cmp_gt_u32 vcc, 4, v{SEL}
    v_add_u32 v{SEL}, v{SEL}, v{SEL+1}
    v_cndmask_b32 v{T1}, 15, v{SEL}, vcc
    ''')
    def onehot(base, ereg, n=4):
        for i in range(n):
            a(f'''
            v_mov_b32 v{base+i}, 0
            v_mov_b32 v{Y}, 0x3f80
            v_cmp_eq_u32 vcc, {2*i}, v{ereg}
            v_cndmask_b32 v{base+i}, v{base+i}, v{Y}, vcc
            v_mov_b32 v{Y}, 0x3f800000
            v_cmp_eq_u32 vcc, {2*i+1}, v{ereg}
            v_cndmask_b32 v{base+i}, v{base+i}, v{Y}, vcc
            ''')
    onehot(SEL, T1)
    onehot(SEL2, C, 2)
    a(f'''
    v_mov_b32 v{IDX}, 0x4444
    v_mov_b32 v{Y}, 0xeeee
    v_cmp_gt_u32 vcc, 8, v{C}
    v_cndmask_b32 v{IDX}, v{Y}, v{IDX}, vcc
    ''')

OPT = dict(nopub=0, noflag=0, kvfl='sc1', pubfl='sc1', vmearly=0, NE=40, NM=64, kvs=KV_SEG, ring=1, lgap=2, egap=0, first='sc1', wow=(0,), pub=1, nocheck=0, nl_none=1, nl_late=1, estart=(6,3))
sVW = 19
sOOB = 68
sKMF, sKIND, sPBO, sMBO = 24, 27, 36, 61
sKVF, sFM = 69, 62
sSCW = 64
def gen_step(a, ST, LD, prof, tag):
    srd = f's[{sWS}:{sWS+3}]'
    P = Stamps(a, prof)
    ool = []
    def memload(c, first=False):
        fl = OPT['first'] if first else LD
        return f'buffer_load_dwordx4 {vr(AF(c))}, v{L16}, {srd}, s{sMBRD if c < 4 else (sMB4 if c < 8 else sMB8)} offen offset:{(c % 4)*1024} {fl}'
    LOOP = f'{tag}_loop'; DONE = f'{tag}_done'
    def tmo(ok): return f's_add_u32 s{sRT}, s{sRT}, 1\ns_cmp_gt_u32 s{sRT}, 0x100000\ns_cbranch_scc1 {ok}\n'
    def br(lbl): return f's_cbranch_vccnz {lbl}' if not OPT['nocheck'] else 's_nop 0'
    def check(c, part):
        r = AF(c)
        if part == 0: return f'v_max_u32 v{T0}, v{r}, v{r+2}'
        if part == 1: return f'v_cmp_eq_u32 vcc, -1, v{T0}'
        return br(f'{tag}_rt{c}')
    req = {0: [3, 4], 1: [5], 2: [6], 3: [7], 4: [8]}
    hi = {}
    h = 2; hi[0] = 2
    for c in range(8):
        h = max([h] + req.get(c, [])); hi[c+1] = h
    for c in range(9):
        ool.append(f'{tag}_rt{c}:\n' + (f's_add_u32 s{sPROF+c}, s{sPROF+c}, 1\n' if prof else '') + tmo(f'{tag}_ok{c}') + '\n'.join(memload(x) for x in range(c, hi[c]+1)) +
                   f'\ns_waitcnt vmcnt({hi[c]-c})\n' + '\n'.join(check(c, p) for p in range(3)) + f'\ns_branch {tag}_ok{c}')
    a(f'{LOOP}:')
    P('top')
    a(f's_waitcnt vmcnt(3)')
    for p in range(3): a(check(0, p))
    a(f'{tag}_ok0:')
    P('mem0')
    for c in range(9):
        ms = [smf(ACC[t], AF(c), wreg(t, c)) for t in range(6 if c < 2 else 4)]
        if c < 8:
            n = c+1
            rq = list(req.get(c, []))
            if len(rq) == 2:
                a(ms.pop(0)); a(memload(rq.pop(0), True))
            a(ms.pop(0))
            for x in rq: a(memload(x, True))
            a(f's_waitcnt vmcnt({hi[n]-n+(1 if n <= 2 else 0)})'); a(check(n,0)); a(ms.pop(0)); a(check(n,1))
            for m in ms: a(m)
            a(check(n,2))
            a(f'{tag}_ok{n}:')
        else:
            a(ms[0])
            a(f'buffer_load_dwordx4 {vr(VX)}, v{L16}, {srd}, s{sKV} offen offset:2048 {OPT["kvfl"]}')
            a(ms[1])
            a(f'buffer_load_dwordx2 {vr(VX+4,2)}, v{L16}, {srd}, s{sKV} offen offset:3080 {OPT["kvfl"]}')
            a(f'buffer_load_dwordx2 {vr(VX+6,2)}, v{L16}, {srd}, s{sKV} offen offset:3072 {OPT["kvfl"]}')
            a(ms[2])
            a(cvt(Q0, Q0, Q0+1))
            a(ms[3])
    P('qk')
    vq = [(t, c) for c in range(2, 9) for t in (4, 5)]
    WVT = AF(5)
    def vm(n=1):
        for _ in range(n):
            t, c = vq.pop(0)
            w = wreg(t, c)
            if w is None: w = f'v[{WVT}:{WVT+7}]'
            a(smf(ACC[t], AF(c), w))
    a(cvt(Q0+1, Q0+2, Q0+3)); a(cvt(Q0+2, K0, K0+1)); a(cvt(Q0+3, K0+2, K0+3))
    a(cvt(Q1, Q1, Q1+1)); a(cvt(Q1+1, Q1+2, Q1+3))
    a(mfma(K0, Q0, SEL))
    a(cvt(Q1+2, K1, K1+1)); a(cvt(Q1+3, K1+2, K1+3))
    a(f's_add_u32 s{sTMP}, s{sKV}, {OPT["kvs"]}')
    a(f's_add_u32 s{sVW}, s{sTMP}, 2048')
    a(mfma(K1, Q1, SEL))
    a(f's_add_u32 s{sVW+1}, s{sTMP}, 3072')
    a(f's_add_u32 s{sSTEP}, s{sSTEP}, 1')
    U = Q0
    a(cvt(U, K0, K0+1)); a(cvt(U+1, K0+2, K0+3))
    vm(1)
    a(cvt(U+2, K1, K1+1)); a(cvt(U+3, K1+2, K1+3))
    TX0, TX1, TM = K0, Q1, K1
    a(f'v_add_u32 v{T1}, s{sWV}, v{L16}')
    a(f'v_cmp_eq_u32 s[{sFM}:{sFM+1}], v{TAGV}, v{FLG}')
    a(mfma(TX0, KX, U)); a(mfma(TX1, KX+4, U)); a(mfma(TM, U, U))
    a(f'v_add_u32 v{T0}, s{sSCW}, v{L16}')
    P('S')
    for r in range(4):
        a(f'v_mov_b32_dpp v{TX0+r}, v{TX1+r} row_ror:8 row_mask:0xf bank_mask:0xc')
    a(f'ds_write_b128 v{T0}, {vr(TX0)} offset:{LDS_SC}')
    a(f's_mov_b64 exec, s[66:67]')
    a(f'ds_write_b128 v{MW}, {vr(TM)} offset:{LDS_SC}')
    a(f's_mov_b64 exec, -1')
    RS = TX1
    a(f'v_mov_b64 {vr(RS,2)}, -1\nv_mov_b64 {vr(RS+2,2)}, -1')
    vm(1)
    a('s_mov_b64 exec, 0xffff')
    a(f'buffer_store_dwordx2 {vr(RS,2)}, v{MR}, {srd}, s{sMBO} offen {ST}')
    a('s_mov_b64 exec, -1')
    for i in range(4):
        vm(1)
        a(f'buffer_store_dwordx4 {vr(RS)}, v{L16}, {srd}, s{sPBO} offen offset:{i*1024} {ST}')
    P('wr')
    a(f's_waitcnt lgkmcnt(0)')
    a('s_barrier')
    P('bar1')
    RD = AF(2)
    a(f'ds_read_b128 {vr(RD)}, v{L16} offset:{LDS_SC}')
    a(f'ds_read_b128 {vr(RD+4)}, v{L16} offset:{LDS_SC+1280}')
    vm(1)
    a(f'ds_read_b128 {vr(RD+8)}, v{L16} offset:{LDS_SC+2560}')
    a(f'ds_read_b128 {vr(TX0)}, v{L16} offset:{LDS_SC+3840}')
    vm(1)
    MRD = Q1
    for w in range(4):
        a(f'ds_read_b64 {vr(MRD+2*w,2)}, v{MR} offset:{LDS_SC+1280*w}')
        if w % 2: vm(1)
    assert len(vq) == 4
    a(f'ds_read_b128 {vr(WVT)}, v{T1}')
    a(f'ds_read_b128 {vr(WVT+4)}, v{T1} offset:1024')
    a(f's_bitcmp1_b64 s[{sFM}:{sFM+1}], s{sSTEP}')
    a(f's_cbranch_scc0 {tag}_fl')
    a(f'{tag}_flok:')
    ool.append(f'{tag}_fl:\n' + tmo(f'{tag}_flok') + f'v_lshrrev_b32 v{T0}, 2, v{L16}\nbuffer_load_dword v{FLG}, v{T0}, {srd}, s{sKVF} offen sc1\ns_waitcnt vmcnt(0)\n'
               f'v_cmp_eq_u32 s[{sFM}:{sFM+1}], v{TAGV}, v{FLG}\ns_nop 1\ns_bitcmp1_b64 s[{sFM}:{sFM+1}], s{sSTEP}\ns_cbranch_scc0 {tag}_fl\ns_branch {tag}_flok')
    vm(1)
    a(f'buffer_load_dwordx4 {vr(KX)}, v{L16}, {srd}, s{sTMP} offen {OPT["kvfl"]}')
    a(f'buffer_load_dwordx4 {vr(KX+4)}, v{L16}, {srd}, s{sTMP} offen offset:1024 {OPT["kvfl"]}')
    a('s_waitcnt lgkmcnt(8)')
    a(pkadd(RD, RD, RD+4)); a(pkadd(RD+2, RD+2, RD+6))
    a('s_waitcnt lgkmcnt(6)')
    a(pkadd(TX0, TX0, RD+8)); a(pkadd(TX0+2, TX0+2, RD+10))
    a('s_waitcnt lgkmcnt(2)')
    a(pkadd(MRD, MRD, MRD+2)); a(pkadd(MRD+4, MRD+4, MRD+6))
    SX = RD; SM = MRD
    a(pkadd(SX, SX, TX0)); a(pkadd(SX+2, SX+2, TX0+2)); a(pkadd(SM, SM, MRD+4))
    MX = T0
    a(f'v_max3_f32 v{MX}, v{SX}, v{SX+1}, v{SX+2}')
    a(f'v_max3_f32 v{MX}, v{MX}, v{SX+3}, v{SM}')
    a(f'v_max_f32 v{MX}, v{MX}, v{SM+1}')
    P('adds')
    def woread(i, buf): a(f'ds_read_b128 {vr(buf)}, v{WOA} offset:{i*1024}')
    WB = [AF(3), AF(4), VX, VX+4, AF(0), VA0, VA1, AF(2), K1]
    vm(1)
    a(f'buffer_load_dwordx4 v{L16}, {srd}, s{sVW} offen {OPT["kvfl"]} lds')
    a(f'v_max_f32_dpp v{MX}, v{MX}, v{MX} row_ror:8 row_mask:0xf bank_mask:0xf')
    a(f'v_mov_b32 v{T1}, v{MX}')
    vm(1)
    a(f'buffer_load_dwordx4 v{L16}, {srd}, s{sVW+1} offen {OPT["kvfl"]} lds')
    a('s_waitcnt lgkmcnt(0)')
    a(f'v_permlane16_swap_b32 v{MX}, v{T1}')
    a(f'v_max_f32 v{MX}, v{MX}, v{T1}')
    a(f'v_mov_b32 v{T1}, v{MX}')
    vm(1)
    a('s_mov_b64 exec, 0xffff')
    a(f'buffer_store_dwordx4 {vr(PUB)}, v{L16}, {srd}, s{sMH} offen sc1')
    a('s_mov_b64 exec, -1')
    woread(0, WB[0])
    a(f'v_permlane32_swap_b32 v{MX}, v{T1}')
    a(f'v_max_f32 v{MX}, v{MX}, v{T1}')
    a(f'v_mul_f32 v{MX}, s{sC}, v{MX}')
    for r in (SX, SX+2, SM):
        a(f'v_pk_fma_f32 {vr(r,2)}, {vr(r,2)}, s[{sC}:{sC+1}], {vr(MX,2)} op_sel_hi:[1,1,0] neg_lo:[0,0,1] neg_hi:[0,0,1]')
    vals = [SX, SX+1, SX+2, SX+3, SM, SM+1]
    a(f'v_lshrrev_b32 v{T1}, 2, v{L16}')
    for r in vals[:2]: a(f'v_exp_f32 v{r}, v{r}')
    a(f'buffer_load_dword v{FLG}, v{T1}, {srd}, s{sKVF} offen sc1')
    for r in vals[2:4]: a(f'v_exp_f32 v{r}, v{r}')
    for r in vals[4:]: a(f'v_exp_f32 v{r}, v{r}')
    assert not vq
    PR = TX0; PM = K1; VM = U
    a(cvt(PR, SX, SX+1)); a(cvt(PR+1, SX+2, SX+3)); a(cvt(PM, SM, SM+1))
    a(f'v_mov_b32_dpp v{PR+2}, v{PR} row_ror:8 row_mask:0xf bank_mask:0xf')
    a(f'v_mov_b32_dpp v{PR+3}, v{PR+1} row_ror:8 row_mask:0xf bank_mask:0xf')
    a(f'v_mov_b32_dpp v{PM+1}, v{PM} row_ror:8 row_mask:0xf bank_mask:0xf')
    P('smax')
    a('s_waitcnt vmcnt(11)')
    PD = [AF(5), AF(6)]
    SUM = T0
    a(mfma(PD[0], VX, PR))
    a(cvt(VM, VA0, VA0+1)); a(cvt(VM+1, VA0+2, VA0+3))
    a(mfma(PD[1], VX+4, PR))
    a(cvt(VM+2, VA1+2, VA1+3)); a(cvt(VM+3, VA1, VA1+1))
    a(f'v_mfma_f32_16x16x16_bf16 {vr(PD[0])}, {vr(VM,2)}, {vr(PM,2)}, {vr(PD[0])}')
    a(f'v_add_f32 v{T1}, v{SM}, v{SM+1}')
    a(pkadd(SX, SX, SX+2))
    a(f'v_mfma_f32_16x16x16_bf16 {vr(PD[1])}, {vr(VM+2,2)}, {vr(PM,2)}, {vr(PD[1])}')
    a(f'v_cndmask_b32 v{T1}, 0, v{T1}, s[{sMG}:{sMG+1}]')
    a(f'v_add_f32 v{SUM}, v{SX}, v{SX+1}')
    a(f'v_add_f32 v{SUM}, v{SUM}, v{T1}')
    woread(1, WB[1]); woread(2, WB[2])
    a(f'v_add_f32_dpp v{SUM}, v{SUM}, v{SUM} row_ror:8 row_mask:0xf bank_mask:0xf')
    a(f'v_mov_b32 v{T1}, v{SUM}')
    for r in range(2): a(f'v_mov_b32_dpp v{PD[0]+r}, v{PD[1]+r} quad_perm:[0,1,2,3] row_mask:0xf bank_mask:0xc')
    a(f'v_permlane16_swap_b32 v{SUM}, v{T1}')
    a(f'v_add_f32 v{SUM}, v{SUM}, v{T1}')
    a(f'v_mov_b32 v{T1}, v{SUM}')
    for r in range(2,4): a(f'v_mov_b32_dpp v{PD[0]+r}, v{PD[1]+r} quad_perm:[0,1,2,3] row_mask:0xf bank_mask:0xc')
    a(f'v_permlane32_swap_b32 v{SUM}, v{T1}')
    a(f'v_add_f32 v{SUM}, v{SUM}, v{T1}')
    a(f'v_rcp_f32 v{SUM}, v{SUM}')
    O = PD[0]
    woread(3, WB[3])
    for r in (0, 2): a(f'v_pk_mul_f32 {vr(O+r,2)}, {vr(O+r,2)}, {vr(SUM,2)} op_sel_hi:[1,0]')
    a(cvt(O, O, O+1)); a(cvt(O+1, O+2, O+3))
    a(f'ds_write_b64 v{OW}, {vr(O,2)}')
    P('pv')
    for i in range(4, 9): woread(i, WB[i])
    a('s_waitcnt lgkmcnt(5)')
    a('s_barrier')
    P('bar2')
    OA = [AF(5), AF(6), AF(1), Q1]
    for u in range(4): a(f'ds_read_b128 {vr(OA[u])}, v{ORD} offset:{u*512}')
    a(f'v_lshrrev_b32 v{T1}, 1, v{L16}')
    a(f"""
    s_add_u32 s{sMBRD}, s{sMBRD}, {MB_STRIDE}
    s_add_u32 s{sMBO}, s{sMBO}, {MB_STRIDE}
    s_and_b32 s{sMBRD}, s{sMBRD}, {0xfffcffff if OPT['ring'] else 0xffffffff}
    s_and_b32 s{sMBO}, s{sMBO}, {0xfffcffff if OPT['ring'] else 0xffffffff}
    s_add_u32 s{sMB4}, s{sMBRD}, 4096
    s_add_u32 s{sMB8}, s{sMBRD}, 8192
    s_add_u32 s{sKV}, s{sKV}, {OPT['kvs']}
    s_add_u32 s{sMH}, s{sMH}, {MH_STRIDE}
    s_add_u32 s{sTMP}, s{sRED}, s{sMBRD}
    s_mov_b32 s{sPBO}, s{sPBR}
    """)
    NB = 9
    issued = NB
    DD = [U, TX0]
    q = [4,5,6,7,8,'o0','o1','o2','o3']
    vmq = []
    def need(ids):
        idx = max([q.index(x) for x in ids if x in q], default=-1)
        if idx >= 0:
            a(f's_waitcnt lgkmcnt({min(len(q)-1-idx, 15)})')
            del q[:idx+1]
    def post(c, k):
        d = DD[c % 2]
        if k == 0: a(cvt(d, d, d+1))
        if k == 1: a(cvt(d+1, d+2, d+3))
        if k == 2:
            a(f'buffer_store_dwordx2 {vr(d,2)}, v{PBST}, {srd}, s{sPBW+c} offen {ST}'); vmq.append('st')
    ec, eu = OPT['estart']
    R = [AF(3), AF(4), VX, VX+4]
    def rload(i, so):
        return (f'buffer_load_dwordx2 {vr(R[i],2)}, v{T1}, {srd}, s{so} offen offset:{i*1024} {LD}\n'
                f'buffer_load_dwordx2 {vr(R[i]+2,2)}, v{T1}, {srd}, s{so} offen offset:{i*1024+512} {LD}')
    ne = 0
    for c in range(9):
        d = DD[c % 2]
        for u in range(4):
            i = 4*c+u
            if c == 0: need([f'o{u}'])
            elif u in OPT['wow']: need(list(range(i, 4*c+min([x for x in OPT['wow'] if x > u]+[4]))))
            a(mfma(d, WB[i % NB], OA[u], None if u == 0 else d))
            if issued < 36 and c > 0:
                woread(issued, WB[issued % NB]); q.append(issued); issued += 1
            if i == 4*ec+eu+3:
                a(f's_cmp_lg_u32 s{sKIND}, 1\ns_cbranch_scc1 {tag}_noe')
                for ne in range(4): a(rload(ne, sPBR)); vmq.append('x'); vmq.append(f'r{ne}')
                a(f'{tag}_noe:')
            if c >= 2 and u >= 1:
                post(c-1, u-1)
        if c == 0:
            for _ in range(4):
                woread(issued, WB[issued % NB]); q.append(issued); issued += 1
            for k in range(3): post(0, k)
            P('wo0')
    S2 = OA[0]
    a(f'v_mov_b64 {vr(S2,2)}, {vr(SEL2,2)}\nv_mov_b64 {vr(S2+2,2)}, {vr(SEL2,2)}')
    for c in range(4): a(f's_xor_b32 s{sPBW+c}, s{sPBW+c}, {PB_STRIDE}')
    for k in range(3): post(8, k)
    P('wo')
    RDa = AF(1)
    def zblock():
        for r in range(Q0, VA1+4, 2): a(f'v_mov_b64 {vr(r,2)}, 0')
        for c in range(4, 9): a(f's_xor_b32 s{sPBW+c}, s{sPBW+c}, {PB_STRIDE}')
    def reduce(young, lbl, m3, out=None):
        o = out or a
        for i in range(4):
            o(f's_waitcnt vmcnt({young[i]})')
            if i == 0 and m3 == 1: o(mem3)
            o(mfma(RDa, S2, R[i], None if i == 0 else RDa))
        o('s_nop 7')
        o(f'{lbl}_c:')
        o(f'v_cmp_u_f32 vcc, v{RDa}, v{RDa}')
        o(cvt(PUB, RDa, RDa+1)); o(cvt(PUB+1, RDa+2, RDa+3))
        o(br(f'{lbl}_rt'))
        o(f'{lbl}_ok:')
        o('s_mov_b64 exec, 0xffff')
        o(f'buffer_store_dwordx2 {vr(PUB,2)}, v{MR}, {srd}, s{sTMP} offen {ST}')
        o('s_mov_b64 exec, -1')
        o(f's_cmp_eq_u32 s{sSTEP}, 63')
        o(f's_cbranch_scc1 {DONE}')
        ool.append(f'{lbl}_rt:\n' + (f's_add_u32 s{sPROF+9+m3}, s{sPROF+9+m3}, 1\n' if prof else '') + tmo(f'{lbl}_ok') + '\n'.join(rload(i, sPBR) for i in range(4)) + '\n' + (mem3 + '\n' if m3 else '') +
                   '\n'.join(f's_waitcnt vmcnt({6-2*i+(3 if m3 else 0)})\n' + mfma(RDa, S2, R[i], None if i == 0 else RDa) for i in range(4)) +
                   f'\ns_nop 7\ns_branch {lbl}_c')
    assert all(r not in range(Q0, VA1+4) for r in R) or True
    mem3 = '\n'.join(memload(c, True) for c in range(3))
    RDa = AF(5+1)
    a(f's_cmp_eq_u32 s{sKIND}, 1')
    a(f's_cbranch_scc0 {tag}_k0')
    reduce([len(vmq)-1-vmq.index(f'r{i}') for i in range(4)], f'{tag}_re', 0)
    zblock()
    for i in range(OPT['egap']): a('s_nop 15')
    a(mem3)
    a(f'buffer_store_dword v{T0}, v{MR}, {srd}, s{sOOB} offen')
    a(f'{tag}_adv:')
    P('red')
    a(f"""
    s_xor_b32 s{sPBR}, s{sPBR}, {PB_STRIDE}
    s_branch {LOOP}
    """)
    a(f'{tag}_k0:')
    a(f's_cmp_eq_u32 s{sKIND}, 2')
    a(f's_cbranch_scc0 {tag}_k1')
    for i in range(4): a(rload(i, sPBR))
    zblock()
    reduce([6,4+3,2+3,0+3], f'{tag}_rm', 1)
    a(f's_branch {tag}_adv')
    a(f'{tag}_k1:')
    zblock()
    a(f's_cmp_eq_u32 s{sKIND}, 0')
    a(f's_cbranch_scc1 {tag}_k2')
    for i in range(4): a(rload(i, sPBR))
    for i in range(OPT['lgap']): a('s_nop 15')
    a(mem3)
    reduce([9,7,5,3], f'{tag}_rl', 2)
    a(f's_branch {tag}_adv')
    a(f'{tag}_k2:')
    a(f's_cmp_eq_u32 s{sSTEP}, 63')
    a(f's_cbranch_scc1 {tag}_end')
    for i in range(OPT['nl_none']):
        a(memload(2)); a('s_waitcnt vmcnt(0)')
    a(mem3)
    a(f'buffer_store_dword v{T0}, v{MR}, {srd}, s{sOOB} offen')
    a(f's_branch {tag}_adv')
    for o in ool: a(o)
    a(f'{DONE}:')

def init_sgprs(a):
    srd = f's[{sWS}:{sWS+3}]'
    a(f'''
    s_mov_b32 s{sSTEP}, 0
    s_mov_b32 s{sRT}, 0
    s_mov_b32 s{sOOB}, 0x7f000000
    s_mov_b32 s{sMBRD}, {WS_MB}
    s_mov_b32 s{sMB4}, {WS_MB+4096}
    s_mov_b32 s{sMB8}, {WS_MB+8192}
    s_lshl_b32 s{sTMP}, s{sH}, 7
    s_lshl_b32 s{sTMP2}, s{sW}, 13
    s_add_u32 s{sPBW}, s{sTMP}, s{sTMP2}
    ''')
    for c in range(1, 9): a(f's_add_u32 s{sPBW+c}, s{sPBW}, {c*32768}')
    a(f'''
    s_lshl_b32 s{sTMP}, s{sH}, 2
    s_add_u32 s{sTMP}, s{sTMP}, s{sW}
    s_lshl_b32 s{sKV}, s{sTMP}, 12
    s_add_u32 s{sKV}, s{sKV}, {WS_KV}
    s_lshl_b32 s{sKVF}, s{sTMP}, 8
    s_add_u32 s{sKVF}, s{sKVF}, {WS_KVF}
    s_lshl_b32 s{sTMP}, s{sW}, 5
    s_add_u32 s{sTMP}, s{sTMP}, s{sH}
    s_mov_b32 s{sKIND}, 0
    s_cmp_lt_u32 s{sTMP}, 72
    s_cselect_b32 s{sKIND}, 3, s{sKIND}
    s_cmp_lt_u32 s{sTMP}, {OPT['NM']}
    s_cselect_b32 s{sKIND}, 2, s{sKIND}
    s_cmp_lt_u32 s{sTMP}, {OPT['NE']}
    s_cselect_b32 s{sKIND}, 1, s{sKIND}
    s_lshl_b32 s{sPBR}, s{sTMP}, 12
    s_lshl_b32 s{sRED}, s{sTMP}, 7
    s_cmp_eq_u32 s{sKIND}, 0
    s_cselect_b32 s{sRED}, 0x7f000000, s{sRED}
    s_lshl_b32 s{sMH}, s{sTMP}, 8
    s_cmp_eq_u32 s{sKIND}, 0
    s_cselect_b32 s{sMH}, 0x7f000000, s{sMH}
    s_add_u32 s{sMH}, s{sMH}, {WS_MH}
    s_sub_u32 s{sRED}, s{sRED}, 1024
    s_xor_b32 s{sPBO}, s{sPBR}, {PB_STRIDE}
    s_add_u32 s{sMBO}, s{sRED}, {WS_MB+2*MB_STRIDE}
    ''')

def gen_chain(a, prof=False):
    srd = SRD_WS
    sA, sB, sC3, sD = 72, 76, 80, 84
    sM0 = 88
    a('R_chain:')
    make_srd(a, sA, KA_WQ, 576*8192); make_srd(a, sB, KA_WK, 576*8192); make_srd(a, sC3, KA_WV, 576*8192)
    make_srd(a, sD, KA_WO, 4096*1152); make_srd(a, sM0, KA_MEM0, 9216)
    a(f's_load_dwordx2 s[92:93], s[0:1], {KA_DBG}')
    a(f's_mov_b32 s{sW}, s{sWAVE}\ns_mov_b32 s{sH}, s{sRANK}')
    a('v_mov_b32 v86, v0')
    consts(a)
    init_sgprs(a)
    a('v_mov_b32 v87, v0\nv_mov_b32 v0, v86')
    a(f'''
    v_mov_b32 v{TAGV}, s{sTAG}
    s_waitcnt lgkmcnt(0)
    v_mov_b64 v[80:81], -1
    v_mov_b64 v[82:83], -1
    ''')
    for sl in (sPBR, sPBO):
        for i in range(4): a(f'buffer_store_dwordx4 v[80:83], v87, {srd}, s{sl} offen offset:{i*1024}')
    for k in range(1, 4):
        a(f's_add_u32 s{sTMP}, s{sRED}, {WS_MB + k*MB_STRIDE}')
        a(f's_mov_b64 exec, 0xffff\nbuffer_store_dwordx2 v[80:81], v{MR}, {srd}, s{sTMP} offen\ns_mov_b64 exec, -1')
    a(f'''
    s_cmp_lg_u32 s{sW}, 3
    s_cbranch_scc1 C_nomem0
    s_cmp_ge_u32 s{sH}, 9
    s_cbranch_scc1 C_nomem0
    v_and_b32 v84, 7, v0
    v_mul_u32_u24 v84, 1152, v84
    v_bfe_u32 v85, v0, 3, 3
    v_lshl_add_u32 v84, v85, 4, v84
    s_lshl_b32 s{sTMP}, s{sH}, 7
    buffer_load_dwordx4 v[76:79], v84, s[{sM0}:{sM0+3}], s{sTMP} offen
    s_lshl_b32 s{sTMP}, s{sH}, 10
    s_add_u32 s{sTMP}, s{sTMP}, {WS_MB}
    s_waitcnt vmcnt(0)
    buffer_store_dwordx4 v[76:79], v87, {srd}, s{sTMP} offen
C_nomem0:
    s_waitcnt vmcnt(0)
    s_barrier
    s_cmp_lg_u32 s{sW}, 0
    s_cbranch_scc1 C_noat
    s_mov_b64 exec, 1
    v_mov_b32 v84, 64
    v_mov_b32 v85, 1
    global_atomic_add v84, v85, s[92:93]
    s_mov_b64 exec, -1
C_noat:
    ''')
    TA = 44; TMPB = 20; WOV = 26
    a(f'''
    v_and_b32 v28, 63, v0
    v_lshrrev_b32 v29, 4, v28               ; g'
    v_bfe_u32 v30, v28, 2, 2                ; r4
    v_and_b32 v31, 3, v28                   ; c4
    v_and_b32 v32, 1, v30                   ; r4&1
    v_lshrrev_b32 v33, 1, v30               ; r4>>1
    v_and_b32 v34, 1, v29                   ; g'&1
    ; row16 = (r4&1) + 8*(r4>>1) + 4*(g'&1)
    v_lshl_add_u32 v35, v33, 3, v32
    v_lshl_add_u32 v35, v34, 2, v35
    ; swz = (r4&1) | (g'&1)<<1 | (r4>>1)<<2
    v_lshl_add_u32 v36, v34, 1, v32
    v_lshl_add_u32 v36, v33, 2, v36
    s_lshl_b32 s{sTMP}, s{sW}, 1
    v_xor_b32 v36, s{sTMP}, v36             ; seg' (t=0)
    v_lshlrev_b32 v35, 8, v35
    v_lshl_add_u32 v35, v36, 5, v35
    v_lshl_add_u32 v35, v31, 3, v35
    v_lshrrev_b32 v37, 1, v29               ; g'>>1
    v_mul_u32_u24 v37, 36864, v37
    v_add_u32 v35, v35, v37
    v_add_u32 v{TA}, {LDS_WO}, v35
    v_xor_b32 v{TA+1}, 32, v{TA}
    v_add_u32 v{TA+2}, {2*36864}, v{TA}
    v_add_u32 v{TA+3}, {2*36864}, v{TA+1}
    v_lshrrev_b32 v{WOV}, 1, v28
    v_mul_u32_u24 v{WOV}, 1152, v{WOV}
    v_and_b32 v38, 1, v28
    v_lshl_add_u32 v{WOV}, v38, 4, v{WOV}
    v_lshrrev_b32 v39, 2, v28               ; 4g + r4
    v_lshlrev_b32 v39, 5, v39
    v_lshl_add_u32 v39, v31, 3, v39
    s_mul_i32 s{sTMP2}, s{sW}, 36864
    s_add_u32 s94, s{sTMP2}, {LDS_WO}
    v_add_u32 v39, s94, v39
    s_lshl_b32 s95, s{sH}, 8
    s_lshl_b32 s{sTMP}, s{sW}, 17
    s_add_u32 s95, s95, s{sTMP}             ; h*256 + w*16*8192
    s_mul_i32 s97, s{sH}, {128*1152}
    s_lshl_b32 s{sTMP}, s{sW}, 5
    s_add_u32 s97, s97, s{sTMP}             ; h*128*1152 + w*32
    ''')
    def reads(m, c):
        out = []
        for t in range(2):
            tile = [0, 1, 4][m] + ([0, 2][t] if m < 2 else t)
            w = wreg(tile, c)
            if w is None: k, lo = 'v', 48
            else: k, lo = w[0], int(w[2:w.index(':')])
            for hb2 in range(2):
                for rh in range(2):
                    r = lo + 4*hb2 + 2*rh
                    out.append(f'ds_read_b64_tr_b16 {k}[{r}:{r+1}], v{TA+2*hb2+t} offset:{c*4096 + rh*512}')
        return out
    def wo_dma(c):
        for j in range(4):
            a(f's_add_u32 s96, s97, {c*128 + j*32*1152}')
            a(f's_add_u32 m0, s94, {c*4096 + j*1024}')
            a(f'buffer_load_dwordx4 v{WOV}, s[{sD}:{sD+3}], s96 offen lds')
        return 4
    stage_weights(a, 'C', [f's[{x}:{x+3}]' for x in (sA, sB, sC3)], reads, 'chain', LDS_WO, TMPB, [95, 96, 94], extra_dma=wo_dma)
    a(f'''
    v_add_u32 v{T1}, s{sWV}, v87
    ds_write_b128 v{T1}, v[48:51]
    ds_write_b128 v{T1}, v[52:55] offset:1024
    ''')
    for c in range(9):
        a(f's_waitcnt vmcnt({4*(8-c)})')
        b = 48 + 16*(c % 2)
        for u in range(4):
            for rh in range(2):
                a(f'ds_read_b64_tr_b16 v[{b+4*u+2*rh}:{b+4*u+2*rh+1}], v39 offset:{c*4096 + u*1024 + rh*512}')
        a('s_waitcnt lgkmcnt(0)')
        for u in range(4):
            a(f'ds_write_b128 v{WOA}, {vr(b+4*u)} offset:{(4*c+u)*1024}')
    a(f'''
    v_mov_b32 v0, v87
    s_mov_b32 m0, {LDS_DUMMY}
    v_mov_b32 v{T0}, 64
C_wi:
    global_load_dword v{T1}, v{T0}, s[92:93] sc1
    s_waitcnt vmcnt(0)
    v_readfirstlane_b32 s{sTMP}, v{T1}
    s_add_u32 s{sRT}, s{sRT}, 1
    s_cmp_gt_u32 s{sRT}, 0x100000
    s_cbranch_scc1 C_wid
    s_cmp_lt_u32 s{sTMP}, 32
    s_cbranch_scc1 C_wi
C_wid:
    v_lshrrev_b32 v{T0}, 2, v{L16}
C_wf:
    buffer_load_dword v{FLG}, v{T0}, {srd}, s{sKVF} offen sc1
    s_waitcnt vmcnt(0)
    v_cmp_eq_u32 s[{sFM}:{sFM+1}], v{TAGV}, v{FLG}
    s_add_u32 s{sRT}, s{sRT}, 1
    s_cmp_gt_u32 s{sRT}, 0x100000
    s_cbranch_scc1 C_wfd
    s_bitcmp1_b64 s[{sFM}:{sFM+1}], 0
    s_cbranch_scc0 C_wf
C_wfd:
    buffer_load_dwordx4 {vr(KX)}, v{L16}, {srd}, s{sKV} offen sc1
    buffer_load_dwordx4 {vr(KX+4)}, v{L16}, {srd}, s{sKV} offen offset:1024 sc1
    buffer_load_dwordx4 {vr(VX)}, v{L16}, {srd}, s{sKV} offen offset:2048 sc1
    buffer_load_dwordx4 {vr(VX+4)}, v{L16}, {srd}, s{sKV} offen offset:3072 sc1
    ''')
    a(f's_add_u32 s{sTMP}, s{sRED}, {WS_MB}')
    a(f's_mov_b64 exec, 0xffff\nbuffer_load_dwordx2 {vr(PUB,2)}, v{MR}, {srd}, s{sTMP} offen sc1\ns_mov_b64 exec, -1')
    for sl in (sPBR, sPBO):
        for i in range(4): a(f'buffer_load_dwordx4 {vr(20+4*i)}, v{L16}, {srd}, s{sl} offen offset:{i*1024} sc1')
    for k in range(1, 4):
        a(f's_add_u32 s{sTMP}, s{sRED}, {WS_MB + k*MB_STRIDE}')
        a(f's_mov_b64 exec, 0xffff\nbuffer_load_dwordx2 v[36:37], v{MR}, {srd}, s{sTMP} offen sc1\ns_mov_b64 exec, -1')
    a('s_waitcnt vmcnt(0) lgkmcnt(0)')
    for r in range(Q0, VA1+4, 2): a(f'v_mov_b64 {vr(r,2)}, 0')
    if prof:
        for i in range(12): a(f's_mov_b32 s{sPROF+i}, 0')
        a('s_memrealtime s[72:73]')
    a('s_barrier')
    for c in range(3): a(f'buffer_load_dwordx4 {vr(AF(c))}, v{L16}, {srd}, s{sMBRD} offen offset:{c*1024} sc1')
    a(f'buffer_store_dword v{T0}, v{MR}, {srd}, s{sOOB} offen')
    gen_step(a, '', 'sc1', prof, 'F')
    a(f'''
    s_mov_b64 exec, 0xffff
    buffer_store_dwordx4 {vr(PUB)}, v{L16}, {srd}, s{sMH} offen sc1
    s_mov_b64 exec, -1
F_end:
    ''')
    if prof:
        a(f'''
        s_memrealtime s[74:75]
        s_waitcnt lgkmcnt(0)
        s_lshl_b32 s{sTMP}, s{sH}, 2
        s_add_u32 s{sTMP}, s{sTMP}, s{sW}
        s_lshl_b32 s{sTMP}, s{sTMP}, 7
        s_add_u32 s{sTMP}, s{sTMP}, {WS_PROF}
        v_mov_b32 v1, 0
        ''')
        regs = [sPROF+i for i in range(12)] + [70, 72, 74, sRT] + [76+2*i for i in range(13)]
        for i, r in enumerate(regs):
            a(f'v_mov_b32 v2, s{r}\nbuffer_store_dword v2, v1, {srd}, s{sTMP} offen offset:{4*i}')
    a('s_endpgm')
```

```python
from asmlib import *
KA_AX, KA_WR, KA_WI, KA_BX, KA_MEM0, KA_WQ, KA_WK, KA_WV, KA_WO, KA_SEG, KA_OUT, KA_DBG, KA_WS = [8*i for i in range(13)]
WS_PB   = 0
PB_STRIDE = 0x80000
WS_MB   = 0x100000
MB_STRIDE = 0x4000
WS_KVF  = 0x180000
WS_OF   = 0x700000
WS_EPOCH = 0x1f0000
WS_PROF = 0x200000
WS_KV   = 0x1000000
KV_SEG  = 32*16384
WS_Q    = 0x3200000
WS_MH   = 0x400000
MH_STRIDE = 0x8000
QS_SEG  = 32*8192
WS_O    = 0x5200000
WS_X1   = 0x6200000
WS_Y1   = 0x6600000
WS_SIZE = 0x10000000
OOB = 0x7ff00000
SOOB = 0x7f000000
sXCC, sRANK, sWAVE, sTAG = 4, 5, 6, 7
sWS = 8
SRD_WS = f's[{sWS}:{sWS+3}]'
def vr(b, n=4): return f'v[{b}:{b+n-1}]'
def ar(b, n=4): return f'a[{b}:{b+n-1}]'
def cvt(d, x, y): return f'v_cvt_pk_bf16_f32 v{d}, v{x}, v{y}'
def pkadd(d, x, y): return f'v_pk_add_f32 {vr(d,2)}, {vr(x,2)}, {vr(y,2)}'
def mfma16(d, a, b, c=None):
    return f'v_mfma_f32_16x16x32_bf16 {vr(d)}, {vr(a)}, {vr(b)}, {vr(c) if c is not None else 0}'

def make_srd(a, s, karg_off, nbytes):
    a(f'''
    s_load_dwordx2 s[{s}:{s+1}], s[0:1], {karg_off}
    s_mov_b32 s{s+2}, {nbytes}
    s_mov_b32 s{s+3}, 0x00020000
    ''')

class Stamps:
    def __init__(self, a, on, base=76, n=13): self.a=a; self.on=on; self.base=base; self.k=0; self.n=n; self.names=[]
    def __call__(self, name):
        if self.on:
            assert self.k < self.n
            self.a(f's_memtime s[{self.base+2*self.k}:{self.base+2*self.k+1}]'); self.k += 1; self.names.append(name)

def stage_weights(a, tag, mats, nwave_reads, swz_kind, LDS_BASE, tmp, sT, extra_dma=None, after_last=None, post_read=None):
    sHO, sOF, sLB = sT
    X, R = tmp+4, tmp+5
    a(f'''
    v_and_b32 v{X}, 63, v0
    v_lshrrev_b32 v{R}, 4, v{X}
    v_and_b32 v{X}, 15, v{X}
    ''')
    for j in range(4):
        if swz_kind == 'chain':
            a(f'v_and_b32 v{tmp+j}, 1, v{R}\nv_lshlrev_b32 v{tmp+j}, 1, v{tmp+j}\nv_xor_b32 v{tmp+j}, {j<<2}, v{tmp+j}')
        else:
            a(f'v_lshlrev_b32 v{tmp+j}, 2, v{R}')
        a(f'''
        v_xor_b32 v{tmp+j}, v{tmp+j}, v{X}
        v_lshlrev_b32 v{tmp+j}, 4, v{tmp+j}
        v_lshl_add_u32 v{tmp+j}, v{R}, 13, v{tmp+j}
        v_add_u32 v{tmp+j}, {j*4*8192}, v{tmp+j}
        ''')
    def dma(n):
        m, c = divmod(n, 9)
        out = [f's_add_u32 s{sOF}, s{sHO}, {c*64*8192}']
        for j in range(4):
            out.append(f's_add_u32 m0, s{sLB}, {c*4096 + j*1024}')
            out.append(f'buffer_load_dwordx4 v{tmp+j}, {mats[m]}, s{sOF} offen lds')
        return '\n'.join(out)
    N = 9*len(mats)
    cnt = []
    def issue(n):
        if n < N: a(dma(n)); cnt.append(4)
        elif extra_dma is not None and n - N < 9:
            k = extra_dma(n - N); cnt.append(k)
        else: cnt.append(0)
    for n in range(9): issue(n)
    for n in range(N):
        younger = sum(cnt[n+1:])
        a(f's_waitcnt vmcnt({min(younger,63)})')
        a('s_barrier')
        if n >= 1: issue(n-1+9)
        for ins in nwave_reads(*divmod(n, 9)): a(ins)
        a('s_waitcnt lgkmcnt(0)')
        if post_read: post_read(*divmod(n, 9))
    a('s_barrier')
    issue(N-1+9)
    return cnt
```

```python
import struct
from common import *
from qkv import mf32, pstamp
def fl(x): return '0x%08x' % struct.unpack('<I', struct.pack('<f', float(x)))[0]
sF, sT0, sT1, sT2, sIT, sBUF, sXO, sRT, sSO = 12, 13, 14, 15, 16, 17, 18, 19, 20
sAX, sWR, sWI, sOUT, sDBG = 24, 28, 32, 36, 40
LN, HI, N31, T0, T1, T2, T3, XR, XV, STA, CC, BB, BB2 = range(1, 14)
WF = 64
def mm(d, a, b, first): return f'v_mfma_f32_32x32x16_bf16 {vr(d,16)}, {a}, {b}, ' + ('0' if first else vr(d,16))

def trig_pair(a, dst, fn, c, k0, b0, k1, b1, agpr=False, neg_dst=None, mul=None):
    a(f'v_fmamk_f32 v{T0}, v{c}, {fl(k0)}, v{b0}')
    a(f'v_fmamk_f32 v{T1}, v{c}, {fl(k1)}, v{b1}')
    a(f'v_fract_f32 v{T0}, v{T0}'); a(f'v_fract_f32 v{T1}, v{T1}')
    a(f'v_{fn}_f32 v{T0}, v{T0}'); a(f'v_{fn}_f32 v{T1}, v{T1}')
    if mul is not None:
        a(f'v_mul_f32 v{T0}, v{mul}, v{T0}'); a(f'v_mul_f32 v{T1}, v{mul}, v{T1}')
    if agpr:
        a(cvt(T2, T0, T1)); a(f'v_accvgpr_write_b32 a{dst}, v{T2}')
        if neg_dst is not None:
            a(f'v_xor_b32 v{T2}, 0x80008000, v{T2}'); a(f'v_accvgpr_write_b32 a{neg_dst}, v{T2}')
    else:
        a(cvt(dst, T0, T1))
        if neg_dst is not None: a(f'v_xor_b32 v{neg_dst}, 0x80008000, v{dst}')

def grid_arrive(a, off):
    a(f'''
    s_waitcnt vmcnt(0)
    s_barrier
    s_cmp_lg_u32 s{sWAVE}, 0
    s_cbranch_scc1 FB_na{off}
    s_mov_b64 exec, 1
    v_mov_b32 v{T0}, {off}
    v_mov_b32 v{T1}, 1
    global_atomic_add v{T0}, v{T1}, s[{sDBG}:{sDBG+1}]
    s_mov_b64 exec, -1
FB_na{off}:
    ''')
def grid_wait(a, off, n):
    a(f'''
    v_mov_b32 v{T0}, {off}
FB_w{off}:
    s_mov_b64 exec, 1
    global_load_dword v{T1}, v{T0}, s[{sDBG}:{sDBG+1}] sc1
    s_waitcnt vmcnt(0)
    v_readfirstlane_b32 s{sT0}, v{T1}
    s_mov_b64 exec, -1
    s_add_u32 s{sRT}, s{sRT}, 1
    s_cmp_gt_u32 s{sRT}, 0x80000
    s_cbranch_scc1 FB_d{off}
    s_cmp_ge_u32 s{sT0}, {n}
    s_cbranch_scc1 FB_d{off}
    s_sleep 8
    s_branch FB_w{off}
FB_d{off}:
    ''')

def gen_fft(a, prof=False):
    srd = SRD_WS
    a('R_fft:')
    make_srd(a, sAX, KA_AX, 2048*1152); make_srd(a, sWR, KA_WR, 2048*578); make_srd(a, sWI, KA_WI, 2048*578)
    make_srd(a, sOUT, KA_OUT, 2048*2304)
    a(f's_load_dwordx2 s[{sDBG}:{sDBG+1}], s[0:1], {KA_DBG}')
    a(f'''
    s_sub_u32 s{sF}, s{sXCC}, 5
    s_lshl_b32 s{sF}, s{sF}, 5
    s_add_u32 s{sF}, s{sF}, s{sRANK}
    s_mov_b32 s{sRT}, 0
    v_and_b32 v{LN}, 63, v0
    v_lshrrev_b32 v{HI}, 5, v{LN}
    v_and_b32 v{N31}, 31, v{LN}
    s_waitcnt lgkmcnt(0)
    s_lshl_b32 s{sT0}, s{sF}, 2
    s_add_u32 s21, s{sT0}, s{sWAVE}            ; bin
    s_cmp_gt_u32 s21, 288
    s_cbranch_scc1 F_now
    v_lshl_add_u32 v{T0}, v{HI}, 7, v{N31}
    v_mul_u32_u24 v{T0}, 578, v{T0}
    s_lshl_b32 s{sT1}, s21, 1
    ''')
    for sg in range(2):
        for r in range(16):
            k2 = 32*sg + 8*(r>>2) + (r&3)
            a(f's_add_u32 s{sT2}, s{sT1}, {k2*32*578}')
            a(f'buffer_load_ushort v{WF+16*sg+r}, v{T0}, s[{sWR}:{sWR+3}], s{sT2} offen')
            a(f'buffer_load_ushort v{16+16*sg+r}, v{T0}, s[{sWI}:{sWI+3}], s{sT2} offen')
            if r % 8 == 7: a('s_waitcnt vmcnt(40)')
    a('F_now:')
    BM, ACC, XF = 100, 16, 32
    a(f'''
    ; cg = F % 5, rg = F / 5
    s_mul_i32 s{sT0}, s{sF}, 205
    s_lshr_b32 s22, s{sT0}, 10                 ; rg
    s_mul_i32 s{sT0}, s22, 5
    s_sub_u32 s{sT0}, s{sF}, s{sT0}            ; cg
    s_lshl_b32 s{sT0}, s{sT0}, 2
    s_add_u32 s23, s{sT0}, s{sWAVE}            ; ct
    s_lshl_b32 s{sT0}, s23, 4
    v_lshrrev_b32 v{T0}, 1, v{N31}
    v_add_u32 v{T0}, s{sT0}, v{T0}
    v_cvt_f32_u32 v{T0}, v{T0}
    v_mul_f32 v{CC}, {fl(1.0/576)}, v{T0}
    v_and_b32 v{T0}, 1, v{N31}
    v_cvt_f32_u32 v{T0}, v{T0}
    v_mul_f32 v{BB}, 0.25, v{T0}
    v_cvt_f32_u32 v{T1}, v{HI}
    v_mul_f32 v{T1}, {fl(8.0)}, v{T1}
    v_fmac_f32 v{BB}, v{T1}, v{CC}
    v_bfe_u32 v{T0}, v{LN}, 4, 1
    v_lshlrev_b32 v{XR}, 10, v{T0}
    v_lshl_add_u32 v{XR}, v{HI}, 8, v{XR}
    v_and_b32 v{T0}, 15, v{LN}
    v_lshl_add_u32 v{XR}, v{T0}, 4, v{XR}
    v_bfe_u32 v{T0}, v{LN}, 3, 1
    v_lshlrev_b32 v{T0}, 3, v{T0}
    v_and_b32 v{T1}, 3, v{LN}
    v_add_u32 v{T0}, v{T0}, v{T1}
    v_lshlrev_b32 v{T0}, 6, v{T0}
    v_bfe_u32 v{T1}, v{LN}, 2, 1
    v_add_u32 v{T0}, v{T0}, v{T1}
    s_and_b32 s{sT0}, s{sWAVE}, 1
    s_lshl_b32 s{sT0}, s{sT0}, 1
    v_add_u32 v{T0}, s{sT0}, v{T0}
    v_mul_u32_u24 v{XV}, 1152, v{T0}
    v_lshrrev_b32 v{T0}, 4, v{LN}
    v_lshl_add_u32 v{XV}, v{T0}, 4, v{XV}
    s_lshr_b32 s{sT0}, s{sWAVE}, 1
    s_lshl_b32 s{sT0}, s{sT0}, 6
    v_add_u32 v{XV}, s{sT0}, v{XV}
    v_lshlrev_b32 v{STA}, 12, v{N31}
    v_lshl_add_u32 v{STA}, v{HI}, 4, v{STA}
    s_lshl_b32 s{sBUF}, s{sWAVE}, 10
    s_mov_b32 s{sIT}, s22                      ; rt
    s_cmp_ge_u32 s{sF}, 95
    s_cbranch_scc1 F_a1done
    ''')
    def tile_off():
        a(f'''
        s_lshr_b32 s{sT0}, s{sIT}, 5           ; o>>1
        s_lshl_b32 s{sT0}, s{sT0}, 10
        s_bfe_u32 s{sT1}, s{sIT}, 0x10004      ; o&1
        s_lshl_b32 s{sT1}, s{sT1}, 8
        s_add_u32 s{sT0}, s{sT0}, s{sT1}
        s_and_b32 s{sT1}, s{sIT}, 15
        s_lshl_b32 s{sT1}, s{sT1}, 2
        s_add_u32 s{sT0}, s{sT0}, s{sT1}
        s_mul_i32 s{sXO}, s{sT0}, 1152
        s_cmp_ge_u32 s{sIT}, 64
        s_cselect_b32 s{sXO}, {SOOB}, s{sXO}
        ''')
    def xdma():
        for i in range(9):
            a(f's_add_u32 m0, s{sBUF}, {4096*i - 128*i}')
            a(f'buffer_load_dwordx4 v{XV}, s[{sAX}:{sAX+3}], s{sXO} offen offset:{128*i} lds')
    tile_off(); xdma()
    for t in range(36):
        for i in range(4):
            trig_pair(a, BM+4*t+i, 'cos', CC, 16*t+2*i, BB, 16*t+2*i+1, BB)
    a('s_waitcnt vmcnt(0)')
    for r in range(32): a(f'v_lshl_or_b32 v{WF+r}, v{16+r}, 16, v{WF+r}')
    a('F_a1loop:')
    a(f'''
    s_barrier
    s_lshl_b32 s{sSO}, s23, 17
    s_lshr_b32 s{sT0}, s{sIT}, 4
    s_lshl_b32 s{sT0}, s{sT0}, 10
    s_add_u32 s{sSO}, s{sSO}, s{sT0}
    s_and_b32 s{sT0}, s{sIT}, 15
    s_lshl_b32 s{sT0}, s{sT0}, 6
    s_add_u32 s{sSO}, s{sSO}, s{sT0}
    s_add_u32 s{sSO}, s{sSO}, {WS_X1}
    s_cmp_ge_u32 s23, 19
    s_cselect_b32 s{sSO}, {SOOB}, s{sSO}
    s_xor_b32 s{sBUF}, s{sBUF}, 0x10000
    s_add_u32 s{sIT}, s{sIT}, 19
    ''')
    tile_off()
    def xrd(t): return f'ds_read_b128 {vr(XF+4*(t%4))}, v{XR} offset:{(t>>1)*2048 + (t&1)*512}'
    for t in range(3): a(xrd(t))
    for t in range(36):
        if t+3 < 36: a(xrd(t+3))
        a(f's_waitcnt lgkmcnt({min(3, 35-t)})')
        a(mm(ACC, vr(XF+4*(t%4)), vr(BM+4*t), t == 0))
        if t < 9:
            a(f's_add_u32 m0, s{sBUF}, {4096*t - 128*t}')
            a(f'buffer_load_dwordx4 v{XV}, s[{sAX}:{sAX+3}], s{sXO} offen offset:{128*t} lds')
    a(f'v_xor_b32 v{XR}, 0x10000, v{XR}')
    for i in range(8): a(cvt(ACC+i, ACC+2*i, ACC+2*i+1))
    a(f'''
    buffer_store_dwordx4 {vr(ACC)}, v{STA}, {srd}, s{sSO} offen sc1
    buffer_store_dwordx4 {vr(ACC+4)}, v{STA}, {srd}, s{sSO} offen offset:32 sc1
    s_cmp_lt_u32 s{sIT}, 64
    s_waitcnt vmcnt(2)
    s_cbranch_scc1 F_a1loop
F_a1done:
    ''')
    grid_arrive(a, 68)
    pstamp(a, prof, 0)
    C32, S32, N32 = 224, 232, 240
    a(f'''
    v_cvt_f32_u32 v{T3}, v{N31}
    v_cvt_f32_u32 v{BB2}, v{HI}
    v_mul_f32 v{BB2}, 4.0, v{BB2}              ; 4hi
    v_mul_f32 v{CC}, {fl(1.0/32)}, v{T3}
    v_mul_f32 v{BB}, v{BB2}, v{CC}
    ''')
    def kidx(aa, e): return 16*aa + 8*(e>>2) + (e&3)
    for aa in range(2):
        for i in range(4):
            trig_pair(a, C32+4*aa+i, 'cos', CC, kidx(aa,2*i), BB, kidx(aa,2*i+1), BB)
            trig_pair(a, S32+4*aa+i, 'sin', CC, kidx(aa,2*i), BB, kidx(aa,2*i+1), BB, neg_dst=N32+4*aa+i)
    def F64(kind, x, y, aa): return 32*kind + 16*x + 8*y + 4*aa
    for x in range(2):
        a(f'v_add_f32 v{CC}, {fl(32.0*x)}, v{T3}\nv_mul_f32 v{CC}, {fl(1.0/64)}, v{CC}\nv_mul_f32 v{BB}, v{BB2}, v{CC}')
        for y in range(2):
            for aa in range(2):
                for i in range(4):
                    k0, k1 = 32*y+kidx(aa,2*i), 32*y+kidx(aa,2*i+1)
                    trig_pair(a, F64(0,x,y,aa)+i, 'cos', CC, k0, BB, k1, BB, agpr=True)
                    trig_pair(a, F64(1,x,y,aa)+i, 'sin', CC, k0, BB, k1, BB, agpr=True, neg_dst=F64(2,x,y,aa)+i)
    GA = 96
    a(f'''
    s_mul_i32 s{sT0}, s21, 3641
    s_lshr_b32 s22, s{sT0}, 16                 ; grp
    s_mul_i32 s{sT0}, s22, 18
    s_sub_u32 s23, s21, s{sT0}                 ; dt
    v_bfe_u32 v{T0}, v{N31}, 2, 1
    v_lshlrev_b32 v{T0}, 4, v{T0}
    v_lshrrev_b32 v{T1}, 3, v{N31}
    v_lshl_add_u32 v{T0}, v{T1}, 2, v{T0}
    v_and_b32 v{T1}, 3, v{N31}
    v_add_u32 v{T0}, v{T0}, v{T1}
    s_lshl_b32 s{sT0}, s23, 5
    v_add_u32 v{T0}, s{sT0}, v{T0}
    v_cvt_f32_u32 v{T0}, v{T0}
    v_mul_f32 v{CC}, {fl(1.0/576)}, v{T0}
    v_mul_f32 v{BB}, v{BB2}, v{CC}
    v_add_f32 v{XV}, 0.25, v{BB}
    v_cmp_eq_u32 vcc, 0, v{HI}
    v_mov_b32 v{T0}, 1.0
    v_cndmask_b32 v{XR}, v{T0}, 0.5, vcc       ; hi==0 ? 0.5 : 1
    v_cndmask_b32 v{STA}, 0, 0.5, vcc          ; hi==0 ? 0.5 : 0
    ''')
    for t in range(37):
        for i in range(4):
            if t == 36 and i > 0:
                a(f'v_accvgpr_write_b32 a{GA+4*t+i}, 0'); continue
            mul = XR if (t == 0 and i == 0) else (STA if t == 36 else None)
            trig_pair(a, GA+4*t+i, 'cos', CC, 8*t+i, BB, 8*t+i, XV, agpr=True, mul=mul)
    grid_wait(a, 68, 96)
    pstamp(a, prof, 1)
    XI, DR, OP = 16, 100, 164
    def D(tile, im): return DR + 32*tile + 16*im
    def O(tile, im, aa): return OP + 16*tile + 8*im + 4*aa
    a(f'''
    s_cmp_ge_u32 s{sF}, 73
    s_cbranch_scc1 F_a2done
    v_lshlrev_b32 v{STA}, 4, v{N31}
    v_lshl_add_u32 v{STA}, v{HI}, 12, v{STA}
    s_lshl_b32 s{sT0}, s{sWAVE}, 2
    v_add_u32 v{STA}, s{sT0}, v{STA}
    s_cmp_gt_u32 s21, 288
    s_cbranch_scc1 F_a2zero
    v_lshlrev_b32 v{T3}, 4, v{N31}
    v_lshl_add_u32 v{T3}, v{HI}, 10, v{T3}
    s_lshl_b32 s{sT0}, s21, 13
    s_add_u32 s{sT0}, s{sT0}, {WS_X1}
    s_add_u32 s{sT1}, s{sT0}, 4096
    ''')
    def XIN(tile, im, aa): return XI + 16*tile + 8*im + 4*aa
    for tile in range(2):
        for im in range(2):
            for aa in range(2):
                a(f'buffer_load_dwordx4 {vr(XIN(tile,im,aa))}, v{T3}, {srd}, s{sT1 if im else sT0} offen offset:{aa*2048 + tile*512} sc1')
    a(f'''
    v_cvt_f32_u32 v{T3}, v{N31}
    v_mul_f32 v{CC}, {fl(1.0/2048)}, v{T3}
    v_mul_f32 v{BB}, v{BB2}, v{CC}
    ''')
    for tile in range(2):
        a(f's_waitcnt vmcnt({4*(1-tile)})')
        for aa in range(2): a(mm(D(tile,0), vr(XIN(tile,0,aa)), vr(C32+4*aa), aa == 0))
        for aa in range(2): a(mm(D(tile,1), vr(XIN(tile,1,aa)), vr(C32+4*aa), aa == 0))
        for aa in range(2): a(mm(D(tile,0), vr(XIN(tile,1,aa)), vr(S32+4*aa), False))
        for aa in range(2): a(mm(D(tile,1), vr(XIN(tile,0,aa)), vr(N32+4*aa), False))
    TW = 48
    def cmul_pack(tile, r, getcs, sign):
        for j in range(2):
            getcs(r+j, TW+2*j, TW+2*j+1)
        for j in range(2):
            re, im, c, s = D(tile,0)+r+j, D(tile,1)+r+j, TW+2*j, TW+2*j+1
            a(f'v_mul_f32 v{TW+4+j}, v{re}, v{c}')
            a(f'v_mul_f32 v{TW+6+j}, v{im}, v{c}')
            a(f'v_fma_f32 v{TW+4+j}, {"-" if sign > 0 else ""}v{im}, v{s}, v{TW+4+j}')
            a(f'v_fma_f32 v{TW+6+j}, {"" if sign > 0 else "-"}v{re}, v{s}, v{TW+6+j}')
        a(cvt(O(tile,0,0)+r//2, TW+4, TW+5)); a(cvt(O(tile,1,0)+r//2, TW+6, TW+7))
    def tw_cs(k_of):
        def f(r, c, s):
            a(f'v_fmamk_f32 v{c}, v{CC}, {fl(k_of(r))}, v{BB}')
            a(f'v_sin_f32 v{s}, v{c}'); a(f'v_cos_f32 v{c}, v{c}')
        return f
    for tile in range(2):
        for r in range(0, 16, 2): cmul_pack(tile, r, tw_cs(lambda r, tile=tile: 32*tile + 8*(r>>2) + (r&3)), -1)
    for sg in range(2):
        first = True
        for (dim, kind, im) in ((0,0,0),(1,0,1),(0,1,1),(1,2,0)):
            for tile in range(2):
                for aa in range(2):
                    a(mm(D(sg,dim), ar(F64(kind,sg,tile,aa)), vr(O(tile,im,aa)), kind == 0 and tile == 0 and aa == 0))
    def w_cs(sg):
        def f(r, c, s):
            a(f'v_lshlrev_b32 v{c}, 16, v{WF+16*sg+r}'); a(f'v_and_b32 v{s}, 0xffff0000, v{WF+16*sg+r}')
        return f
    for sg in range(2):
        for r in range(0, 16, 2): cmul_pack(sg, r, w_cs(sg), +1)
    for tile in range(2):
        for (dim, kind, im) in ((0,0,0),(1,0,1),(0,2,1),(1,1,0)):
            for sg in range(2):
                for aa in range(2):
                    a(mm(D(tile,dim), vr(O(sg,im,aa)), ar(F64(kind,tile,sg,aa)), kind == 0 and sg == 0 and aa == 0))
    for tile in range(2):
        a(f'v_add_f32 v{CC}, {fl(32.0*tile)}, v{T3}\nv_mul_f32 v{CC}, {fl(1.0/2048)}, v{CC}\nv_mul_f32 v{BB}, v{BB2}, v{CC}')
        for r in range(0, 16, 2): cmul_pack(tile, r, tw_cs(lambda r: 8*(r>>2) + (r&3)), +1)
    for tile in range(2):
        for (dim, K, im) in ((0,C32,0),(1,C32,1),(0,N32,1),(1,S32,0)):
            for aa in range(2):
                a(mm(D(tile,dim), vr(K+4*aa), vr(O(tile,im,aa)), K == C32 and aa == 0))
    for tile in range(2):
        for r in range(16):
            a(cvt(D(tile,0)+r, D(tile,0)+r, D(tile,1)+r))
            a(f'ds_write_b32 v{STA}, v{D(tile,0)+r} offset:{(64*(8*(r>>2)+(r&3)) + 32*tile)*16}')
    a('s_branch F_a2st')
    a('F_a2zero:')
    a(f'v_mov_b32 v{T0}, 0')
    for tile in range(2):
        for r in range(16):
            a(f'ds_write_b32 v{STA}, v{T0} offset:{(64*(8*(r>>2)+(r&3)) + 32*tile)*16}')
    a(f'''
F_a2st:
    s_waitcnt lgkmcnt(0)
    s_barrier
    v_lshlrev_b32 v{T3}, 4, v0
    s_lshl_b32 s{sT0}, s{sF}, 15
    s_add_u32 s{sT0}, s{sT0}, {WS_Y1}
    ''')
    for i in range(8): a(f'ds_read_b128 {vr(XI+4*i)}, v{T3} offset:{4096*i}')
    for i in range(8):
        a(f's_waitcnt lgkmcnt({7-i})')
        a(f'buffer_store_dwordx4 {vr(XI+4*i)}, v{T3}, {srd}, s{sT0} offen sc1')
        a(f's_add_u32 s{sT0}, s{sT0}, 4096')
    a('F_a2done:')
    grid_arrive(a, 72)
    grid_wait(a, 72, 96)
    pstamp(a, prof, 2)
    YD = 100
    a(f'''
    s_cmp_ge_u32 s22, 21
    s_cbranch_scc1 F_a3done
    v_lshlrev_b32 v{T3}, 4, v{N31}
    v_mov_b32 v{XV}, v{T3}
    v_lshl_add_u32 v{T3}, v{HI}, 15, v{T3}
    v_mul_u32_u24 v{STA}, 2304, v{N31}
    v_lshl_add_u32 v{STA}, v{HI}, 5, v{STA}
    s_mov_b32 s{sIT}, s22
    s_mov_b32 s42, {fl(2.0/576/2048)}
    s_mov_b32 s43, {fl(2.0/576/2048)}
F_a3loop:
    s_lshl_b32 s{sT0}, s{sIT}, 9
    s_add_u32 s{sT0}, s{sT0}, {WS_Y1}
    s_mul_i32 s{sSO}, s{sIT}, {32*2304}
    s_lshl_b32 s{sT1}, s23, 6
    s_add_u32 s{sSO}, s{sSO}, s{sT1}
    ''')
    for t in range(37):
        a(f'buffer_load_dwordx4 {vr(YD+4*t)}, v{T3 if t < 36 else XV}, {srd}, s{sT0} offen sc1')
        a(f's_add_u32 s{sT0}, s{sT0}, 65536')
    for t in range(37):
        a(f's_waitcnt vmcnt({36-t})')
        a(mm(ACC, ar(GA+4*t), vr(YD+4*t), t == 0))
    for i in range(8): a(f'v_pk_mul_f32 {vr(ACC+2*i,2)}, {vr(ACC+2*i,2)}, s[42:43]')
    for i in range(8): a(cvt(ACC+i, ACC+2*i, ACC+2*i+1))
    a(f'''
    buffer_store_dwordx4 {vr(ACC)}, v{STA}, s[{sOUT}:{sOUT+3}], s{sSO} offen
    buffer_store_dwordx4 {vr(ACC+4)}, v{STA}, s[{sOUT}:{sOUT+3}], s{sSO} offen offset:16
    s_add_u32 s{sIT}, s{sIT}, 21
    s_cmp_lt_u32 s{sIT}, 64
    s_waitcnt vmcnt(0)
    s_cbranch_scc1 F_a3loop
F_a3done:
    ''')
    pstamp(a, prof, 3)
```

```python
import numpy as np
S, D, H, E, M, SEG, NSEG = 2048, 576, 32, 128, 8, 32, 64

def smf_k_of_a(g, half, e): return 16*g + 4*(e >> 1) + 2*half + (e & 1)
def smf_k_of_b(gb, e16): return 32*(e16 >> 3) + 8*gb + (e16 & 7)
def smf_a_of_k(k):
    g = k >> 4; r = k & 15
    return g, (r >> 1) & 1, 2*(r >> 2) + (r & 1)

def mem_d(c, g, half, e): return 64*c + 16*g + 8*half + e
def qkv_row(c, k):
    g, half, e = smf_a_of_k(k); return mem_d(c, g, half, e)

def feat(w, t, n): return 32*w + 16*t + n
def piece_feat(p, e):
    w, g = p >> 2, p & 3
    return feat(w, e >> 2, 4*g + (e & 3))
def wo_row(u, k):
    g, half, e = smf_a_of_k(k); return piece_feat(8*u + 2*g + half, e)

def bfrag(Wrows, cols):
    out = np.zeros((64, 16), Wrows(0).dtype)
    for l in range(64):
        gb, n = l >> 4, l & 15
        for e in range(16):
            out[l, e] = Wrows(smf_k_of_b(gb, e))[cols[n]]
    return out

def pb_token(e):
    gp, i = e >> 1, e & 1
    return 4*(gp & 1) + (gp >> 1) + 2*i
```

```python
from common import *
from qkv import pstamp
import fft
def gen_oproj(a, prof=False):
    srd = SRD_WS
    sT0, sT1, sRT, sOUT = fft.sT0, fft.sT1, fft.sRT, fft.sOUT
    sWO = 24; sCG, sTH, sS, sG, sLB, sOB, sFO, sSO, sPAR = 44, 45, 46, 47, 48, 49, 50, 51, 52
    LN, L16, DV, TA, FA, OA_, TAGV, T0, T1, RW, RR = 1, 2, 3, 4, 5, 6, 7, 8, 9, 10, 11
    ACC = 16; OB = 32; SUM = 96
    def wreg(q): return ar(4*q) if q < 64 else vr(128 + 4*(q-64))
    a(f'''
    s_cmp_ge_u32 s{sRANK}, 24
    s_cbranch_scc1 L_exit
    ''')
    make_srd(a, sWO, KA_WO, 4096*1152)
    a(f'''
    s_cmp_ge_u32 s{sRANK}, 12
    s_cselect_b32 s{sTH}, 1, 0
    s_mul_i32 s{sT0}, s{sTH}, 12
    s_sub_u32 s{sCG}, s{sRANK}, s{sT0}
    v_and_b32 v{LN}, 63, v0
    v_lshlrev_b32 v{L16}, 4, v{LN}
    v_mov_b32 v{TAGV}, s{sTAG}
    v_lshrrev_b32 v{DV}, 1, v{LN}
    v_mul_u32_u24 v{DV}, 1152, v{DV}
    v_and_b32 v{T0}, 1, v{LN}
    v_lshl_add_u32 v{DV}, v{T0}, 4, v{DV}
    ; TA = (16*(g>>1) + 4*(g&1) + r4)*32 + c4*8 + w*40960
    v_lshrrev_b32 v{T0}, 5, v{LN}
    v_lshlrev_b32 v{TA}, 4, v{T0}
    v_bfe_u32 v{T0}, v{LN}, 2, 3
    v_add_u32 v{TA}, v{TA}, v{T0}
    v_lshlrev_b32 v{TA}, 5, v{TA}
    v_and_b32 v{T0}, 3, v{LN}
    v_lshl_add_u32 v{TA}, v{T0}, 3, v{TA}
    s_mul_i32 s{sLB}, s{sWAVE}, 40960
    v_add_u32 v{TA}, s{sLB}, v{TA}
    s_mul_i32 s{sG}, s{sWAVE}, {1024*1152}
    s_mul_i32 s{sT0}, s{sCG}, 96
    s_add_u32 s{sG}, s{sG}, s{sT0}
    s_lshl_b32 s{sT0}, s{sWAVE}, 11
    v_lshlrev_b32 v{FA}, 6, v{LN}
    v_add_u32 v{FA}, s{sT0}, v{FA}
    v_and_b32 v{T0}, 15, v{LN}
    v_mul_u32_u24 v{OA_}, 2304, v{T0}
    v_lshrrev_b32 v{T0}, 4, v{LN}
    v_lshl_add_u32 v{OA_}, v{T0}, 3, v{OA_}
    s_mul_i32 s{sT0}, s{sWAVE}, 3072
    v_add_u32 v{RW}, s{sT0}, v{L16}
    s_lshl_b32 s{sT0}, s{sWAVE}, 10
    v_add_u32 v{RR}, s{sT0}, v{L16}
    s_waitcnt lgkmcnt(0)
    ''')
    def dma(hh):
        for ct in range(3):
            for j in range(4):
                a(f's_add_u32 s{sT0}, s{sG}, {(hh*128 + 32*j)*1152 + ct*32}')
                a(f's_add_u32 m0, s{sLB}, {(hh%3)*12288 + ct*4096 + j*1024}')
                a(f'buffer_load_dwordx4 v{DV}, s[{sWO}:{sWO+3}], s{sT0} offen lds')
    for hh in range(3): dma(hh)
    for hh in range(8):
        a(f's_waitcnt vmcnt({12*min(2, 7-hh)})')
        for wp in range(4):
            for ct in range(3):
                w = wreg((hh*4+wp)*3+ct); k, lo = w[0], int(w[2:w.index(':')])
                for rh in range(2):
                    a(f'ds_read_b64_tr_b16 {k}[{lo+2*rh}:{lo+2*rh+1}], v{TA} offset:{(hh%3)*12288 + ct*4096 + wp*1024 + rh*256}')
            a('s_waitcnt lgkmcnt(0)')
        if hh+3 < 8: dma(hh+3)
    pstamp(a, prof, 4)
    a(f'''
    s_barrier
    s_sub_u32 s{sS}, s{sXCC}, 5
    s_mov_b32 s{sPAR}, 0
    s_mov_b32 s{sRT}, 0
O_loop:
    s_lshl_b32 s{sFO}, s{sS}, 13
    s_add_u32 s{sFO}, s{sFO}, {WS_OF}
    s_lshl_b32 s{sOB}, s{sS}, 18
    s_lshl_b32 s{sT0}, s{sTH}, 17
    s_add_u32 s{sOB}, s{sOB}, s{sT0}
    s_lshl_b32 s{sT0}, s{sWAVE}, 15
    s_add_u32 s{sOB}, s{sOB}, s{sT0}
    s_add_u32 s{sOB}, s{sOB}, {WS_O}
    s_lshl_b32 s{sSO}, s{sS}, 1
    s_add_u32 s{sSO}, s{sSO}, s{sTH}
    s_mul_i32 s{sSO}, s{sSO}, {16*2304}
    s_mul_i32 s{sT0}, s{sCG}, 96
    s_add_u32 s{sSO}, s{sSO}, s{sT0}
    s_lshl_b32 s{sT0}, s{sWAVE}, 5
    s_add_u32 s{sSO}, s{sSO}, s{sT0}
    s_add_u32 s{sSO}, s{sSO}, 1152
O_poll:
    s_mov_b32 exec_hi, 0
    buffer_load_dword v{T0}, v{FA}, {srd}, s{sFO} offen sc1
    s_waitcnt vmcnt(0)
    v_cmp_ne_u32 vcc, v{TAGV}, v{T0}
    s_mov_b64 exec, -1
    s_add_u32 s{sRT}, s{sRT}, 1
    s_cmp_gt_u32 s{sRT}, 0x80000
    s_cbranch_scc1 O_go
    s_cbranch_vccz O_go
    s_sleep 4
    s_branch O_poll
O_go:
    ''')
    def old(k):
        if k % 4 == 0 and k: a(f's_add_u32 s{sOB}, s{sOB}, 4096')
        a(f'buffer_load_dwordx4 {vr(OB+4*(k%16))}, v{L16}, {srd}, s{sOB} offen offset:{(k%4)*1024} sc1')
    for k in range(16): old(k)
    for k in range(32):
        a(f's_waitcnt vmcnt({min(15, 31-k)})')
        for ct in range(3):
            a(f'v_mfma_f32_16x16x32_bf16 {vr(ACC+4*ct)}, {wreg(k*3+ct)}, {vr(OB+4*(k%16))}, ' + ('0' if k == 0 else vr(ACC+4*ct)))
        if k+16 < 32: old(k+16)
    a(f'v_add_u32 v{T0}, s{sPAR}, v{RW}')
    a(f'v_add_u32 v{T1}, s{sPAR}, v{RR}')
    for ct in range(3): a(f'ds_write_b128 v{T0}, {vr(ACC+4*ct)} offset:{1024*ct}')
    a(f'''
    s_waitcnt lgkmcnt(0)
    s_barrier
    s_cmp_eq_u32 s{sWAVE}, 3
    s_cbranch_scc1 O_next
    ''')
    for w in range(4): a(f'ds_read_b128 {vr(SUM+4*w)}, v{T1} offset:{3072*w}')
    a('s_waitcnt lgkmcnt(0)')
    a(pkadd(SUM, SUM, SUM+4)); a(pkadd(SUM+2, SUM+2, SUM+6)); a(pkadd(SUM+8, SUM+8, SUM+12)); a(pkadd(SUM+10, SUM+10, SUM+14))
    a(pkadd(SUM, SUM, SUM+8)); a(pkadd(SUM+2, SUM+2, SUM+10))
    a(cvt(SUM, SUM, SUM+1)); a(cvt(SUM+1, SUM+2, SUM+3))
    a(f'''
    buffer_store_dwordx2 {vr(SUM,2)}, v{OA_}, s[{sOUT}:{sOUT+3}], s{sSO} offen
O_next:
    s_xor_b32 s{sPAR}, s{sPAR}, 0x4000
    s_add_u32 s{sS}, s{sS}, 3
    s_cmp_lt_u32 s{sS}, 64
    s_cbranch_scc1 O_loop
    ''')
    pstamp(a, prof, 5)
    a(f'''
    s_cmp_lg_u32 s{fft.sF}, 0
    s_cbranch_scc1 L_exit
    s_cmp_lg_u32 s{sWAVE}, 0
    s_cbranch_scc1 L_exit
    s_mov_b64 exec, 1
    v_mov_b32 v{T0}, {WS_EPOCH}
    buffer_store_dword v{TAGV}, v{T0}, {srd}, 0 offen sc1
    s_endpgm
    ''')
```

```python
from common import *
LO, XR, XV, TAGV = 1, 2, 3, 4
ACC = [16, 32, 48]
XF = 64
sH, sJ, sT0, sT1, sSEG, sKV, sQ, sFL, sXO, sBUF, sIT, sFLP = 12, 13, 14, 15, 16, 17, 18, 19, 20, 21, 22, 23
sX = 24
def wq(m, t):
    if m == 0: return vr(80 + 4*t)
    idx = (m-1)*36 + t
    return ar(4*idx) if idx < 64 else vr(224 + 4*(idx-64))
def mf32(d, a, b, first): return f'v_mfma_f32_32x32x16_bf16 {vr(d,16)}, {a}, {b}, ' + ('0' if first else vr(d,16))

def gen_qkv(a, next_label, prof=False):
    srd = SRD_WS
    sA, sB, sC = 72, 76, 80
    a('R_qkv:')
    make_srd(a, sA, KA_WQ, 576*8192); make_srd(a, sB, KA_WK, 576*8192); make_srd(a, sC, KA_WV, 576*8192)
    make_srd(a, sX, KA_BX, 2048*1152)
    TA = 16; TMPB = 24
    a(f'''
    s_sub_u32 s{sT0}, s{sXCC}, 1
    s_lshl_b32 s{sT0}, s{sT0}, 5
    s_add_u32 s{sT0}, s{sT0}, s{sRANK}
    s_lshr_b32 s{sH}, s{sT0}, 2
    s_and_b32 s{sJ}, s{sT0}, 3
    v_mov_b32 v{TAGV}, s{sTAG}
    v_and_b32 v32, 63, v0
    v_lshrrev_b32 v33, 5, v32               ; hi
    v_bfe_u32 v34, v32, 4, 1
    v_bfe_u32 v35, v32, 2, 2                ; r4
    v_and_b32 v36, 3, v32                   ; c4
    v_and_b32 v37, 15, v32
    v_lshlrev_b32 v{LO}, 10, v34
    v_lshl_add_u32 v{LO}, v33, 8, v{LO}
    v_lshl_add_u32 v{LO}, v37, 4, v{LO}
    v_mov_b32 v{XR}, v{LO}
    ; XV = ((w&1)*16 + (l&15))*1152 + (l>>4)*16 + (w>>1)*64
    s_and_b32 s{sT0}, s{sWAVE}, 1
    s_lshl_b32 s{sT0}, s{sT0}, 4
    v_add_u32 v{XV}, s{sT0}, v37
    v_mul_u32_u24 v{XV}, 1152, v{XV}
    v_lshrrev_b32 v38, 4, v32
    v_lshl_add_u32 v{XV}, v38, 4, v{XV}
    s_lshr_b32 s{sT0}, s{sWAVE}, 1
    s_lshl_b32 s{sT0}, s{sT0}, 6
    v_add_u32 v{XV}, s{sT0}, v{XV}
    s_lshl_b32 s{sT0}, s{sWAVE}, 1
    v_add_u32 v38, s{sT0}, v34
    v_lshlrev_b32 v39, 1, v35
    v_xor_b32 v38, v38, v39
    v_lshl_add_u32 v39, v33, 3, v35
    v_lshlrev_b32 v39, 8, v39
    v_lshl_add_u32 v39, v38, 5, v39
    v_lshl_add_u32 v{TA}, v36, 3, v39
    v_add_u32 v{TA+1}, 36864, v{TA}
    v_add_u32 v{TA+2}, {2*36864}, v{TA}
    v_add_u32 v{TA+3}, {3*36864}, v{TA}
    s_mul_i32 s94, s{sWAVE}, 36864
    s_lshl_b32 s95, s{sH}, 8
    s_lshl_b32 s{sT0}, s{sWAVE}, 17
    s_add_u32 s95, s95, s{sT0}
    s_waitcnt lgkmcnt(0)
    ''')
    def reads(m, c):
        out = []
        for i in range(4):
            w = wq(m, 4*c+i); k, lo = w[0], int(w[2:w.index(':')])
            for rh in range(2):
                out.append(f'ds_read_b64_tr_b16 {k}[{lo+2*rh}:{lo+2*rh+1}], v{TA+i} offset:{c*4096 + rh*1024}')
        return out
    stage_weights(a, 'Q', [f's[{x}:{x+3}]' for x in (sA, sB, sC)], reads, 'qkv', 0, TMPB, [95, 96, 94])
    def xdma():
        for i in range(9):
            a(f's_add_u32 m0, s{sBUF}, {4096*i - 128*i}')
            a(f'buffer_load_dwordx4 v{XV}, s[{sX}:{sX+3}], s{sXO} offen offset:{128*i} lds')
    a(f'''
    s_lshl_b32 s{sT0}, s{sH}, 2
    s_add_u32 s{sT0}, s{sT0}, s{sWAVE}          ; 4h+w
    s_lshl_b32 s{sKV}, s{sT0}, 12
    s_mul_i32 s{sT1}, s{sJ}, {KV_SEG}
    s_add_u32 s{sKV}, s{sKV}, s{sT1}
    s_add_u32 s{sKV}, s{sKV}, {WS_KV}
    s_lshl_b32 s{sQ}, s{sT0}, 11
    s_mul_i32 s{sT1}, s{sJ}, {QS_SEG}
    s_add_u32 s{sQ}, s{sQ}, s{sT1}
    s_add_u32 s{sQ}, s{sQ}, {WS_Q}
    s_lshl_b32 s{sFL}, s{sT0}, 8
    s_lshl_b32 s{sT1}, s{sJ}, 2
    s_add_u32 s{sFL}, s{sFL}, s{sT1}
    s_add_u32 s{sFL}, s{sFL}, {WS_KVF}
    s_mov_b32 s{sFLP}, {SOOB}
    s_mul_i32 s{sXO}, s{sJ}, 36864
    s_lshl_b32 s{sBUF}, s{sWAVE}, 10
    s_mov_b32 s{sIT}, 0
    v_mov_b32 v5, 0
    ''')
    pstamp(a, prof, 0)
    xdma()
    a('s_waitcnt vmcnt(0)')
    a('Q_loop:')
    a('s_barrier')
    a(f's_xor_b32 s{sBUF}, s{sBUF}, 0x10000')
    a(f's_add_u32 s{sXO}, s{sXO}, {4*36864}')
    def xrd(t): return f'ds_read_b128 {vr(XF+4*(t%4))}, v{XR} offset:{(t>>1)*2048 + (t&1)*512}'
    for t in range(3): a(xrd(t))
    xdma()
    for t in range(36):
        if t+3 < 36: a(xrd(t+3))
        a(f's_waitcnt lgkmcnt({min(3, 35-t)})')
        x = vr(XF+4*(t%4))
        a(mf32(ACC[0], wq(0,t), x, t == 0))
        a(mf32(ACC[1], wq(1,t), x, t == 0))
        a(mf32(ACC[2], x, wq(2,t), t == 0))
        if t == 18:
            a(f'''
            s_waitcnt vmcnt(9)
            s_mov_b64 exec, 1
            buffer_store_dword v{TAGV}, v5, {srd}, s{sFLP} offen sc1
            s_mov_b64 exec, -1
            ''')
    a(f'v_xor_b32 v{XR}, 0x10000, v{XR}')
    for m, (so, off) in enumerate(((sQ, 0), (sKV, 0), (sKV, 2048))):
        r = ACC[m]
        for (d, x) in ((0,0),(1,2),(2,8),(3,10),(4,4),(5,6),(6,12),(7,14)):
            a(cvt(r+d, r+x, r+x+1))
        a(f'buffer_store_dwordx4 {vr(r)}, v{LO}, {srd}, s{so} offen offset:{off} sc1')
        a(f'buffer_store_dwordx4 {vr(r+4)}, v{LO}, {srd}, s{so} offen offset:{off+512} sc1')
    a(f'''
    s_mov_b32 s{sFLP}, s{sFL}
    s_add_u32 s{sFL}, s{sFL}, 16
    s_add_u32 s{sKV}, s{sKV}, {4*KV_SEG}
    s_add_u32 s{sQ}, s{sQ}, {4*QS_SEG}
    s_add_u32 s{sIT}, s{sIT}, 1
    s_cmp_lt_u32 s{sIT}, 16
    s_waitcnt vmcnt(6)
    s_cbranch_scc1 Q_loop
    s_waitcnt vmcnt(0)
    s_mov_b64 exec, 1
    buffer_store_dword v{TAGV}, v5, {srd}, s{sFLP} offen sc1
    s_mov_b64 exec, -1
    ''')
    gen_attn(a, prof)
    a(f's_branch {next_label}')

def pstamp(a, prof, i):
    if prof:
        a(f'''
        s_memrealtime s[98:99]
        s_lshl_b32 s100, s{sXCC}, 5
        s_add_u32 s100, s100, s{sRANK}
        s_lshl_b32 s100, s100, 5
        s_add_u32 s100, s100, {WS_PROF + 0x10000 + 4*i}
        s_waitcnt lgkmcnt(0)
        v_mov_b32 v14, s98
        v_mov_b32 v15, 0
        buffer_store_dword v14, v15, {SRD_WS}, s100 offen
        ''')

def gen_attn(a, prof):
    srd = SRD_WS
    QF, KF, VF, SX, ML, SM, PX, PM = 80, 112, 144, 152, 168, 188, 204, 212
    KA, VA, OA = ACC[1], ACC[2], ACC[0]
    L16, MWA, MRA, KWA, OLO, T0, T1, T2 = 6, 7, 8, 9, 10, 12, 13, 14
    sMSK = 28
    sMH, sO, sOF, sC, sRT = 60, 61, 62, 64, 63
    sKW = 66
    sQW = 70
    LM, LK = 0, 16384
    pstamp(a, prof, 1)
    a(f'''
    s_waitcnt vmcnt(0)
    s_barrier
    v_and_b32 v{T0}, 63, v0
    v_lshlrev_b32 v{L16}, 4, v{T0}
    ; MWA = (l>>4)*128 + (l&7)*16 + ((l>>3)&1)*8 + w*2304
    v_lshrrev_b32 v{T1}, 4, v{T0}
    v_lshlrev_b32 v{MWA}, 7, v{T1}
    v_and_b32 v{T1}, 7, v{T0}
    v_lshl_add_u32 v{MWA}, v{T1}, 4, v{MWA}
    v_bfe_u32 v{T2}, v{T0}, 3, 1
    v_lshl_add_u32 v{MWA}, v{T2}, 3, v{MWA}
    s_mul_i32 s{sT0}, s{sWAVE}, 2304
    v_add_u32 v{MWA}, s{sT0}, v{MWA}
    v_lshrrev_b32 v{T2}, 5, v{T0}
    v_lshlrev_b32 v{MRA}, 7, v{T2}
    v_lshl_add_u32 v{MRA}, v{T1}, 4, v{MRA}
    s_lshl_b32 s{sT0}, s{sWAVE}, 9
    v_add_u32 v{KWA}, s{sT0}, v{MRA}
    v_bfe_u32 v{T1}, v{T0}, 4, 1
    v_lshlrev_b32 v{OLO}, 17, v{T1}
    v_lshl_add_u32 v{OLO}, v{T2}, 8, v{OLO}
    v_and_b32 v{T1}, 15, v{T0}
    v_lshl_add_u32 v{OLO}, v{T1}, 4, v{OLO}
    v_and_b32 v{T1}, 31, v{T0}
    v_lshlrev_b32 v{T2}, 2, v{T2}
    v_sub_u32 v{T1}, v{T1}, v{T2}
    s_mov_b32 s{sC}, 0x3e0293ee
    s_mov_b32 s{sC+1}, 0x3e0293ee
    s_mov_b32 s{sRT}, 0
    ''')
    for r in range(16): a(f'v_cmp_le_i32 s[{sMSK+2*r}:{sMSK+2*r+1}], {8*(r>>2)+(r&3)}, v{T1}')
    a(f'''
    s_mul_i32 s{sKW}, s{sJ}, {KV_SEG}
    s_lshl_b32 s{sT0}, s{sH}, 14
    s_add_u32 s{sKW}, s{sKW}, s{sT0}
    s_add_u32 s{sKW}, s{sKW}, {WS_KV}
    s_mul_i32 s{sQW}, s{sJ}, {QS_SEG}
    s_lshl_b32 s{sT0}, s{sH}, 13
    s_add_u32 s{sQW}, s{sQW}, s{sT0}
    s_add_u32 s{sQW}, s{sQW}, {WS_Q}
    s_mul_i32 s{sMH}, s{sJ}, {MH_STRIDE}
    s_mul_i32 s{sT0}, s{sWAVE}, 4608
    s_add_u32 s{sMH}, s{sMH}, s{sT0}
    s_add_u32 s{sMH}, s{sMH}, {WS_MH}
    s_lshl_b32 s{sT0}, s{sH}, 2
    s_add_u32 s{sT0}, s{sT0}, s{sWAVE}
    s_lshl_b32 s{sO}, s{sT0}, 10
    s_lshl_b32 s{sT1}, s{sJ}, 18
    s_add_u32 s{sO}, s{sO}, s{sT1}
    s_add_u32 s{sO}, s{sO}, {WS_O}
    s_lshl_b32 s{sOF}, s{sT0}, 6
    s_lshl_b32 s{sT1}, s{sJ}, 13
    s_add_u32 s{sOF}, s{sOF}, s{sT1}
    s_add_u32 s{sOF}, s{sOF}, {WS_OF}
    s_mov_b32 s{sIT}, 0
A_loop:
    ''')
    for w in range(1, 4):
        a(f's_add_u32 s{sKW+w}, s{sKW}, {4096*w}')
    a(f's_add_u32 s{sQW+1}, s{sQW}, 4096')
    a(f's_lshl_b32 s{sT0}, s{sWAVE}, 12\ns_add_u32 s{sT0}, s{sT0}, s{sKW}')
    for k in range(8):
        w, p = k>>1, k&1
        a(f'buffer_load_dwordx4 {vr(QF+4*k)}, v{LO}, {srd}, s{sQW+(w>>1)} offen offset:{(w&1)*2048 + p*512} sc1')
        a(f'buffer_load_dwordx4 {vr(KF+4*k)}, v{LO}, {srd}, s{sKW+w} offen offset:{p*512} sc1')
    for p in range(2):
        a(f'buffer_load_dwordx4 {vr(VF+4*p)}, v{LO}, {srd}, s{sT0} offen offset:{2048+p*512} sc1')
    for k in range(8):
        a(f's_waitcnt vmcnt({2 + 2*(7-k)})')
        a(mf32(SX, vr(KF+4*k), vr(QF+4*k), k == 0))
    a(f'''
A_lp:
    s_mov_b64 exec, 1
    buffer_load_dword v{ML+2}, v{L16}, {srd}, s{sMH} offen offset:{4096+31*16+8} sc1
    s_waitcnt vmcnt(0)
    v_cmp_ne_u32 vcc, v{TAGV}, v{ML+2}
    s_mov_b64 exec, -1
    s_add_u32 s{sRT}, s{sRT}, 1
    s_cmp_gt_u32 s{sRT}, 0x80000
    s_cbranch_scc1 A_fp
    s_cbranch_vccz A_fp
    s_sleep 4
    s_branch A_lp
A_fp:
    ''')
    for i in range(4): a(f'buffer_load_dwordx4 {vr(ML+4*i)}, v{L16}, {srd}, s{sMH} offen offset:{1024*i} sc1')
    a(f'''
    v_mov_b32 v{ML+18}, v{TAGV}
    s_add_u32 s{sT0}, s{sMH}, 4096
    s_mov_b32 exec_hi, 0
    buffer_load_dwordx4 {vr(ML+16)}, v{L16}, {srd}, s{sT0} offen sc1
    s_mov_b64 exec, -1
    s_waitcnt vmcnt(0)
    v_xor_b32 v{T0}, v{TAGV}, v{ML+2}
    v_xor_b32 v{T1}, v{TAGV}, v{ML+6}
    v_xor_b32 v{T2}, v{TAGV}, v{ML+10}
    v_or3_b32 v{T0}, v{T0}, v{T1}, v{T2}
    v_xor_b32 v{T1}, v{TAGV}, v{ML+14}
    v_xor_b32 v{T2}, v{TAGV}, v{ML+18}
    v_or3_b32 v{T0}, v{T0}, v{T1}, v{T2}
    v_cmp_ne_u32 vcc, 0, v{T0}
    s_add_u32 s{sRT}, s{sRT}, 1
    s_cmp_gt_u32 s{sRT}, 0x80000
    s_cbranch_scc1 A_fd
    s_cbranch_vccnz A_fp
A_fd:
    ''')
    for i in range(4): a(f'ds_write_b64 v{MWA}, {vr(ML+4*i,2)} offset:{LM+512*i}')
    a(f'''
    s_mov_b32 exec_hi, 0
    ds_write_b64 v{MWA}, {vr(ML+16,2)} offset:{LM+2048}
    s_mov_b64 exec, -1
    v_mov_b32 v{T2}, 0xff800000
    ''')
    for r in range(16): a(f'v_cndmask_b32 v{SX+r}, v{T2}, v{SX+r}, s[{sMSK+2*r}:{sMSK+2*r+1}]')
    a('s_waitcnt lgkmcnt(0)\ns_barrier')
    def xrd(t): return f'ds_read_b128 {vr(XF+4*(t%4))}, v{MRA} offset:{LM+t*256}'
    for t in range(3): a(xrd(t))
    for t in range(36):
        if t+3 < 36: a(xrd(t+3))
        a(f's_waitcnt lgkmcnt({min(3, 35-t)})')
        x = vr(XF+4*(t%4))
        a(mf32(KA, wq(1,t), x, t == 0))
        a(mf32(VA, x, wq(2,t), t == 0))
    a(f'v_max3_f32 v{T0}, v{SX}, v{SX+1}, v{SX+2}')
    for r in range(3, 15, 2): a(f'v_max3_f32 v{T0}, v{T0}, v{SX+r}, v{SX+r+1}')
    a(f'v_max_f32 v{T0}, v{T0}, v{SX+15}')
    for (d, x) in ((0,0),(1,2),(2,8),(3,10),(4,4),(5,6),(6,12),(7,14)): a(cvt(KA+d, KA+x, KA+x+1))
    a(f'''
    s_mov_b32 exec_lo, 0xff
    s_mov_b32 exec_hi, 0xff
    ds_write_b128 v{KWA}, {vr(KA)} offset:{LK}
    ds_write_b128 v{KWA}, {vr(KA+4)} offset:{LK+256}
    s_mov_b64 exec, -1
    ''')
    a(cvt(VA, VA, VA+1)); a(cvt(VA+1, VA+2, VA+3))
    a('s_waitcnt lgkmcnt(0)\ns_barrier')
    for k in range(8): a(f'ds_read_b128 {vr(KF+4*k)}, v{MRA} offset:{LK + (k>>1)*512 + (k&1)*256}')
    for k in range(8):
        a(f's_waitcnt lgkmcnt({7-k})')
        a(mf32(SM, vr(KF+4*k), vr(QF+4*k), k == 0))
    a(f'''
    v_max3_f32 v{T0}, v{T0}, v{SM}, v{SM+1}
    v_max3_f32 v{T0}, v{T0}, v{SM+2}, v{SM+3}
    v_mov_b32 v{T1}, v{T0}
    v_permlane32_swap_b32 v{T0}, v{T1}
    v_max_f32 v{T0}, v{T0}, v{T1}
    v_mul_f32 v{T0}, s{sC}, v{T0}
    ''')
    pairs = [SX+2*i for i in range(8)] + [SM, SM+2]
    for r in pairs:
        a(f'v_pk_fma_f32 {vr(r,2)}, {vr(r,2)}, s[{sC}:{sC+1}], {vr(T0,2)} op_sel_hi:[1,1,0] neg_lo:[0,0,1] neg_hi:[0,0,1]')
    for r in pairs: a(f'v_exp_f32 v{r}, v{r}\nv_exp_f32 v{r+1}, v{r+1}')
    SA = SM+4
    a(pkadd(SA, pairs[0], pairs[1]))
    for r in pairs[2:]: a(pkadd(SA, SA, r))
    a(f'''
    v_add_f32 v{T0}, v{SA}, v{SA+1}
    v_mov_b32 v{T1}, v{T0}
    v_permlane32_swap_b32 v{T0}, v{T1}
    v_add_f32 v{T0}, v{T0}, v{T1}
    v_rcp_f32 v{T0}, v{T0}
    ''')
    for r in pairs: a(f'v_pk_mul_f32 {vr(r,2)}, {vr(r,2)}, {vr(T0,2)} op_sel_hi:[1,0]')
    for aa in range(2):
        a(cvt(PX+4*aa, SX+4*aa, SX+4*aa+1)); a(cvt(PX+4*aa+1, SX+4*aa+2, SX+4*aa+3))
        a(cvt(PX+4*aa+2, SX+4*aa+8, SX+4*aa+9)); a(cvt(PX+4*aa+3, SX+4*aa+10, SX+4*aa+11))
    a(cvt(PM, SM, SM+1)); a(cvt(PM+1, SM+2, SM+3))
    a(mf32(OA, vr(VF), vr(PX), True))
    a(mf32(OA, vr(VF+4), vr(PX+4), False))
    a(f'v_mfma_f32_32x32x8_bf16 {vr(OA,16)}, {vr(VA,2)}, {vr(PM,2)}, {vr(OA,16)}')
    for i in range(8): a(cvt(OA+i, OA+2*i, OA+2*i+1))
    a(f'''
    buffer_store_dwordx4 {vr(OA)}, v{OLO}, {srd}, s{sO} offen sc1
    buffer_store_dwordx4 {vr(OA+4)}, v{OLO}, {srd}, s{sO} offen offset:512 sc1
    s_add_u32 s{sKW}, s{sKW}, {4*KV_SEG}
    s_add_u32 s{sQW}, s{sQW}, {4*QS_SEG}
    s_add_u32 s{sMH}, s{sMH}, {4*MH_STRIDE}
    s_add_u32 s{sO}, s{sO}, {4<<18}
    s_add_u32 s{sIT}, s{sIT}, 1
    s_waitcnt vmcnt(0)
    s_mov_b64 exec, 1
    buffer_store_dword v{TAGV}, v5, {srd}, s{sOF} offen sc1
    s_mov_b64 exec, -1
    s_add_u32 s{sOF}, s{sOF}, {4<<13}
    s_cmp_lt_u32 s{sIT}, 16
    s_cbranch_scc1 A_loop
    ''')
    pstamp(a, prof, 2)
```

```python
import sys
from common import *
import chain, qkv, fft, oproj
NAME = 'concat_heads__spectral_gfnet__memory_aug_recurrent_mem_tr__prompt_kernel'
def gen(prof=False, name=NAME):
    a = Asm()
    a('; @launch grid=(256,1,1) block=(256,1,1) lds=163840')
    a('.amdgcn_target "amdgcn-amd-amdhsa--gfx950"\n.text')
    a(kernel_header(name))
    a(f'''
    s_load_dwordx2 s[12:13], s[0:1], {KA_DBG}
    s_load_dwordx2 s[{sWS}:{sWS+1}], s[0:1], {KA_WS}
    s_getreg_b32 s{sXCC}, hwreg(HW_REG_XCC_ID)
    s_mov_b32 s{sWS+2}, {WS_SIZE}
    s_mov_b32 s{sWS+3}, 0x00020000
    ''')
    if prof: a('s_memrealtime s[70:71]')
    a(f'''
    s_and_b32 s{sXCC}, s{sXCC}, 7
    v_lshrrev_b32 v2, 6, v0
    v_mov_b32 v5, {WS_EPOCH}
    s_waitcnt lgkmcnt(0)
    buffer_load_dword v4, v5, {SRD_WS}, 0 offen sc1
    v_readfirstlane_b32 s{sWAVE}, v2
    v_cmp_eq_u32 vcc, 0, v0
    s_and_saveexec_b64 s[14:15], vcc
    s_cbranch_execz L_skip
    s_lshl_b32 s16, s{sXCC}, 2
    v_mov_b32 v1, s16
    v_mov_b32 v2, 1
    global_atomic_add v3, v1, v2, s[12:13] sc0
    v_mov_b32 v1, 0
    s_waitcnt vmcnt(0)
    ds_write_b32 v1, v3
    s_waitcnt lgkmcnt(0)
L_skip:
    s_mov_b64 exec, s[14:15]
    s_barrier
    v_mov_b32 v1, 0
    ds_read_b32 v3, v1
    s_waitcnt vmcnt(0) lgkmcnt(0)
    v_readfirstlane_b32 s{sRANK}, v3
    v_readfirstlane_b32 s{sTAG}, v4
    s_barrier
    s_add_u32 s{sTAG}, s{sTAG}, 1
    s_cmp_ge_u32 s{sRANK}, 32
    s_cbranch_scc1 L_exit
    s_cmp_eq_u32 s{sXCC}, 0
    s_cbranch_scc1 R_chain
    s_cmp_le_u32 s{sXCC}, 4
    s_cbranch_scc1 {'L_exit' if chain.OPT['noqkv'] else 'R_qkv'}
    s_branch {'L_exit' if chain.OPT['nofft'] else 'R_fft'}
L_exit:
    s_endpgm
    ''')
    qkv.gen_qkv(a, 'L_exit', prof)
    chain.gen_chain(a, prof)
    fft.gen_fft(a, prof)
    oproj.gen_oproj(a, prof)
    a('.section .rodata,"a"')
    txt = a.render() + kernel_desc(name)
    for p in a.branch_check(): print('HAZ', p)
    return txt
if __name__ == '__main__':
    def out(n, prof, **kw):
        old = dict(chain.OPT); chain.OPT.update(kw)
        open(f'mb/{n}.s', 'w').write(gen(prof, 'full_kernel')); chain.OPT.update(old)
    out('full', False); out('full_prof', True)
    hdr = ''.join(l for l in open('cdna_kernels/' + NAME[:-7] + '.s.ref') if l.startswith(';') and '@launch' not in l)
    open('cdna_kernels/' + NAME[:-7] + '.s', 'w').write(hdr + gen(False))
    for a in sys.argv[1:]:
        n, kw = a.split(':', 1); out(n, True, **eval(f'dict({kw})'))
```

```python
import re

_REG = re.compile(r'^(v|a|s)(\d+)$')
_RNG = re.compile(r'^(v|a|s)\[(\d+):(\d+)\]$')

def regs_of(op):
    op = op.strip()
    if op.startswith('-'): op = op[1:]
    if op.startswith('abs(') and op.endswith(')'): op = op[4:-1]
    if op.startswith('|') and op.endswith('|'): op = op[1:-1]
    m = _REG.match(op)
    if m: return {(m.group(1), int(m.group(2)))}
    m = _RNG.match(op)
    if m: return {(m.group(1), i) for i in range(int(m.group(2)), int(m.group(3)) + 1)}
    if op in ('vcc', 'exec', 'm0', 'scc'): return {('x', op)}
    if op in ('vcc_lo', 'vcc_hi'): return {('x', 'vcc')}
    if op in ('exec_lo', 'exec_hi'): return {('x', 'exec')}
    return set()

def split_ops(s):
    out, depth, cur = [], 0, ''
    for ch in s:
        if ch in '[(': depth += 1
        if ch in '])': depth -= 1
        if ch == ',' and depth == 0:
            out.append(cur.strip()); cur = ''
        else: cur += ch
    if cur.strip(): out.append(cur.strip())
    return out

TRANS = ('v_exp_f32', 'v_log_f32', 'v_rcp_f32', 'v_rsq_f32', 'v_sqrt_f32', 'v_sin_f32', 'v_cos_f32', 'v_rcp_iflag_f32')

def mfma_passes(mn):
    if '32x32x16' in mn or '32x32x8' in mn or 'smfmac_f32_32x32x32' in mn: return 8
    if '16x16x32' in mn or '16x16x16' in mn or 'smfmac_f32_16x16x64' in mn: return 4
    if '4x4x4' in mn: return 2
    raise ValueError(mn)

class Inst:
    __slots__ = ('text', 'mn', 'kind', 'dst', 'src', 'srcC', 'srcAB', 'states', 'dpp', 'passes', 'wide_store_data')
    def __init__(self, text):
        self.text = text
        t = text.split(';')[0].strip()
        parts = t.split(None, 1)
        mn = parts[0]; rest = parts[1] if len(parts) > 1 else ''
        self.mn = mn
        self.dpp = ('_dpp' in mn) or (' row_' in t) or ('quad_perm' in t)
        ops = split_ops(rest)
        if ops:
            last = ops[-1].split()
            ops[-1] = last[0] if last else ''
        self.dst = set(); self.src = set(); self.srcC = set(); self.srcAB = set()
        self.states = 1; self.passes = 0; self.wide_store_data = set()
        R = [regs_of(o) for o in ops]
        if mn == 's_nop':
            self.kind = 'nop'; self.states = int(rest.strip(), 0) + 1
        elif mn.startswith('v_mfma') :
            self.kind = 'mfma'; self.passes = mfma_passes(mn)
            self.dst = R[0]; self.srcAB = R[1] | R[2]; self.srcC = R[3] if len(R) > 3 else set()
            self.src = self.srcAB | self.srcC
        elif mn.startswith('v_smfmac'):
            self.kind = 'mfma'; self.passes = mfma_passes(mn)
            self.dst = R[0]; self.srcAB = R[1] | R[2] | R[3]; self.srcC = R[0]
            self.src = self.srcAB | self.srcC
        elif mn.startswith('v_cmpx'):
            self.kind = 'valu'; self.dst = R[0] | {('x', 'exec')}; self.src = set().union(*R[1:])
        elif mn.startswith('v_cmp'):
            self.kind = 'valu'; self.dst = R[0]; self.src = set().union(*R[1:])
        elif mn.startswith('v_permlane') and 'swap' in mn:
            self.kind = 'permlane'; self.dst = R[0] | R[1]; self.src = R[0] | R[1]
        elif mn.startswith('v_readfirstlane') or mn.startswith('v_readlane'):
            self.kind = 'readlane'; self.dst = R[0]; self.src = set().union(*R[1:])
        elif mn.startswith('v_writelane'):
            self.kind = 'valu'; self.dst = R[0]; self.src = set().union(*R)
        elif mn.startswith('v_'):
            self.kind = 'trans' if any(mn.startswith(x) for x in TRANS) else 'valu'
            self.dst = R[0]
            if mn.startswith(('v_add_co', 'v_sub_co', 'v_addc_co', 'v_subb_co', 'v_subrev_co', 'v_mad_u64_u32', 'v_div_scale')):
                self.dst = R[0] | R[1]; self.src = set().union(*R[2:])
            else:
                self.src = set().union(*R[1:]) if len(R) > 1 else set()
            if mn.startswith(('v_fmac', 'v_mac', 'v_dot2c', 'v_pk_fmac')) or self.dpp or 'sdwa' in mn:
                self.src |= R[0]
            if mn.startswith('v_cndmask') and len(R) == 3: self.src |= {('x', 'vcc')}
        elif mn.startswith(('buffer_load', 'global_load', 'flat_load')):
            self.kind = 'vmem'
            if ' lds' in t or mn.startswith('global_load_lds'):
                self.src = set().union(*R) | {('x', 'm0')}
                self.kind = 'vmem_lds'
            else:
                self.dst = R[0]; self.src = set().union(*R[1:])
        elif mn.startswith(('buffer_store', 'global_store', 'buffer_atomic', 'global_atomic')):
            self.kind = 'vmem'; self.src = set().union(*R)
            if 'atomic' in mn and ' sc0' in t: self.dst = R[0]
            if 'x4' in mn or 'x3' in mn:
                self.wide_store_data = R[0] if mn.startswith('buffer') else R[1]
        elif mn.startswith(('buffer_wbl2', 'buffer_inv')):
            self.kind = 'vmem'
        elif mn.startswith('ds_'):
            self.kind = 'ds'
            if mn.startswith(('ds_read', 'ds_bpermute', 'ds_permute', 'ds_swizzle')) or '_rtn' in mn:
                self.dst = R[0]; self.src = set().union(*R[1:]) if len(R) > 1 else set()
            else:
                self.src = set().union(*R)
        elif mn.startswith('s_'):
            self.kind = 'salu'
            if mn.startswith(('s_cmp', 's_bitcmp', 's_cbranch', 's_branch', 's_waitcnt', 's_barrier', 's_endpgm', 's_sleep', 's_setprio', 's_setpc')):
                self.src = set().union(*R) if R else set()
            else:
                self.dst = R[0] if R else set(); self.src = set().union(*R[1:]) if len(R) > 1 else set()
                if 'saveexec' in mn: self.dst = self.dst | {('x', 'exec')}
            if mn.startswith(('s_load', 's_buffer_load', 's_memtime', 's_memrealtime', 's_atomic')): self.kind = 'smem'
        else:
            raise ValueError('unknown instr: ' + text)

VALUISH = ('valu', 'trans', 'permlane', 'readlane')
XDL_D_TO_OTHER = {2: 5, 4: 8, 8: 12, 16: 20}
XDL_D_TO_C_OVERLAP = {2: 4, 4: 6, 8: 10, 16: 18}
XDL_C_WAR = {2: 1, 4: 3, 8: 7, 16: 15}

def need(p, c):
    n = 0
    pv = {r for r in p.dst if r[0] in 'va'}
    ps = {r for r in p.dst if r[0] == 's' or r == ('x', 'vcc')}
    if p.kind == 'mfma':
        if c.kind == 'mfma':
            if p.dst & c.srcAB: n = max(n, XDL_D_TO_OTHER[p.passes])
            if p.dst & c.srcC:
                if p.dst == c.srcC and p.passes == c.passes: n = max(n, 2 if p.passes == 2 else 0)
                else: n = max(n, XDL_D_TO_C_OVERLAP[p.passes])
            elif p.dst & c.dst: n = max(n, XDL_D_TO_C_OVERLAP[p.passes])
        elif c.kind in VALUISH or c.kind in ('vmem', 'vmem_lds', 'ds'):
            if p.dst & (c.src | c.dst): n = max(n, XDL_D_TO_OTHER[p.passes])
        if c.kind in VALUISH and (p.srcC & c.dst): n = max(n, XDL_C_WAR[p.passes])
    if p.kind in VALUISH:
        if c.kind == 'mfma' and pv & c.src: n = max(n, 2)
        if c.kind == 'mfma' and ('x', 'exec') in p.dst: n = max(n, 4)
        if c.dpp and pv & c.src: n = max(n, 2)
        if c.dpp and ('x', 'exec') in p.dst: n = max(n, 5)
        if c.kind == 'permlane' and pv & c.src: n = max(n, 2)
        if c.kind == 'permlane' and ('x', 'exec') in p.dst: n = max(n, 4)
        if c.kind == 'readlane' and pv & c.src: n = max(n, 1)
        if c.kind == 'readlane' and ('x', 'exec') in p.dst: n = max(n, 4)
        if c.kind == 'readlane' and ps & c.src: n = max(n, 4)
        if c.kind in VALUISH and ps & c.src: n = max(n, 2)
        if c.kind in ('vmem', 'vmem_lds') and ps & c.src: n = max(n, 5)
        if c.kind == 'salu' and ps & c.src: n = max(n, 1)
        if p.kind == 'trans' and c.kind in VALUISH + ('mfma',) and pv & c.src: n = max(n, 1)
        if ('sdwa' in p.mn or 'op_sel' in p.text) and c.kind in VALUISH and pv & (c.src | c.dst): n = max(n, 1)
    if p.kind == 'salu' and ('x', 'm0') in p.dst and c.kind == 'vmem_lds': n = max(n, 1)
    if p.wide_store_data and c.kind in VALUISH + ('mfma',) and p.wide_store_data & c.dst: n = max(n, 2)
    if p.wide_store_data and c.kind in ('vmem', 'ds') and p.wide_store_data & c.dst: n = max(n, 1)
    return n

class Asm:
    def __init__(self):
        self.items = []
        self.uid = 0
        self.mfma_time = True
    def __call__(self, text):
        for line in text.strip('\n').split('\n'):
            s = line.strip()
            if not s: continue
            if s.startswith(';') or s.startswith('.') and not s.endswith(':'):
                self.items.append(s)
            elif s.split(';')[0].strip().endswith(':'):
                self.items.append(s)
            else:
                self.items.append(Inst(s))
    def label(self, base='L'):
        self.uid += 1
        return f'{base}_{self.uid}'
    def render(self):
        out = []
        win = []
        clk = 0; pipe_free = 0
        for it in self.items:
            if isinstance(it, str):
                out.append(it)
                if it.split(';')[0].strip().endswith(':'): pipe_free = 0
                continue
            t_issue = max(clk, pipe_free) if it.kind == 'mfma' else clk
            req = 0
            for p, d, tp in win:
                have = d
                if p.kind == 'mfma' and self.mfma_time: have = max(d, (t_issue - tp)//4 - 1)
                r = need(p, it) - have
                if r > req: req = r
            while req > 0:
                k = min(req, 16)
                if it.kind == 'mfma' and self.mfma_time:
                    pass
                out.append(f'    s_nop {k-1}   ; auto')
                win = [(p, d + k, tp) for p, d, tp in win]
                clk += 4*k
                req -= k
                t_issue = max(clk, pipe_free) if it.kind == 'mfma' else clk
                req = 0
                for p, d, tp in win:
                    have = d
                    if p.kind == 'mfma' and self.mfma_time: have = max(d, (t_issue - tp)//4 - 1)
                    req = max(req, need(p, it) - have)
            out.append('    ' + it.text)
            if it.kind == 'mfma': pipe_free = t_issue + 4*it.passes
            clk = t_issue + 4*it.states
            win = [(p, d + it.states, tp) for p, d, tp in win if d + it.states < 24]
            win.append((it, 0, t_issue))
        return '\n'.join(out) + '\n'
    def branch_check(self):
        lab = {}
        for i, it in enumerate(self.items):
            if isinstance(it, str) and it.split(';')[0].strip().endswith(':'):
                lab[it.split(';')[0].strip()[:-1]] = i
        probs = []
        for i, it in enumerate(self.items):
            if isinstance(it, Inst) and (it.mn.startswith('s_cbranch') or it.mn == 's_branch'):
                tgt = it.text.split(';')[0].split()[-1]
                if tgt not in lab: continue
                win = []; d = 0; j = i
                while j >= 0 and d < 24:
                    x = self.items[j]
                    if isinstance(x, Inst):
                        win.append((x, d)); d += x.states
                    j -= 1
                j = lab[tgt]; d2 = 0
                while j < len(self.items) and d2 < 24:
                    x = self.items[j]
                    if isinstance(x, Inst):
                        for p, dp in win:
                            if need(p, x) > dp + d2:
                                probs.append(f'branch {it.text} : {p.text} -> {x.text} need {need(p,x)} have {dp+d2}')
                        d2 += x.states
                        if x.mn in ('s_branch', 's_endpgm', 's_setpc_b64'): break
                    j += 1
        return probs

def kernel_header(name):
    return f""".globl {name}
.p2align 8
.type {name},@function
{name}:
"""

def kernel_desc(name, vgpr=512, sgpr=102, accum=256, kernarg=104):
    return f""".p2align 6
.amdhsa_kernel {name}
  .amdhsa_next_free_vgpr {vgpr}
  .amdhsa_next_free_sgpr {sgpr}
  .amdhsa_accum_offset {accum}
  .amdhsa_group_segment_fixed_size 0
  .amdhsa_kernarg_size {kernarg}
  .amdhsa_user_sgpr_count 2
  .amdhsa_user_sgpr_kernarg_segment_ptr 1
  .amdhsa_system_sgpr_workgroup_id_x 1
.end_amdhsa_kernel
"""
```

```python
from asmlib import *
import layouts as L

WS_PB   = 0
PB_STRIDE = 0x80000
WS_MB   = 0x100000
MB_STRIDE = 0x4000
WS_KV   = 0x1000000
KV_SEG  = 32*16384
WS_MH   = 0x300000
WS_WF   = 0x5000000
WS_WO   = 0x6000000
WS_PROF = 0x7000000
WS_SIZE = 0x10000000
OOB = 0x7ff00000

LDS_SC  = 0
LDS_OB  = 5120
LDS_DUMMY = 7168
LDS_WV  = 8192
LDS_WO  = 16384

L16, PBST, MBST, SCW, MW, MR, OW, WOA, IDX, ORD, T0, T1 = range(12)
SEL, SEL2, PUBR = 12, 16, 18
def AF(c): return 20 + 4*(c % 7)
Q0, K0, Q1, K1, VA0, VA1 = 48, 52, 56, 60, 64, 68
KX, VX = 72, 80
def vr(b, n=4): return f'v[{b}:{b+n-1}]'

def wreg(tile, c):
    idx = tile*9 + c
    if idx == 53: return None
    if idx < 32: return f'a[{8*idx}:{8*idx+7}]'
    b = 88 + 8*(idx-32)
    return f'v[{b}:{b+7}]'
ACC = [Q0, K0, Q1, K1, VA0, VA1]

sWS = 8
sW, sH, sSTEP, sTMP, sTMP2, sTO = 12, 13, 14, 15, 16, 17
sMBRD, sMBWR, sMBNX = 18, 19, 20
sPBR = 22
sKV, sMH = 23, 25
sRED = 26
sMLO, sMHI = 28, 30
sMG = 32
sC = 34
sRT = 37
sWV = 38
sMB4, sMB8 = 39, 21
sPROF = 40
sPBW = 52
sT = 62

def smf(acc, a, b): return f'v_smfmac_f32_16x16x64_bf16 {vr(acc)}, {vr(a)}, {b}, v{IDX}'
def mfma(d, a, b, c=None):
    return f'v_mfma_f32_16x16x32_bf16 {vr(d)}, {vr(a)}, {vr(b)}, {vr(c) if c is not None else 0}'
def cvt(d, x, y): return f'v_cvt_pk_bf16_f32 v{d}, v{x}, v{y}'
def pkadd(d, x, y): return f'v_pk_add_f32 {vr(d,2)}, {vr(x,2)}, {vr(y,2)}'

class Prof:
    def __init__(self, a, on): self.a = a; self.on = (on is True); self.st = (on == 'stamp'); self.n = 0; self.k = 0; self.names = []
    def stamp(self, name):
        if self.st:
            assert self.k < 13
            self.a(f's_memtime s[{76+2*self.k}:{77+2*self.k}]'); self.k += 1; self.names.append(name)
    def start(self):
        if self.on: self.a(f's_memtime s[{sT}:{sT+1}]\ns_waitcnt lgkmcnt(0)')
        self.n = 0
    def mark(self):
        if self.on:
            self.a(f's_memtime s[{sT+2}:{sT+3}]\ns_waitcnt lgkmcnt(0)\ns_sub_u32 s{sT+1}, s{sT+2}, s{sT}\ns_add_u32 s{sPROF+self.n}, s{sPROF+self.n}, s{sT+1}\ns_mov_b32 s{sT}, s{sT+2}')
        self.n += 1

def consts(a):
    C, G, G1, X, Y = AF(0), AF(0)+1, AF(0)+2, AF(0)+3, AF(1)
    a(f'''
    v_and_b32 v{X}, 63, v0
    v_lshlrev_b32 v{L16}, 4, v{X}
    v_and_b32 v{C}, 15, v{X}              ; c
    v_lshrrev_b32 v{G}, 4, v{X}           ; g
    v_and_b32 v{G1}, 1, v{G}              ; g&1
    v_lshrrev_b32 v{PBST}, 1, v{G}
    v_lshlrev_b32 v{PBST}, 12, v{PBST}
    v_lshl_add_u32 v{PBST}, v{G1}, 6, v{PBST}
    v_lshl_add_u32 v{PBST}, v{C}, 3, v{PBST}
    v_mov_b32 v{Y}, {OOB}
    v_cmp_gt_u32 vcc, 8, v{C}
    v_cndmask_b32 v{PBST}, v{Y}, v{PBST}, vcc
    v_and_b32 v{MBST}, 7, v{C}
    v_lshlrev_b32 v{MBST}, 4, v{MBST}
    v_lshrrev_b32 v{T0}, 3, v{C}           ; hb
    v_lshl_add_u32 v{MR}, v{T0}, 3, v{MBST}       ; (c&7)*16 + hb*8
    v_cmp_gt_u32 vcc, 16, v{X}
    v_cndmask_b32 v{T1}, v{Y}, v{MR}, vcc
    v_lshl_add_u32 v{ORD}, v{G}, 7, v{MBST}
    v_add_u32 v{ORD}, {LDS_OB}, v{ORD}
    v_mov_b32 v{MBST}, v{T1}
    v_lshl_add_u32 v{OW}, v{G}, 7, v{MR}
    s_lshl_b32 s{sTMP}, s{sW}, 9
    s_add_u32 s{sTMP}, s{sTMP}, {LDS_OB}
    v_add_u32 v{OW}, s{sTMP}, v{OW}
    v_lshl_add_u32 v{MR}, v{G1}, 7, v{MR}
    v_add_u32 v{MR}, 1024, v{MR}
    s_mul_i32 s{sTMP}, s{sW}, 1280
    v_add_u32 v{SCW}, s{sTMP}, v{L16}
    v_lshlrev_b32 v{MW}, 7, v{G1}
    v_lshl_add_u32 v{MW}, v{C}, 4, v{MW}
    v_add_u32 v{MW}, s{sTMP}, v{MW}
    v_add_u32 v{MW}, 1024, v{MW}
    s_mul_i32 s{sTMP}, s{sW}, 36864
    s_add_u32 s{sTMP}, s{sTMP}, {LDS_WO}
    v_add_u32 v{WOA}, s{sTMP}, v{L16}
    s_mov_b32 s{sMLO}, 0x00ff00ff
    s_mov_b32 s{sMLO+1}, 0x00ff00ff
    s_mov_b32 s{sMHI}, 0xff00ff00
    s_mov_b32 s{sMHI+1}, 0xff00ff00
    s_mov_b32 s{sMG}, -1
    s_mov_b32 s{sMG+1}, 0
    s_mov_b32 s66, 0
    s_mov_b32 s67, 0x00ff00ff
    s_mov_b32 s{sC}, 0x3e0293ee            ; 128^-0.5 * log2(e) = 0.12751743
    s_mov_b32 s{sC+1}, 0x3e0293ee
    s_lshl_b32 s{sWV}, s{sW}, 11
    s_add_u32 s{sWV}, s{sWV}, {LDS_WV}
    ''')
    a(f'''
    v_and_b32 v{SEL}, 7, v{C}
    v_lshlrev_b32 v{SEL+1}, 2, v{G1}
    v_sub_u32 v{SEL}, v{SEL}, v{SEL+1}
    v_lshrrev_b32 v{SEL+1}, 3, v{C}
    v_lshlrev_b32 v{SEL+1}, 2, v{SEL+1}
    v_cmp_gt_u32 vcc, 4, v{SEL}
    v_add_u32 v{SEL}, v{SEL}, v{SEL+1}
    v_cndmask_b32 v{T1}, 15, v{SEL}, vcc
    ''')
    def onehot(base, ereg, n=4):
        for i in range(n):
            a(f'''
            v_mov_b32 v{base+i}, 0
            v_mov_b32 v{Y}, 0x3f80
            v_cmp_eq_u32 vcc, {2*i}, v{ereg}
            v_cndmask_b32 v{base+i}, v{base+i}, v{Y}, vcc
            v_mov_b32 v{Y}, 0x3f800000
            v_cmp_eq_u32 vcc, {2*i+1}, v{ereg}
            v_cndmask_b32 v{base+i}, v{base+i}, v{Y}, vcc
            ''')
    onehot(SEL, T1)
    onehot(SEL2, C, 2)
    a(f'''
    v_mov_b32 v{IDX}, 0x4444
    v_mov_b32 v{Y}, 0xeeee
    v_cmp_gt_u32 vcc, 8, v{C}
    v_cndmask_b32 v{IDX}, v{Y}, v{IDX}, vcc
    ''')

OPT = dict(NE=40, NM=64, kvs=KV_SEG, ring=1, lgap=2, egap=0, first='sc1', wow=(0,), pub=1, nocheck=0, nl_none=1, nl_late=1, estart=(6,3))
sVW = 19
sOOB = 68
sPBE, sKIND, sPBO, sMBO = 24, 27, 36, 61
def gen_step(a, ST, LD, prof, tag):
    srd = f's[{sWS}:{sWS+3}]'
    P = Prof(a, prof)
    ool = []
    def memload(c, first=False):
        fl = OPT['first'] if first else LD
        return f'buffer_load_dwordx4 {vr(AF(c))}, v{L16}, {srd}, s{sMBRD if c < 4 else (sMB4 if c < 8 else sMB8)} offen offset:{(c % 4)*1024} {fl}'
    LOOP = f'{tag}_loop'; DONE = f'{tag}_done'
    tmo = f's_add_u32 s{sRT}, s{sRT}, 1\ns_cmp_gt_u32 s{sRT}, 0x100000\ns_cbranch_scc1 {DONE}\n'
    def br(lbl): return f's_cbranch_vccnz {lbl}' if not OPT['nocheck'] else 's_nop 0'
    def check(c, part):
        r = AF(c)
        if part == 0: return f'v_max_u32 v{T0}, v{r}, v{r+2}'
        if part == 1: return f'v_cmp_eq_u32 vcc, -1, v{T0}'
        return br(f'{tag}_rt{c}')
    req = {0: [3, 4], 1: [5], 2: [6], 3: [7], 4: [8]}
    hi = {}
    h = 2; hi[0] = 2
    for c in range(8):
        h = max([h] + req.get(c, [])); hi[c+1] = h
    for c in range(9):
        ool.append(f'{tag}_rt{c}:\n' + f's_add_u32 s{sPROF+c}, s{sPROF+c}, 1\n' + tmo + '\n'.join(memload(x) for x in range(c, hi[c]+1)) +
                   f'\ns_waitcnt vmcnt({hi[c]-c})\n' + '\n'.join(check(c, p) for p in range(3)) + f'\ns_branch {tag}_ok{c}')
    a(f'{LOOP}:')
    P.stamp('top')
    a(f's_waitcnt vmcnt(3)')
    for p in range(3): a(check(0, p))
    a(f'{tag}_ok0:')
    P.stamp('mem0')
    for c in range(9):
        ms = [smf(ACC[t], AF(c), wreg(t, c)) for t in range(6 if c < 2 else 4)]
        if c < 8:
            n = c+1
            rq = list(req.get(c, []))
            if len(rq) == 2:
                a(ms.pop(0)); a(memload(rq.pop(0), True))
            a(ms.pop(0))
            for x in rq: a(memload(x, True))
            a(f's_waitcnt vmcnt({hi[n]-n+(1 if n <= 2 else 0)})'); a(check(n,0)); a(ms.pop(0)); a(check(n,1))
            for m in ms: a(m)
            a(check(n,2))
            a(f'{tag}_ok{n}:')
        else:
            a(ms[0])
            a(f'buffer_load_dwordx4 {vr(VX)}, v{L16}, {srd}, s{sKV} offen offset:2048')
            a(ms[1])
            a(f'buffer_load_dwordx4 {vr(VX+4)}, v{L16}, {srd}, s{sKV} offen offset:3072')
            a(ms[2])
            a(cvt(Q0, Q0, Q0+1))
            a(ms[3])
    P.stamp('qk')
    vq = [(t, c) for c in range(2, 9) for t in (4, 5)]
    WVT = AF(5)
    def vm(n=1):
        for _ in range(n):
            t, c = vq.pop(0)
            w = wreg(t, c)
            if w is None: w = f'v[{WVT}:{WVT+7}]'
            a(smf(ACC[t], AF(c), w))
    a(cvt(Q0+1, Q0+2, Q0+3)); a(cvt(Q0+2, K0, K0+1)); a(cvt(Q0+3, K0+2, K0+3))
    a(cvt(Q1, Q1, Q1+1)); a(cvt(Q1+1, Q1+2, Q1+3))
    a(mfma(K0, Q0, SEL))
    a(cvt(Q1+2, K1, K1+1)); a(cvt(Q1+3, K1+2, K1+3))
    a(f's_add_u32 s{sTMP}, s{sKV}, {OPT["kvs"]}')
    a(f's_add_u32 s{sVW}, s{sTMP}, 2048')
    a(mfma(K1, Q1, SEL))
    a(f's_add_u32 s{sVW+1}, s{sTMP}, 3072')
    a(f's_add_u32 s{sSTEP}, s{sSTEP}, 1')
    U = Q0
    a(cvt(U, K0, K0+1)); a(cvt(U+1, K0+2, K0+3))
    vm(1)
    a(cvt(U+2, K1, K1+1)); a(cvt(U+3, K1+2, K1+3))
    TX0, TX1, TM = K0, Q1, K1
    a(f'v_add_u32 v{T1}, s{sWV}, v{L16}')
    a('s_nop 0')
    a(mfma(TX0, KX, U)); a(mfma(TX1, KX+4, U)); a(mfma(TM, U, U))
    P.stamp('S')
    for r in range(4):
        a(f'v_mov_b32_dpp v{TX0+r}, v{TX1+r} row_ror:8 row_mask:0xf bank_mask:0xc')
    a(f'ds_write_b128 v{SCW}, {vr(TX0)} offset:{LDS_SC}')
    a(f's_mov_b64 exec, s[66:67]')
    a(f'ds_write_b128 v{MW}, {vr(TM)} offset:{LDS_SC}')
    a(f's_mov_b64 exec, -1')
    RS = TX1
    a(f'v_mov_b64 {vr(RS,2)}, -1\nv_mov_b64 {vr(RS+2,2)}, -1')
    vm(1)
    a(f'buffer_store_dwordx2 {vr(RS,2)}, v{MBST}, {srd}, s{sMBO} offen {ST}')
    for i in range(4):
        vm(1)
        a(f'buffer_store_dwordx4 {vr(RS)}, v{L16}, {srd}, s{sPBO} offen offset:{i*1024} {ST}')
    P.stamp('wr')
    a(f's_waitcnt lgkmcnt(0)')
    a('s_barrier')
    P.stamp('bar1')
    RD = AF(2)
    a(f'ds_read_b128 {vr(RD)}, v{L16} offset:{LDS_SC}')
    a(f'ds_read_b128 {vr(RD+4)}, v{L16} offset:{LDS_SC+1280}')
    vm(1)
    a(f'ds_read_b128 {vr(RD+8)}, v{L16} offset:{LDS_SC+2560}')
    a(f'ds_read_b128 {vr(TX0)}, v{L16} offset:{LDS_SC+3840}')
    vm(1)
    MRD = Q1
    for w in range(4):
        a(f'ds_read_b64 {vr(MRD+2*w,2)}, v{MR} offset:{LDS_SC+1280*w}')
        if w % 2: vm(1)
    assert len(vq) == 4
    a(f'ds_read_b128 {vr(WVT)}, v{T1}')
    a(f'ds_read_b128 {vr(WVT+4)}, v{T1} offset:1024')
    vm(1)
    a(f'buffer_load_dwordx4 {vr(KX)}, v{L16}, {srd}, s{sTMP} offen')
    a(f'buffer_load_dwordx4 {vr(KX+4)}, v{L16}, {srd}, s{sTMP} offen offset:1024')
    a('s_waitcnt lgkmcnt(8)')
    a(pkadd(RD, RD, RD+4)); a(pkadd(RD+2, RD+2, RD+6))
    a('s_waitcnt lgkmcnt(6)')
    a(pkadd(TX0, TX0, RD+8)); a(pkadd(TX0+2, TX0+2, RD+10))
    a('s_waitcnt lgkmcnt(2)')
    a(pkadd(MRD, MRD, MRD+2)); a(pkadd(MRD+4, MRD+4, MRD+6))
    SX = RD; SM = MRD
    a(pkadd(SX, SX, TX0)); a(pkadd(SX+2, SX+2, TX0+2)); a(pkadd(SM, SM, MRD+4))
    MX = T0
    a(f'v_max3_f32 v{MX}, v{SX}, v{SX+1}, v{SX+2}')
    a(f'v_max3_f32 v{MX}, v{MX}, v{SX+3}, v{SM}')
    a(f'v_max_f32 v{MX}, v{MX}, v{SM+1}')
    P.stamp('adds')
    def woread(i, buf): a(f'ds_read_b128 {vr(buf)}, v{WOA} offset:{i*1024}')
    WB = [AF(3), AF(4), VX, VX+4, AF(0), VA0, VA1, AF(2), K1]
    vm(1)
    a(f'buffer_load_dwordx4 v{L16}, {srd}, s{sVW} offen lds')
    a(f'v_max_f32_dpp v{MX}, v{MX}, v{MX} row_ror:8 row_mask:0xf bank_mask:0xf')
    a(f'v_mov_b32 v{T1}, v{MX}')
    vm(1)
    a(f'buffer_load_dwordx4 v{L16}, {srd}, s{sVW+1} offen lds')
    a('s_waitcnt lgkmcnt(0)')
    a(f'v_permlane16_swap_b32 v{MX}, v{T1}')
    a(f'v_max_f32 v{MX}, v{MX}, v{T1}')
    a(f'v_mov_b32 v{T1}, v{MX}')
    vm(1)
    a(f'buffer_store_dwordx2 {vr(PUBR,2)}, v{MBST}, {srd}, s{sMH} offen sc1')
    woread(0, WB[0])
    a(f'v_permlane32_swap_b32 v{MX}, v{T1}')
    a(f'v_max_f32 v{MX}, v{MX}, v{T1}')
    a(f'v_mul_f32 v{MX}, s{sC}, v{MX}')
    for r in (SX, SX+2, SM):
        a(f'v_pk_fma_f32 {vr(r,2)}, {vr(r,2)}, s[{sC}:{sC+1}], {vr(MX,2)} op_sel_hi:[1,1,0] neg_lo:[0,0,1] neg_hi:[0,0,1]')
    vals = [SX, SX+1, SX+2, SX+3, SM, SM+1]
    for r in vals: a(f'v_exp_f32 v{r}, v{r}')
    assert not vq
    PR = TX0; PM = K1; VM = U
    a(cvt(PR, SX, SX+1)); a(cvt(PR+1, SX+2, SX+3)); a(cvt(PM, SM, SM+1))
    a(f'v_mov_b32_dpp v{PR+2}, v{PR} row_ror:8 row_mask:0xf bank_mask:0xf')
    a(f'v_mov_b32_dpp v{PR+3}, v{PR+1} row_ror:8 row_mask:0xf bank_mask:0xf')
    a(f'v_mov_b32_dpp v{PM+1}, v{PM} row_ror:8 row_mask:0xf bank_mask:0xf')
    P.stamp('smax')
    a('s_waitcnt vmcnt(10)')
    PD = [AF(5), AF(6)]
    SUM = T0
    a(mfma(PD[0], VX, PR))
    a(cvt(VM, VA0, VA0+1)); a(cvt(VM+1, VA0+2, VA0+3))
    a(mfma(PD[1], VX+4, PR))
    a(cvt(VM+2, VA1+2, VA1+3)); a(cvt(VM+3, VA1, VA1+1))
    a(f'v_mfma_f32_16x16x16_bf16 {vr(PD[0])}, {vr(VM,2)}, {vr(PM,2)}, {vr(PD[0])}')
    a(f'v_add_f32 v{T1}, v{SM}, v{SM+1}')
    a(pkadd(SX, SX, SX+2))
    a(f'v_mfma_f32_16x16x16_bf16 {vr(PD[1])}, {vr(VM+2,2)}, {vr(PM,2)}, {vr(PD[1])}')
    a(f'v_cndmask_b32 v{T1}, 0, v{T1}, s[{sMG}:{sMG+1}]')
    a(f'v_add_f32 v{SUM}, v{SX}, v{SX+1}')
    a(f'v_add_f32 v{SUM}, v{SUM}, v{T1}')
    woread(1, WB[1]); woread(2, WB[2])
    a(f'v_add_f32_dpp v{SUM}, v{SUM}, v{SUM} row_ror:8 row_mask:0xf bank_mask:0xf')
    a(f'v_mov_b32 v{T1}, v{SUM}')
    for r in range(2): a(f'v_mov_b32_dpp v{PD[0]+r}, v{PD[1]+r} quad_perm:[0,1,2,3] row_mask:0xf bank_mask:0xc')
    a(f'v_permlane16_swap_b32 v{SUM}, v{T1}')
    a(f'v_add_f32 v{SUM}, v{SUM}, v{T1}')
    a(f'v_mov_b32 v{T1}, v{SUM}')
    for r in range(2,4): a(f'v_mov_b32_dpp v{PD[0]+r}, v{PD[1]+r} quad_perm:[0,1,2,3] row_mask:0xf bank_mask:0xc')
    a(f'v_permlane32_swap_b32 v{SUM}, v{T1}')
    a(f'v_add_f32 v{SUM}, v{SUM}, v{T1}')
    a(f'v_rcp_f32 v{SUM}, v{SUM}')
    O = PD[0]
    woread(3, WB[3])
    for r in (0, 2): a(f'v_pk_mul_f32 {vr(O+r,2)}, {vr(O+r,2)}, {vr(SUM,2)} op_sel_hi:[1,0]')
    a(cvt(O, O, O+1)); a(cvt(O+1, O+2, O+3))
    a(f'ds_write_b64 v{OW}, {vr(O,2)}')
    P.stamp('pv')
    for i in range(4, 9): woread(i, WB[i])
    a('s_waitcnt lgkmcnt(5)')
    a('s_barrier')
    P.stamp('bar2')
    OA = [AF(5), AF(6), AF(1), Q1]
    for u in range(4): a(f'ds_read_b128 {vr(OA[u])}, v{ORD} offset:{u*512}')
    a(f'v_lshrrev_b32 v{T1}, 1, v{L16}')
    a(f"""
    s_add_u32 s{sMBRD}, s{sMBRD}, {MB_STRIDE}
    s_add_u32 s{sMBO}, s{sMBO}, {MB_STRIDE}
    s_and_b32 s{sMBRD}, s{sMBRD}, {0xfffcffff if OPT['ring'] else 0xffffffff}
    s_and_b32 s{sMBO}, s{sMBO}, {0xfffcffff if OPT['ring'] else 0xffffffff}
    s_add_u32 s{sMB4}, s{sMBRD}, 4096
    s_add_u32 s{sMB8}, s{sMBRD}, 8192
    s_add_u32 s{sKV}, s{sKV}, {OPT['kvs']}
    s_add_u32 s{sMH}, s{sMH}, {MB_STRIDE}
    s_add_u32 s{sTMP}, s{sRED}, s{sMBRD}
    s_mov_b32 s{sPBO}, s{sPBR}
    """)
    NB = 9
    issued = NB
    DD = [U, TX0]
    q = [4,5,6,7,8,'o0','o1','o2','o3']
    vmq = []
    def need(ids):
        idx = max([q.index(x) for x in ids if x in q], default=-1)
        if idx >= 0:
            a(f's_waitcnt lgkmcnt({min(len(q)-1-idx, 15)})')
            del q[:idx+1]
    def post(c, k):
        d = DD[c % 2]
        if k == 0: a(cvt(d, d, d+1))
        if k == 1: a(cvt(d+1, d+2, d+3))
        if k == 2:
            a(f'buffer_store_dwordx2 {vr(d,2)}, v{PBST}, {srd}, s{sPBW+c} offen {ST}'); vmq.append('st')
    ec, eu = OPT['estart']
    R = [AF(3), AF(4), VX, VX+4]
    def rload(i, so):
        return (f'buffer_load_dwordx2 {vr(R[i],2)}, v{T1}, {srd}, s{so} offen offset:{i*1024} {LD}\n'
                f'buffer_load_dwordx2 {vr(R[i]+2,2)}, v{T1}, {srd}, s{so} offen offset:{i*1024+512} {LD}')
    ne = 0
    for c in range(9):
        d = DD[c % 2]
        for u in range(4):
            i = 4*c+u
            if c == 0: need([f'o{u}'])
            elif u in OPT['wow']: need(list(range(i, 4*c+min([x for x in OPT['wow'] if x > u]+[4]))))
            a(mfma(d, WB[i % NB], OA[u], None if u == 0 else d))
            if issued < 36 and c > 0:
                woread(issued, WB[issued % NB]); q.append(issued); issued += 1
            if i == 4*ec+eu+3:
                a(f's_cmp_lg_u32 s{sKIND}, 1\ns_cbranch_scc1 {tag}_noe')
                for ne in range(4): a(rload(ne, sPBR)); vmq.append('x'); vmq.append(f'r{ne}')
                a(f'{tag}_noe:')
            if c >= 2 and u >= 1:
                post(c-1, u-1)
        if c == 0:
            for _ in range(4):
                woread(issued, WB[issued % NB]); q.append(issued); issued += 1
            for k in range(3): post(0, k)
            P.stamp('wo0')
    S2 = OA[0]
    a(f'v_mov_b64 {vr(S2,2)}, {vr(SEL2,2)}\nv_mov_b64 {vr(S2+2,2)}, {vr(SEL2,2)}')
    for c in range(4): a(f's_xor_b32 s{sPBW+c}, s{sPBW+c}, {PB_STRIDE}')
    for k in range(3): post(8, k)
    P.stamp('wo')
    RDa = AF(1)
    def zblock():
        for r in range(Q0, VA1+4, 2): a(f'v_mov_b64 {vr(r,2)}, 0')
        for c in range(4, 9): a(f's_xor_b32 s{sPBW+c}, s{sPBW+c}, {PB_STRIDE}')
    def reduce(young, lbl, m3, out=None):
        o = out or a
        for i in range(4):
            o(f's_waitcnt vmcnt({young[i]})')
            if i == 0 and m3 == 1: o(mem3)
            o(mfma(RDa, S2, R[i], None if i == 0 else RDa))
        o('s_nop 7')
        o(f'{lbl}_c:')
        o(f'v_cmp_u_f32 vcc, v{RDa}, v{RDa}')
        o(cvt(PUBR, RDa, RDa+1)); o(cvt(PUBR+1, RDa+2, RDa+3))
        o(br(f'{lbl}_rt'))
        o(f'buffer_store_dwordx2 {vr(PUBR,2)}, v{MBST}, {srd}, s{sTMP} offen {ST}')
        ool.append(f'{lbl}_rt:\n' + f's_add_u32 s{sPROF+9+m3}, s{sPROF+9+m3}, 1\n' + tmo + '\n'.join(rload(i, sPBR) for i in range(4)) + '\n' + (mem3 + '\n' if m3 else '') +
                   '\n'.join(f's_waitcnt vmcnt({6-2*i+(3 if m3 else 0)})\n' + mfma(RDa, S2, R[i], None if i == 0 else RDa) for i in range(4)) +
                   f'\ns_nop 7\ns_branch {lbl}_c')
    assert all(r not in range(Q0, VA1+4) for r in R) or True
    mem3 = '\n'.join(memload(c, True) for c in range(3))
    RDa = AF(5+1)
    a(f's_cmp_eq_u32 s{sKIND}, 1')
    a(f's_cbranch_scc0 {tag}_k0')
    reduce([len(vmq)-1-vmq.index(f'r{i}') for i in range(4)], f'{tag}_re', 0)
    zblock()
    for i in range(OPT['egap']): a('s_nop 15')
    a(mem3)
    a(f'buffer_store_dword v{T0}, v{MBST}, {srd}, s{sOOB} offen')
    a(f'{tag}_adv:')
    P.stamp('red')
    global STAMPS; STAMPS = P.names
    a(f"""
    s_xor_b32 s{sPBR}, s{sPBR}, {PB_STRIDE}
    s_cmp_lt_u32 s{sSTEP}, 64
    s_cbranch_scc1 {LOOP}
    s_branch {DONE}
    """)
    a(f'{tag}_k0:')
    a(f's_cmp_eq_u32 s{sKIND}, 2')
    a(f's_cbranch_scc0 {tag}_k1')
    for i in range(4): a(rload(i, sPBR))
    zblock()
    reduce([6,4+3,2+3,0+3], f'{tag}_rm', 1)
    a(f's_branch {tag}_adv')
    a(f'{tag}_k1:')
    zblock()
    a(f's_cmp_eq_u32 s{sKIND}, 0')
    a(f's_cbranch_scc1 {tag}_k2')
    for i in range(4): a(rload(i, sPBR))
    for i in range(OPT['lgap']): a('s_nop 15')
    a(mem3)
    reduce([9,7,5,3], f'{tag}_rl', 2)
    a(f's_branch {tag}_adv')
    a(f'{tag}_k2:')
    for i in range(OPT['nl_none']):
        a(memload(2)); a('s_waitcnt vmcnt(0)')
    a(mem3)
    a(f'buffer_store_dword v{T0}, v{MBST}, {srd}, s{sOOB} offen')
    a(f's_branch {tag}_adv')
    for o in ool: a(o)
    a(f'{DONE}:')
    print('R regs', R)

def init_sgprs(a):
    srd = f's[{sWS}:{sWS+3}]'
    a(f'''
    s_mov_b32 s{sSTEP}, 0
    s_mov_b32 m0, {LDS_DUMMY}
    s_mov_b32 s{sRT}, 0
    s_mov_b32 s{sOOB}, 0x7f000000
    s_mov_b32 s{sMBRD}, {WS_MB}
    s_mov_b32 s{sMB4}, {WS_MB+4096}
    s_mov_b32 s{sMB8}, {WS_MB+8192}
    s_lshl_b32 s{sTMP}, s{sH}, 7
    s_lshl_b32 s{sTMP2}, s{sW}, 13
    s_add_u32 s{sPBW}, s{sTMP}, s{sTMP2}
    ''')
    for c in range(1, 9): a(f's_add_u32 s{sPBW+c}, s{sPBW}, {c*32768}')
    a(f'''
    s_lshl_b32 s{sTMP}, s{sH}, 2
    s_add_u32 s{sTMP}, s{sTMP}, s{sW}
    s_lshl_b32 s{sKV}, s{sTMP}, 12
    s_add_u32 s{sKV}, s{sKV}, {WS_KV}
    s_lshl_b32 s{sTMP}, s{sW}, 5
    s_add_u32 s{sTMP}, s{sTMP}, s{sH}
    s_mov_b32 s{sKIND}, 0
    s_cmp_lt_u32 s{sTMP}, 72
    s_cselect_b32 s{sKIND}, 3, s{sKIND}
    s_cmp_lt_u32 s{sTMP}, {OPT['NM']}
    s_cselect_b32 s{sKIND}, 2, s{sKIND}
    s_cmp_lt_u32 s{sTMP}, {OPT['NE']}
    s_cselect_b32 s{sKIND}, 1, s{sKIND}
    s_lshl_b32 s{sPBR}, s{sTMP}, 12
    s_lshl_b32 s{sRED}, s{sTMP}, 7
    s_cmp_eq_u32 s{sKIND}, 0
    s_cselect_b32 s{sRED}, 0x7f000000, s{sRED}
    s_xor_b32 s{sPBO}, s{sPBR}, {PB_STRIDE}
    s_add_u32 s{sMBO}, s{sRED}, {WS_MB+2*MB_STRIDE}
    s_add_u32 s{sMH}, s{sRED}, {WS_MH}
    buffer_load_dwordx4 {vr(KX)}, v{L16}, {srd}, s{sKV} offen
    buffer_load_dwordx4 {vr(KX+4)}, v{L16}, {srd}, s{sKV} offen offset:1024
    ''')
    for r in range(Q0, VA1+4, 2): a(f'v_mov_b64 {vr(r,2)}, 0')
    for c in range(3): a(f'buffer_load_dwordx4 {vr(AF(c))}, v{L16}, {srd}, s{sMBRD} offen offset:{c*1024} sc1')
    a(f'buffer_store_dword v{T0}, v{MBST}, {srd}, s{sOOB} offen')

def gen_proto(prof):
    a = Asm()
    srd = f's[{sWS}:{sWS+3}]'
    a('; @launch grid=(256,1,1) block=(256,1,1) lds=163840')
    a('.amdgcn_target "amdgcn-amd-amdhsa--gfx950"\n.text')
    a(kernel_header('chain_kernel'))
    a(f'''
    s_load_dwordx2 s[4:5], s[0:1], 0      ; counters
    s_load_dwordx2 s[6:7], s[0:1], 8      ; ws
    s_getreg_b32 s{sTMP2}, hwreg(HW_REG_XCC_ID)
    s_memrealtime s[70:71]
    s_waitcnt lgkmcnt(0)
    s_and_b32 s{sTMP2}, s{sTMP2}, 15
    s_cmp_lg_u32 s{sTMP2}, 0
    s_cbranch_scc1 L_exit
    v_cmp_eq_u32 vcc, 0, v0
    s_and_saveexec_b64 s[14:15], vcc
    s_cbranch_execz L_skip
    v_mov_b32 v1, 0
    v_mov_b32 v2, 1
    global_atomic_add v3, v1, v2, s[4:5] sc0
    s_waitcnt vmcnt(0)
    ds_write_b32 v1, v3
    s_waitcnt lgkmcnt(0)
L_skip:
    s_mov_b64 exec, s[14:15]
    s_barrier
    v_mov_b32 v1, 0
    ds_read_b32 v3, v1
    v_lshrrev_b32 v2, 6, v0
    s_waitcnt lgkmcnt(0)
    v_readfirstlane_b32 s{sH}, v3
    v_readfirstlane_b32 s{sW}, v2
    s_barrier
    s_mov_b32 s{sWS}, s6
    s_mov_b32 s{sWS+1}, s7
    s_mov_b32 s{sWS+2}, {WS_SIZE}
    s_mov_b32 s{sWS+3}, 0x00020000
    ''')
    consts(a)
    a(f'''
    s_lshl_b32 s{sTMP}, s{sH}, 2
    s_add_u32 s{sTMP}, s{sTMP}, s{sW}
    s_mul_i32 s{sTMP2}, s{sTMP}, 110592
    s_add_u32 s{sTMP2}, s{sTMP2}, {WS_WF}
    ''')
    n = 0
    for t in range(6):
        for c in range(9):
            w = wreg(t, c)
            if w is None: w = f'v[{AF(0)}:{AF(0)+7}]'
            k, lo = w[0], int(w[2:w.index(':')])
            a(f'buffer_load_dwordx4 {k}[{lo}:{lo+3}], v{L16}, {srd}, s{sTMP2} offen')
            a(f'buffer_load_dwordx4 {k}[{lo+4}:{lo+7}], v{L16}, {srd}, s{sTMP2} offen offset:1024')
            a(f's_add_u32 s{sTMP2}, s{sTMP2}, 2048')
            n += 2
            if n >= 56: a('s_waitcnt vmcnt(56)')
    a(f'''
    s_waitcnt vmcnt(0)
    v_add_u32 v{T1}, s{sWV}, v{L16}
    ds_write_b128 v{T1}, {vr(AF(0))}
    ds_write_b128 v{T1}, {vr(AF(1))} offset:1024
    s_mul_i32 s{sTMP2}, s{sTMP}, 36864
    s_add_u32 s{sTMP2}, s{sTMP2}, {WS_WO}
    s_waitcnt lgkmcnt(0)
    ''')
    for b in range(3):
        for i in range(12):
            a(f'buffer_load_dwordx4 {vr(20+4*i)}, v{L16}, {srd}, s{sTMP2} offen offset:{(i%4)*1024}')
            if i % 4 == 3: a(f's_add_u32 s{sTMP2}, s{sTMP2}, 4096')
        a('s_waitcnt vmcnt(0)')
        for i in range(12):
            a(f'ds_write_b128 v{WOA}, {vr(20+4*i)} offset:{(b*12+i)*1024}')
        a('s_waitcnt lgkmcnt(0)')
    init_sgprs(a)
    for i in range(12): a(f's_mov_b32 s{sPROF+i}, 0')
    a('s_barrier\ns_memrealtime s[72:73]')
    gen_step(a, '', 'sc1', prof, 'F')
    a(f'''
    s_memrealtime s[74:75]
    s_waitcnt vmcnt(0) lgkmcnt(0)
    s_lshl_b32 s{sTMP}, s{sH}, 2
    s_add_u32 s{sTMP}, s{sTMP}, s{sW}
    s_lshl_b32 s{sTMP}, s{sTMP}, 6
    s_add_u32 s{sTMP}, s{sTMP}, {WS_PROF}
    v_mov_b32 v1, 0
    ''')
    for i in range(12):
        a(f'v_mov_b32 v2, s{sPROF+i}\nbuffer_store_dword v2, v1, {srd}, s{sTMP} offen offset:{4*i}')
    a(f's_add_u32 s{sTMP2}, s{sTMP}, 0x10000')
    for i in range(13):
        a(f'v_mov_b32 v2, s{76+2*i}\nbuffer_store_dword v2, v1, {srd}, s{sTMP2} offen offset:{4*i}')
    for i, r in enumerate((70, 72, 74, sRT)):
        a(f'v_mov_b32 v2, s{r}\nbuffer_store_dword v2, v1, {srd}, s{sTMP} offen offset:{48+4*i}')
    a('s_waitcnt vmcnt(0)\nL_exit:\ns_endpgm')
    a('.section .rodata,"a"')
    txt = a.render() + kernel_desc('chain_kernel', kernarg=16)
    for p in a.branch_check(): print('HAZ', p)
    return txt

if __name__ == '__main__':
    import sys
    def out(name, prof, **kw):
        old = dict(OPT); OPT.update(kw)
        open(f'mb/{name}.s', 'w').write(gen_proto(prof))
        OPT.update(old)
    out('st_a', 'stamp'); out('st_b', 'stamp', NE=32, NM=56); out('st_c', 'stamp', NE=24, NM=48, egap=1)
    out('st_d', 'stamp', NE=32, NM=56, egap=2, nl_none=1, lgap=3);
```

```python
from common import *
import layouts as L

LDS_SC  = 0
LDS_OB  = 5120
LDS_GATE = 0
LDS_MEM = 7168
LDS_DUMMY = 5120
LDS_WO  = 16384

L16, PBST, SEL2, SEL2b, MW, MR, OW, WOA, IDX, ORD, T0, T1 = range(12)
SEL, PUB, TAGV, FLG = 12, 16, 18, 19
Q0, K0, Q1, K1, VA0, VA1 = 20, 24, 28, 32, 36, 40
KX, VX = 44, 52
def AQ(i): return 60 + 4*i
def AF(c): return AQ(c % 5)

def wreg(tile, c):
    idx = tile*9 + c
    if idx < 32: return f'a[{8*idx}:{8*idx+7}]'
    b = 80 + 8*(idx-32)
    return f'v[{b}:{b+7}]'
ACC = [Q0, K0, Q1, K1, VA0, VA1]

sW, sH, sSTEP, sTMP, sTMP2, sTO = 12, 13, 14, 15, 16, 17
sMBRD, sMBWR, sMBNX = 18, 19, 20
sPBR = 22
sKV, sMH = 23, 25
sRED = 26
sMLO, sMHI = 28, 30
sMG = 32
sMG2 = 30
sC = 34
sRT = 37
sMW = 38
sMB4, sMB8 = 39, 21
sPROF = 44
sPBW = 52

def smf(acc, a, b): return f'v_smfmac_f32_16x16x64_bf16 {vr(acc)}, {vr(a)}, {b}, v{IDX}'
mfma = mfma16

def consts(a):
    C, G, G1, X, Y, Z = AF(0), AF(0)+1, AF(0)+2, AF(0)+3, AF(1), AF(1)+1
    a(f'''
    v_and_b32 v{X}, 63, v0
    v_lshlrev_b32 v{L16}, 4, v{X}
    v_and_b32 v{C}, 15, v{X}              ; c
    v_lshrrev_b32 v{G}, 4, v{X}           ; g
    v_and_b32 v{G1}, 1, v{G}              ; g&1
    v_lshrrev_b32 v{PBST}, 1, v{G}
    v_lshlrev_b32 v{PBST}, 12, v{PBST}
    v_lshl_add_u32 v{PBST}, v{G1}, 3, v{PBST}
    v_lshl_add_u32 v{PBST}, v{C}, 4, v{PBST}
    v_mov_b32 v{Y}, {OOB}
    v_cmp_gt_u32 vcc, 8, v{C}
    v_cndmask_b32 v{PBST}, v{Y}, v{PBST}, vcc
    v_and_b32 v{Z}, 7, v{C}
    v_lshlrev_b32 v{Z}, 4, v{Z}
    v_lshrrev_b32 v{T0}, 3, v{C}           ; hb
    v_lshl_add_u32 v{MR}, v{T0}, 3, v{Z}       ; (c&7)*16 + hb*8
    v_lshl_add_u32 v{ORD}, v{G}, 7, v{Z}
    v_add_u32 v{ORD}, {LDS_OB}, v{ORD}
    v_lshl_add_u32 v{OW}, v{G}, 7, v{MR}
    s_lshl_b32 s{sTMP}, s{sW}, 9
    s_add_u32 s{sTMP}, s{sTMP}, {LDS_OB}
    v_add_u32 v{OW}, s{sTMP}, v{OW}
    v_lshl_add_u32 v{MR}, v{G1}, 7, v{MR}
    v_add_u32 v{MR}, 1024, v{MR}
    s_mul_i32 s{sTMP}, s{sW}, 1280
    s_mov_b32 s{sSCW}, s{sTMP}
    v_lshlrev_b32 v{MW}, 7, v{G1}
    v_lshl_add_u32 v{MW}, v{C}, 4, v{MW}
    v_add_u32 v{MW}, s{sTMP}, v{MW}
    v_add_u32 v{MW}, 1024, v{MW}
    s_mul_i32 s{sTMP}, s{sW}, 36864
    s_add_u32 s{sTMP}, s{sTMP}, {LDS_WO}
    v_add_u32 v{WOA}, s{sTMP}, v{L16}
    s_mov_b32 s{sMG2}, -1
    s_mov_b32 s{sMG2+1}, 0
    s_mov_b32 s66, 0
    s_mov_b32 s67, 0x00ff00ff
    s_mov_b32 s{sC}, 0x3e0293ee            ; 128^-0.5 * log2(e) = 0.12751743
    s_mov_b32 s{sC+1}, 0x3e0293ee
    ''')
    a(f'''
    v_and_b32 v{SEL}, 7, v{C}
    v_lshlrev_b32 v{SEL+1}, 2, v{G1}
    v_sub_u32 v{SEL}, v{SEL}, v{SEL+1}
    v_lshrrev_b32 v{SEL+1}, 3, v{C}
    v_lshlrev_b32 v{SEL+1}, 2, v{SEL+1}
    v_cmp_gt_u32 vcc, 4, v{SEL}
    v_add_u32 v{SEL}, v{SEL}, v{SEL+1}
    v_cndmask_b32 v{T1}, 15, v{SEL}, vcc
    ''')
    def onehot(base, ereg, n=4):
        for i in range(n):
            a(f'''
            v_mov_b32 v{base+i}, 0
            v_mov_b32 v{Y}, 0x3f80
            v_cmp_eq_u32 vcc, {2*i}, v{ereg}
            v_cndmask_b32 v{base+i}, v{base+i}, v{Y}, vcc
            v_mov_b32 v{Y}, 0x3f800000
            v_cmp_eq_u32 vcc, {2*i+1}, v{ereg}
            v_cndmask_b32 v{base+i}, v{base+i}, v{Y}, vcc
            ''')
    onehot(SEL, T1)
    a(f'v_and_b32 v{T1}, 3, v{C}')
    onehot(SEL2, T1, 2)
    a(f'''
    v_mov_b32 v{IDX}, 0x4444
    v_mov_b32 v{Y}, 0xeeee
    v_cmp_gt_u32 vcc, 8, v{C}
    v_cndmask_b32 v{IDX}, v{Y}, v{IDX}, vcc
    ''')

OPT = dict(fs=0, pf=1, noqkv=0, qorder=(0,1,2), kv0=0, nofl=0, f3gap=3, l2pos=0, rsh=2, elate=0, e2=0, NQ1=72, q2gap=2, noattn=0, nofft=0, es=0, nopub=0, gate=1, g1=1, g2=2, ez=6, qz=12, qgap=0, ers=5, qs=0, NM=48, egap=2, mgap=4, lgap=1, nocheck=0)
sVW = 19
sOOB = 68
sKIND, sPBO, sMBO = 27, 36, 61
sKVF, sFM = 69, 62
sSCW = 64
sM1, sM2, sM8 = 18, 39, 21
sX = 40
sMW2, sMW3 = 42, 43
sY = 2
sMBW = 24
def gen_step(a, ST, LD, prof, tag):
    srd = SRD_WS
    P = Stamps(a, prof)
    ool = []
    LOOP = f'{tag}_loop'; DONE = f'{tag}_done'
    A4 = AQ(4)
    def cnt(i): return f's_add_u32 s{sPROF+i}, s{sPROF+i}, 1\n' if prof else ''
    def tmo(ok): return f's_add_u32 s{sRT}, s{sRT}, 1\ns_cmp_gt_u32 s{sRT}, 0x100000\ns_cbranch_scc1 {ok}\n'
    def br(lbl): return f's_cbranch_vccnz {lbl}' if not OPT['nocheck'] else 's_nop 0'
    def ld(so): return f'buffer_load_dwordx4 {vr(A4)}, v{L16}, {srd}, s{so} offen {LD}'
    def cmpu(r): return f'v_cmp_u_f32 vcc, v{r}, v{r+2}'
    AD3 = T0
    lda = (f'buffer_load_dwordx4 {vr(VX)}, v{L16}, {srd}, s{sM1} offen {LD}\n'
           f'buffer_load_dwordx4 {vr(VX+4)}, v{L16}, {srd}, s{sM1} offen offset:1024 {LD}')
    book = (f'v_cmp_eq_u32 s[{sFM}:{sFM+1}], v{TAGV}, v{FLG}\n'
            f's_add_u32 s{sTMP}, s{sKV}, {0 if OPT["kv0"] else KV_SEG}\ns_add_u32 s{sSTEP}, s{sSTEP}, 1')
    a(f'{LOOP}:')
    P('top')
    a(lda)
    a(f'v_add_u32 v{T1}, s{sMW}, v{L16}')
    for i in range(OPT['f3gap']): a('s_nop 7')
    a(f'{tag}_la:')
    a(lda)
    a('s_waitcnt vmcnt(3)')
    a(f'v_cmp_u_f32 s[{sX}:{sX+1}], v{VX}, v{VX+2}')
    a(f'ds_write_b128 v{T1}, {vr(VX)}')
    a('s_waitcnt vmcnt(2)')
    a(cmpu(VX+4))
    a(f'ds_write_b128 v{T1}, {vr(VX+4)} offset:1024')
    a(f's_or_b64 vcc, vcc, s[{sX}:{sX+1}]')
    a(br(f'{tag}_rt0'))
    ool.append(f'{tag}_rt0:\n' + cnt(0) + tmo(f'{tag}_ok0') + f's_branch {tag}_la')
    a(f'{tag}_ok0:')
    P('mem0')
    a(book)
    a(f'v_add_u32 v{T1}, s{sMW3}, v{L16}')
    a('s_waitcnt lgkmcnt(0)')
    a('s_barrier')
    def rd(c): return f'ds_read_b128 {vr(AF(c))}, v{L16} offset:{LDS_MEM + 1024*c}'
    def M(c, n): return [smf(ACC[t], AF(c), wreg(t, c)) for t in range(n)]
    def dl(c): return f'buffer_load_dwordx4 {vr(AF(c))}, v{L16}, {srd}, s{sM2} offen offset:{(c-4)*1024} {LD}'
    ldb = f's_mov_b32 exec_hi, 0xffff\nbuffer_load_dwordx4 {vr(VX)}, v{L16}, {srd}, s{sM8} offen {LD}\ns_mov_b32 exec_hi, -1'
    chkb = f's_mov_b32 exec_hi, 0xffff\n{cmpu(VX)}\nds_write_b128 v{T1}, {vr(VX)}\ns_mov_b32 exec_hi, -1'
    for c in range(4): a(rd(c))
    a(dl(4)); a(ldb)
    P('barA')
    a('s_waitcnt lgkmcnt(3)')
    for x in M(0, 6): a(x)
    if OPT['qs']: P('c0')
    m = M(1, 6)
    a('s_waitcnt lgkmcnt(2)')
    a(m[0]); a(dl(5))
    for x in m[1:]: a(x)
    if OPT['qs']: P('c1')
    m = M(2, 6)
    a('s_waitcnt lgkmcnt(1)')
    a(m[0]); a(m[1]); a(m[2])
    a('s_waitcnt vmcnt(1)'); a(chkb); a(m[3]); a(m[4]); a(m[5]); a(br(f'{tag}_rt1'))
    ool.append(f'{tag}_rt1:\n' + cnt(2) + tmo(f'{tag}_ok1') + ldb + '\ns_waitcnt vmcnt(0)\n' + chkb + '\n' + br(f'{tag}_rt1') + f'\ns_branch {tag}_ok1')
    a(f'{tag}_ok1:')
    if OPT['qs']: P('c2')
    m = M(3, 6)
    a('s_waitcnt lgkmcnt(1)')
    a(m[0]); a(cmpu(AF(4))); a(m[1]); a(m[2]); a(br(f'{tag}_rt2'))
    ool.append(f'{tag}_rt2:\n' + cnt(3) + tmo(f'{tag}_ok2') + dl(4) + '\ns_waitcnt vmcnt(0)\n' + cmpu(AF(4)) + '\n' + br(f'{tag}_rt2') + f'\ns_branch {tag}_ok2')
    a(f'{tag}_ok2:')
    a(m[3])
    a('s_waitcnt lgkmcnt(0)')
    a(m[4])
    a('s_barrier')
    if OPT['qs']: P('barB')
    a(rd(6)); a(rd(7)); a(m[5]); a(rd(8))
    if OPT['qs']: P('c3')
    m = M(4, 4)
    a(m[0]); a('s_waitcnt vmcnt(0)'); a(cmpu(AF(5))); a(m[1]); a(f's_bitcmp1_b64 s[{sFM}:{sFM+1}], s{sSTEP}'); a(m[2]); a(br(f'{tag}_rt3'))
    ool.append(f'{tag}_rt3:\n' + cnt(6) + tmo(f'{tag}_t3') + dl(5) + '\ns_waitcnt vmcnt(0)\n' + cmpu(AF(5)) + '\n' + br(f'{tag}_rt3') + f'\n{tag}_t3:\ns_bitcmp1_b64 s[{sFM}:{sFM+1}], s{sSTEP}\ns_branch {tag}_ok3')
    a(f'{tag}_ok3:')
    a(m[3])
    side = [
        f'buffer_load_dwordx4 {vr(VX)}, v{L16}, {srd}, s{sKV} offen offset:2048 sc1',
        f'buffer_load_dwordx2 {vr(VX+4,2)}, v{L16}, {srd}, s{sKV} offen offset:3080 sc1',
        f'buffer_load_dwordx2 {vr(VX+6,2)}, v{L16}, {srd}, s{sKV} offen offset:3072 sc1',
        f's_mov_b32 exec_hi, 0\nbuffer_store_dwordx4 {vr(PUB)}, v{ORD}, {srd}, s{sOOB if OPT["nopub"] else sMH} offen sc1\ns_mov_b32 exec_hi, -1',
        f'v_mov_b64 {vr(T0,2)}, -1',
        f's_mov_b32 exec_hi, 0\nbuffer_store_dwordx2 {vr(T0,2)}, v{PBST}, {srd}, s{sMBO} offen {ST}\ns_mov_b32 exec_hi, -1\nv_lshlrev_b32 v{T1}, {OPT["rsh"]}, v{L16}',
        f'buffer_store_dword v{T0}, v{T1}, {srd}, s{sPBO} offen {ST}\nv_lshrrev_b32 v{T1}, 2, v{L16}',
        f'buffer_load_dword v{FLG}, v{T1}, {srd}, s{sKVF} offen sc1',
    ]
    a(f's_cbranch_scc0 {tag}_fl')
    a(f'{tag}_flok:')
    ool.append(f'{tag}_fl:\n' + tmo(f'{tag}_flok') + f'v_lshrrev_b32 v{T0}, 2, v{L16}\nbuffer_load_dword v{FLG}, v{T0}, {srd}, s{sKVF} offen sc1\ns_waitcnt vmcnt(0)\n'
               f'v_cmp_eq_u32 s[{sFM}:{sFM+1}], v{TAGV}, v{FLG}\ns_nop 1\ns_bitcmp1_b64 s[{sFM}:{sFM+1}], s{sSTEP}\ns_cbranch_scc0 {tag}_fl\ns_branch {tag}_flok')
    for c in range(5, 9):
        m = M(c, 4)
        if c > 5: a(f's_waitcnt lgkmcnt({8-c})')
        for k, x in enumerate(m):
            if c == 8 and k == 3: a(cvt(Q0, Q0, Q0+1))
            a(x)
            if k % 2 == 0 and side: a(side.pop(0))
        if OPT['qs'] and c == 5: P('c5')
    assert not side
    P('qk')
    vq = [(t, c) for c in (5, 6, 7, 4, 8) for t in (4, 5)]
    def vm(n=1):
        for _ in range(n):
            t, c = vq.pop(0); a(smf(ACC[t], AF(c), wreg(t, c)))
    a(cvt(Q0+1, Q0+2, Q0+3)); a(cvt(Q0+2, K0, K0+1)); a(cvt(Q0+3, K0+2, K0+3))
    a(cvt(Q1, Q1, Q1+1)); a(cvt(Q1+1, Q1+2, Q1+3))
    a(mfma(K0, Q0, SEL))
    a(cvt(Q1+2, K1, K1+1)); a(cvt(Q1+3, K1+2, K1+3))
    a(mfma(K1, Q1, SEL))
    U = Q0
    a(cvt(U, K0, K0+1)); a(cvt(U+1, K0+2, K0+3))
    vm(1)
    a(cvt(U+2, K1, K1+1)); a(cvt(U+3, K1+2, K1+3))
    TX0, TX1, TM = K0, Q1, K1
    a(f'v_add_u32 v{T0}, s{sSCW}, v{L16}')
    a(mfma(TX0, KX, U)); a(mfma(TX1, KX+4, U)); a(mfma(TM, U, U))
    if not OPT['qs']: P('S')
    for r in range(4):
        a(f'v_mov_b32_dpp v{TX0+r}, v{TX1+r} row_ror:8 row_mask:0xf bank_mask:0xc')
    a(f'ds_write_b128 v{T0}, {vr(TX0)} offset:{LDS_SC}')
    a(f's_mov_b64 exec, s[66:67]')
    a(f'ds_write_b128 v{MW}, {vr(TM)} offset:{LDS_SC}')
    a(f's_mov_b64 exec, -1')
    vm(1)
    a(f'buffer_load_dwordx4 {vr(KX)}, v{L16}, {srd}, s{sTMP} offen sc1')
    vm(1)
    a(f'buffer_load_dwordx4 {vr(KX+4)}, v{L16}, {srd}, s{sTMP} offen offset:1024 sc1')
    vm(3)
    if not OPT['qs']: P('wr')
    a(f's_waitcnt lgkmcnt(0)')
    a('s_barrier')
    P('bar1')
    RD = AQ(0)
    a(f'ds_read_b128 {vr(RD)}, v{L16} offset:{LDS_SC}')
    a(f'ds_read_b128 {vr(RD+4)}, v{L16} offset:{LDS_SC+1280}')
    vm(1)
    a(f'ds_read_b128 {vr(RD+8)}, v{L16} offset:{LDS_SC+2560}')
    a(f'ds_read_b128 {vr(TX0)}, v{L16} offset:{LDS_SC+3840}')
    vm(1)
    MRD = Q1
    for w in range(4):
        a(f'ds_read_b64 {vr(MRD+2*w,2)}, v{MR} offset:{LDS_SC+1280*w}')
        if w == 1: vm(1)
    vm(1)
    assert not vq
    a('s_waitcnt lgkmcnt(6)')
    a(pkadd(RD, RD, RD+4)); a(pkadd(RD+2, RD+2, RD+6))
    a('s_waitcnt lgkmcnt(4)')
    a(pkadd(TX0, TX0, RD+8)); a(pkadd(TX0+2, TX0+2, RD+10))
    a('s_waitcnt lgkmcnt(0)')
    a(pkadd(MRD, MRD, MRD+2)); a(pkadd(MRD+4, MRD+4, MRD+6))
    SX = RD; SM = MRD
    a(pkadd(SX, SX, TX0)); a(pkadd(SX+2, SX+2, TX0+2)); a(pkadd(SM, SM, MRD+4))
    MX = T0
    a(f'v_max3_f32 v{MX}, v{SX}, v{SX+1}, v{SX+2}')
    a(f'v_max3_f32 v{MX}, v{MX}, v{SX+3}, v{SM}')
    a(f'v_max_f32 v{MX}, v{MX}, v{SM+1}')
    if OPT['es']: P.k += 1; P.names.append('adds')
    elif not OPT['qs']: P('adds')
    def woread(i, buf): a(f'ds_read_b128 {vr(buf)}, v{WOA} offset:{i*1024}')
    WB = [K1, AQ(1), AQ(2), VX, VX+4, VA0, VA1]
    woread(1, WB[1]); woread(2, WB[2])
    a(f'v_max_f32_dpp v{MX}, v{MX}, v{MX} row_ror:8 row_mask:0xf bank_mask:0xf')
    a(f'v_mov_b32 v{T1}, v{MX}')
    VM = U
    a(cvt(VM, VA0, VA0+1)); a(cvt(VM+1, VA0+2, VA0+3))
    a(f'v_permlane16_swap_b32 v{MX}, v{T1}')
    a(f'v_max_f32 v{MX}, v{MX}, v{T1}')
    a(f'v_mov_b32 v{T1}, v{MX}')
    a(cvt(VM+2, VA1+2, VA1+3)); a(cvt(VM+3, VA1, VA1+1))
    a(f'v_permlane32_swap_b32 v{MX}, v{T1}')
    a(f'v_max_f32 v{MX}, v{MX}, v{T1}')
    a(f'v_mul_f32 v{MX}, s{sC}, v{MX}')
    for r in (SX, SX+2, SM):
        a(f'v_pk_fma_f32 {vr(r,2)}, {vr(r,2)}, s[{sC}:{sC+1}], {vr(MX,2)} op_sel_hi:[1,1,0] neg_lo:[0,0,1] neg_hi:[0,0,1]')
    for r in [SX, SX+1, SX+2, SX+3, SM, SM+1]: a(f'v_exp_f32 v{r}, v{r}')
    PR = TX0; PM = K1; VM = U
    a(cvt(PR, SX, SX+1)); a(cvt(PR+1, SX+2, SX+3)); a(cvt(PM, SM, SM+1))
    a(f'v_mov_b32_dpp v{PR+2}, v{PR} row_ror:8 row_mask:0xf bank_mask:0xf')
    a(f'v_mov_b32_dpp v{PR+3}, v{PR+1} row_ror:8 row_mask:0xf bank_mask:0xf')
    a(f'v_mov_b32_dpp v{PM+1}, v{PM} row_ror:8 row_mask:0xf bank_mask:0xf')
    if OPT['es']: P.k += 1; P.names.append('smax')
    elif not OPT['qs']: P('smax')
    a('s_waitcnt vmcnt(6)')
    PD = [AQ(3), AQ(4)]
    SUM = T0
    a(mfma(PD[0], VX, PR))
    a(f'v_add_f32 v{T1}, v{SM}, v{SM+1}')
    a(pkadd(SX, SX, SX+2))
    a(mfma(PD[1], VX+4, PR))
    a(f'v_cndmask_b32 v{T1}, 0, v{T1}, s[{sMG2}:{sMG2+1}]')
    a(f'v_add_f32 v{SUM}, v{SX}, v{SX+1}')
    a(f'v_mfma_f32_16x16x16_bf16 {vr(PD[0])}, {vr(VM,2)}, {vr(PM,2)}, {vr(PD[0])}')
    a(f'v_add_f32 v{SUM}, v{SUM}, v{T1}')
    a(f'v_mfma_f32_16x16x16_bf16 {vr(PD[1])}, {vr(VM+2,2)}, {vr(PM,2)}, {vr(PD[1])}')
    woread(0, WB[0]); woread(3, WB[3])
    a(f'v_add_f32_dpp v{SUM}, v{SUM}, v{SUM} row_ror:8 row_mask:0xf bank_mask:0xf')
    a(f'v_mov_b32 v{T1}, v{SUM}')
    for r in range(2): a(f'v_mov_b32_dpp v{PD[0]+r}, v{PD[1]+r} quad_perm:[0,1,2,3] row_mask:0xf bank_mask:0xc')
    a(f'v_permlane16_swap_b32 v{SUM}, v{T1}')
    a(f'v_add_f32 v{SUM}, v{SUM}, v{T1}')
    a(f'v_mov_b32 v{T1}, v{SUM}')
    for r in range(2,4): a(f'v_mov_b32_dpp v{PD[0]+r}, v{PD[1]+r} quad_perm:[0,1,2,3] row_mask:0xf bank_mask:0xc')
    a(f'v_permlane32_swap_b32 v{SUM}, v{T1}')
    a(f'v_add_f32 v{SUM}, v{SUM}, v{T1}')
    a(f'v_rcp_f32 v{SUM}, v{SUM}')
    O = PD[0]
    a('s_nop 0')
    for r in (0, 2): a(f'v_pk_mul_f32 {vr(O+r,2)}, {vr(O+r,2)}, {vr(SUM,2)} op_sel_hi:[1,0]')
    a(cvt(O, O, O+1)); a(cvt(O+1, O+2, O+3))
    a(f'ds_write_b64 v{OW}, {vr(O,2)}')
    if OPT['es']: P.k += 1; P.names.append('pv')
    else: P('pv')
    for i in range(4, 7): woread(i, WB[i])
    wrap = 0xfffcffff
    a(f"""
    s_add_u32 s{sM1}, s{sM1}, {MB_STRIDE}
    s_and_b32 s{sM1}, s{sM1}, {wrap}
    s_add_u32 s{sM8}, s{sM8}, {MB_STRIDE}
    s_and_b32 s{sM8}, s{sM8}, {wrap}
    s_add_u32 s{sM2}, s{sM2}, {MB_STRIDE}
    s_and_b32 s{sM2}, s{sM2}, {wrap}
    s_add_u32 s{sMBO}, s{sMBO}, {MB_STRIDE}
    s_and_b32 s{sMBO}, s{sMBO}, {wrap}
    """)
    a('s_waitcnt lgkmcnt(3)')
    a('s_barrier')
    if not OPT['qs']: P('bar2')
    if prof:
        a(f's_cmp_lg_u32 s{sSTEP}, 40\ns_cbranch_scc1 {tag}_nd')
        a(f's_lshl_b32 s{sTO}, s{sH}, 2\ns_add_u32 s{sTO}, s{sTO}, s{sW}\ns_lshl_b32 s{sTO}, s{sTO}, 7\ns_add_u32 s{sTO}, s{sTO}, {WS_PROF+0x20000}\ns_waitcnt lgkmcnt(0)\ns_mov_b64 exec, 1')
        for k in range(14): a(f'v_mov_b32 v{T0}, s{P.base+2*k}\nbuffer_store_dword v{T0}, v{L16}, {srd}, s{sTO} offen offset:{4*k}')
        a(f's_mov_b64 exec, -1\n{tag}_nd:')
    OA = [AQ(3), AQ(4), Q1, AQ(0)]
    for u in range(4): a(f'ds_read_b128 {vr(OA[u])}, v{ORD} offset:{u*512}')
    a(f"""
    s_add_u32 s{sMBW}, s{sMBW}, {MB_STRIDE}
    s_and_b32 s{sMBW}, s{sMBW}, {wrap}
    s_add_u32 s{sKV}, s{sKV}, {0 if OPT['kv0'] else KV_SEG}
    s_add_u32 s{sMH}, s{sMH}, {MH_STRIDE}
    s_xor_b32 s{sPBO}, s{sPBO}, {PB_STRIDE}
    s_cmp_eq_u32 s{sKIND}, 1
    """)
    NB = 7
    st = dict(issued=NB)
    DD = [U, TX0]
    q = [4, 5, 6, 'o0', 'o1', 'o2', 'o3']
    R = [AQ(1), AQ(2), VX, VX+4]
    def rload(i, adr=None):
        return f'buffer_load_dwordx4 {vr(R[i])}, v{L16}, {srd}, s{sPBR} offen offset:{i*1024} {LD}'
    def need(o, ids):
        idx = max([q.index(x) for x in ids if x in q], default=-1)
        if idx >= 0:
            o(f's_waitcnt lgkmcnt({min(len(q)-1-idx, 15)})')
            del q[:idx+1]
    def post(o, c, k):
        d = DD[c % 2]
        if k == 0: o(cvt(d, d, d+1))
        if k == 1: o(cvt(d+1, d+2, d+3))
        if k == 2: o(f'buffer_store_dwordx2 {vr(d,2)}, v{PBST}, {srd}, s{sPBW+c} offen {ST}')
    def slot(o, i, early=False):
        c, u = divmod(i, 4)
        d = DD[c % 2]
        if c == 0: need(o, [f'o{u}'])
        elif u % 2 == 0: need(o, [i, i+1])
        o(mfma(d, WB[i % NB], OA[u], None if u == 0 else d))
        if st['issued'] < 36 and c > 0:
            o(f'ds_read_b128 {vr(WB[st["issued"] % NB])}, v{WOA} offset:{st["issued"]*1024}'); q.append(st['issued']); st['issued'] += 1
        if early and 29 <= i <= 32: o(rload(i-29))
        if c >= 2 and u >= 1: post(o, c-1, u-1)
    for i in range(4): slot(a, i)
    for _ in range(4):
        woread(st['issued'], WB[st['issued'] % NB]); q.append(st['issued']); st['issued'] += 1
    for k in range(3): post(a, 0, k)
    if not OPT['qs']: P('wo0')
    for i in range(4, 29): slot(a, i)
    S2 = OA[0]; RDa = OA[3]
    def tail(o, early):
        qs = list(q)
        for i in range(29, 36):
            slot(o, i, early)
            if i == 32: o(f'v_mov_b64 {vr(S2,2)}, 0\nv_mov_b64 {vr(S2+2,2)}, 0')
            if i == 33: o(f'v_mov_b32_dpp v{S2}, v{SEL2} quad_perm:[0,1,2,3] row_mask:0xf bank_mask:0x1')
            if i == 34: o(f'v_mov_b32_dpp v{S2+1}, v{SEL2+1} quad_perm:[0,1,2,3] row_mask:0xf bank_mask:0x1')
            if i == 35: o(f'v_mov_b32_dpp v{S2+2}, v{SEL2} quad_perm:[0,1,2,3] row_mask:0xf bank_mask:0x2\nv_mov_b32_dpp v{S2+3}, v{SEL2+1} quad_perm:[0,1,2,3] row_mask:0xf bank_mask:0x2')
        for c in range(2): o(f's_xor_b32 s{sPBW+c}, s{sPBW+c}, {PB_STRIDE}')
        o(f's_cmp_eq_u32 s{sKIND}, 0')
        for k in range(3): post(o, 8, k)
        q[:] = qs
    def zacc(o, lo=0, hi=12):
        for r in list(range(Q0, VA1+4, 2))[lo:hi]: o(f'v_mov_b64 {vr(r,2)}, 0')
    def xors(o):
        for c in range(2, 9): o(f's_xor_b32 s{sPBW+c}, s{sPBW+c}, {PB_STRIDE}')
    setT1 = f'v_add_u32 v{T1}, s{sMW}, v{L16}'
    def reduce(o, young, lbl, site, mid=None, fail=None):
        for i in range(4):
            o(f's_waitcnt vmcnt({young[i]})')
            if i == 0 and mid: o(mid)
            if OPT['es'] and lbl.endswith('_re') and i in (0, 3): o(f's_memtime s[{P.base+2*(7 if i == 0 else 8)}:{P.base+2*(7 if i == 0 else 8)+1}]')
            o(mfma(RDa, S2, R[i], None if i == 0 else RDa))
        o('s_nop 6')
        o(f'{lbl}_c:')
        o(f'v_cmp_u_f32 vcc, v{RDa}, v{RDa}')
        for r in range(4): o(f'v_add_f32_dpp v{RDa+r}, v{RDa+r}, v{RDa+r} row_ror:8 row_mask:0xf bank_mask:0xf')
        o(cvt(PUB, RDa, RDa+1)); o(cvt(PUB+1, RDa+2, RDa+3))
        o(br(fail or f'{lbl}_rt'))
        o(f'{lbl}_ok:')
        o('s_mov_b32 exec_hi, 0')
        o(f'buffer_store_dwordx2 {vr(PUB,2)}, v{PBST}, {srd}, s{sMBW} offen {ST}')
        o('s_mov_b64 exec, -1')
        if OPT['es'] and lbl.endswith('_re'): o(f's_memtime s[{P.base+18}:{P.base+19}]')
        o(f's_xor_b32 s{sPBR}, s{sPBR}, {PB_STRIDE}')
        o(f's_cmp_eq_u32 s{sSTEP}, 63')
        o(f's_cbranch_scc1 {DONE}')
        if not fail: ool.append(f'{lbl}_rt:\n' + cnt(site) + tmo(f'{lbl}_ok') + '\n'.join(rload(i) for i in range(4)) + '\n' +
                   '\n'.join(f's_waitcnt vmcnt({3-i})\n' + mfma(RDa, S2, R[i], None if i == 0 else RDa) for i in range(4)) +
                   f'\ns_nop 7\ns_branch {lbl}_c')
    a('s_nop 0')
    a(f's_cbranch_scc0 {tag}_ne')
    tail(a, True)
    P('wo')
    def gate(lbl):
        a(f'{lbl}:')
        a(f'ds_read_b32 v{T0}, v{L16} offset:{LDS_GATE}')
        a(tmo(f'{lbl}d'))
        a('s_waitcnt lgkmcnt(0)')
        a(f'v_cmp_ne_u32 vcc, s{sSTEP}, v{T0}')
        a(f's_cbranch_vccnz {lbl}')
        a(f'{lbl}d:')
    rl4 = '\n'.join(rload(i) for i in range(4))
    def dense_retry(first, lbl, okl, cl, site):
        ool.append((f'{first}:\n' + rl4 + '\ns_nop 15\ns_nop 7\n' if first else '') + f'{lbl}:\n' + cnt(site) + tmo(okl) + rl4 + '\n' +
                   '\n'.join(f's_waitcnt vmcnt({7-i})\n' + mfma(RDa, S2, R[i], None if i == 0 else RDa) for i in range(4)) +
                   f'\ns_nop 7\nv_cmp_u_f32 vcc, v{RDa}, v{RDa}\ns_cbranch_vccnz {lbl}\ns_branch {cl}')
    gwr = f'v_mov_b32 v{T0}, s{sSTEP}\nds_write_b32 v{L16}, v{T0} offset:{LDS_GATE}'
    a(rl4)
    reduce(a, [10, 9, 8, 6], f'{tag}_re', 1, fail=f'{tag}_ef2')
    dense_retry(None, f'{tag}_ef2', f'{tag}_re_ok', f'{tag}_re_c', 1)
    a(gwr)
    zacc(a); xors(a)
    P('red')
    a(f's_cmp_lg_u32 s{sW}, 0')
    a(f's_cbranch_scc1 {LOOP}')
    a('s_waitcnt vmcnt(1)')
    a(f's_branch {tag}_ok0')
    kwo = P.names.index('wo') if prof else 0
    def PS(k):
        if prof: a(f's_memtime s[{P.base+2*k}:{P.base+2*k+1}]')
    a(f'{tag}_ne:')
    tail(a, False)
    PS(kwo)
    a(f's_cbranch_scc1 {tag}_k2')
    zacc(a, 0, OPT['qz'])
    a(rl4)
    zacc(a, OPT['qz'], 12); xors(a)
    for i in range(OPT['lgap']): a('s_nop 7')
    a(f'{tag}_l2:')
    a(rl4)
    reduce(a, [7, 6, 5, 4], f'{tag}_rl', 5, fail=f'{tag}_lf')
    ool.append(f'{tag}_lf:\n' + cnt(5) + tmo(f'{tag}_rl_ok') + f's_branch {tag}_l2')
    PS(kwo+1); PS(0)
    a('s_waitcnt vmcnt(1)')
    a(f's_branch {tag}_ok0')
    a(f'{tag}_k2:')
    a(f's_cmp_eq_u32 s{sSTEP}, 63')
    a(f's_cbranch_scc1 {tag}_end')
    zacc(a); xors(a)
    gate(f'{tag}_gate')
    for i in range(OPT['g1']): a('s_nop 7')
    PS(kwo+1)
    a(f's_branch {LOOP}')
    for o in ool: a(o)
    a(f'{DONE}:')

def init_sgprs(a):
    srd = f's[{sWS}:{sWS+3}]'
    a(f'''
    s_mov_b32 s{sSTEP}, 0
    s_mov_b32 s{sRT}, 0
    s_mov_b32 s{sOOB}, 0x7f000000
    s_and_b32 s{sM1}, s{sW}, 1
    s_lshl_b32 s{sM1}, s{sM1}, 11
    s_add_u32 s{sMW}, s{sM1}, {LDS_MEM}
    s_add_u32 s{sM1}, s{sM1}, {WS_MB+1024}
    s_mov_b32 s{sM2}, {WS_MB+1024+4096}
    s_mul_i32 s{sM8}, s{sW}, 768
    s_add_u32 s{sMW3}, s{sM8}, {LDS_MEM+6144}
    s_add_u32 s{sM8}, s{sM8}, {WS_MB+1024+6144}
    s_lshl_b32 s{sTMP}, s{sH}, 7
    s_lshl_b32 s{sTMP2}, s{sW}, 13
    s_add_u32 s{sPBW}, s{sTMP}, s{sTMP2}
    s_add_u32 s{sPBW}, s{sPBW}, {WS_PB}
    ''')
    for c in range(1, 9): a(f's_add_u32 s{sPBW+c}, s{sPBW}, {c*32768}')
    a(f'''
    s_lshl_b32 s{sTMP}, s{sH}, 2
    s_add_u32 s{sTMP}, s{sTMP}, s{sW}
    s_lshl_b32 s{sKV}, s{sTMP}, 12
    s_add_u32 s{sKV}, s{sKV}, {WS_KV}
    s_lshl_b32 s{sKVF}, s{sTMP}, 8
    s_add_u32 s{sKVF}, s{sKVF}, {WS_KVF}
    s_mov_b32 s{sKIND}, 0
    s_mov_b32 s{sTMP}, 72
    s_cmp_eq_u32 s{sW}, 0
    s_cselect_b32 s{sKIND}, 1, s{sKIND}
    s_cselect_b32 s{sTMP}, s{sH}, s{sTMP}
    s_lshl_b32 s{sTMP2}, s{sW}, 5
    s_add_u32 s{sTMP2}, s{sTMP2}, s{sH}
    s_sub_u32 s{sTMP2}, s{sTMP2}, 64
    s_cmp_lt_u32 s{sTMP2}, 8
    s_cselect_b32 s{sKIND}, 1, s{sKIND}
    s_add_u32 s{sTMP2}, s{sH}, 32
    s_cmp_eq_u32 s{sW}, 2
    s_cselect_b32 s{sTO}, s{sTMP2}, 99
    s_cmp_lt_u32 s{sTO}, 40
    s_cselect_b32 s{sTMP}, s{sTO}, s{sTMP}
    s_cmp_lg_u32 s{sW}, 1
    s_cbranch_scc1 C_kd
    s_add_u32 s{sTMP}, s{sH}, 40
    s_cmp_lt_u32 s{sTMP}, {OPT['NM']}
    s_cselect_b32 s{sKIND}, 2, 3
C_kd:
    s_lshl_b32 s{sPBR}, s{sTMP}, 12
    s_add_u32 s{sPBR}, s{sPBR}, {WS_PB}
    s_lshl_b32 s{sRED}, s{sTMP}, 7
    s_add_u32 s{sRED}, s{sRED}, 1024
    s_cmp_eq_u32 s{sKIND}, 0
    s_cselect_b32 s{sRED}, 0x7f000000, s{sRED}
    s_lshl_b32 s{sMH}, s{sTMP}, 8
    s_cmp_eq_u32 s{sKIND}, 0
    s_cselect_b32 s{sMH}, 0x7f000000, s{sMH}
    s_add_u32 s{sMH}, s{sMH}, {WS_MH - LDS_OB}
    s_add_u32 s{sMBO}, s{sRED}, {WS_MB+2*MB_STRIDE}
    s_add_u32 s{sMBW}, s{sRED}, {WS_MB}
    s_xor_b32 s{sPBO}, s{sPBR}, {PB_STRIDE}
    s_cmp_eq_u32 s{sKIND}, 0
    s_cselect_b32 s{sPBO}, 0x7f000000, s{sPBO}
    ''')

def gen_chain(a, prof=False):
    srd = SRD_WS
    sA, sB, sC3, sD = 72, 76, 80, 84
    sM0 = 88
    from qkv import pstamp
    a('R_chain:')
    pstamp(a, prof, 0, 76)
    make_srd(a, sA, KA_WQ, 576*8192); make_srd(a, sB, KA_WK, 576*8192); make_srd(a, sC3, KA_WV, 576*8192)
    make_srd(a, sD, KA_WO, 4096*1152); make_srd(a, sM0, KA_MEM0, 9216)
    a(f's_load_dwordx2 s[92:93], s[0:1], {KA_DBG}')
    TA = 44; TMPB = 20; WOV = 26
    a(f'''
    s_mov_b32 s{sW}, s{sWAVE}
    s_mov_b32 s{sH}, s{sRANK}
    s_mul_i32 s{sTMP2}, s{sW}, 36864
    s_add_u32 s94, s{sTMP2}, {LDS_WO}
    s_lshl_b32 s95, s{sH}, 8
    s_lshl_b32 s{sTMP}, s{sW}, 17
    s_add_u32 s95, s95, s{sTMP}             ; h*256 + w*16*8192
    s_mul_i32 s97, s{sH}, {128*1152}
    s_lshl_b32 s{sTMP}, s{sW}, 5
    s_add_u32 s97, s97, s{sTMP}             ; h*128*1152 + w*32
    v_and_b32 v28, 63, v0
    s_waitcnt lgkmcnt(0)
    ''')
    def after_issue():
        a(f'''
        v_lshrrev_b32 v29, 4, v28               ; g'
        v_bfe_u32 v30, v28, 2, 2                ; r4
        v_and_b32 v31, 3, v28                   ; c4
        v_and_b32 v32, 1, v30                   ; r4&1
        v_lshrrev_b32 v33, 1, v30               ; r4>>1
        v_and_b32 v34, 1, v29                   ; g'&1
        v_lshl_add_u32 v35, v33, 3, v32
        v_lshl_add_u32 v35, v34, 2, v35         ; row16
        v_lshl_add_u32 v36, v34, 1, v32
        v_lshl_add_u32 v36, v33, 2, v36         ; swz
        s_lshl_b32 s{sTMP}, s{sW}, 1
        v_xor_b32 v36, s{sTMP}, v36
        v_lshlrev_b32 v35, 8, v35
        v_lshl_add_u32 v35, v36, 5, v35
        v_lshl_add_u32 v35, v31, 3, v35
        v_lshrrev_b32 v37, 1, v29
        v_mul_u32_u24 v37, 36864, v37
        v_add_u32 v35, v35, v37
        v_add_u32 v{TA}, {LDS_WO}, v35
        v_xor_b32 v{TA+1}, 32, v{TA}
        v_add_u32 v{TA+2}, {2*36864}, v{TA}
        v_add_u32 v{TA+3}, {2*36864}, v{TA+1}
        v_lshrrev_b32 v{WOV}, 1, v28
        v_mul_u32_u24 v{WOV}, 1152, v{WOV}
        v_and_b32 v38, 1, v28
        v_lshl_add_u32 v{WOV}, v38, 4, v{WOV}
        v_lshrrev_b32 v39, 2, v28
        v_lshlrev_b32 v39, 5, v39
        v_lshl_add_u32 v39, v31, 3, v39
        v_add_u32 v39, s94, v39
        v_and_b32 v70, 7, v28
        v_mul_u32_u24 v70, 1152, v70
        v_lshl_add_u32 v70, v34, 3, v70
        ''')
        consts(a)
        init_sgprs(a)
        a(f'''
        v_mov_b32 v{TAGV}, s{sTAG}
        v_mov_b64 v[72:73], -1
        v_mov_b64 v[74:75], -1
        s_sub_u32 s{sTMP}, s{sRED}, 1024
        s_lshr_b32 s{sTMP}, s{sTMP}, 3
        buffer_load_dwordx2 {vr(PUB,2)}, v70, s[{sM0}:{sM0+3}], s{sTMP} offen
        ''')
        for k in range(2):
            a(f's_add_u32 s{sTMP}, s{sPBR}, {k*PB_STRIDE}')
            for i in range(4): a(f'buffer_store_dwordx4 v[72:75], v{L16}, {srd}, s{sTMP} offen offset:{i*1024}')
        a('s_mov_b32 exec_hi, 0')
        for k in range(1, 4):
            a(f's_add_u32 s{sTMP}, s{sRED}, {WS_MB + k*MB_STRIDE}')
            a(f'buffer_store_dwordx2 v[72:73], v{PBST}, {srd}, s{sTMP} offen')
        a('s_mov_b32 exec_hi, -1')
        return 12
    def reads(m, c):
        out = []
        for t in range(2):
            tile = [0, 1, 4][m] + ([0, 2][t] if m < 2 else t)
            w = wreg(tile, c)
            k, lo = w[0], int(w[2:w.index(':')])
            for hb2 in range(2):
                for rh in range(2):
                    r = lo + 4*hb2 + 2*rh
                    out.append(f'ds_read_b64_tr_b16 {k}[{r}:{r+1}], v{TA+2*hb2+t} offset:{c*4096 + rh*512}')
        return out
    def wo_dma(c):
        for j in range(4):
            a(f's_add_u32 s96, s97, {c*128 + j*32*1152}')
            a(f's_add_u32 m0, s94, {c*4096 + j*1024}')
            a(f'buffer_load_dwordx4 v{WOV}, s[{sD}:{sD+3}], s96 offen lds')
        return 4
    pstamp(a, prof, 1, 76)
    def pr(m, c):
        n = 0
        if c == 8 and prof: pstamp(a, prof, 2+m, 76); n += 1
        if (m, c) == (1, 0):
            a(f's_add_u32 s{sTMP}, s{sRED}, {WS_MB}')
            a(f's_mov_b32 exec_hi, 0\nbuffer_store_dwordx2 {vr(PUB,2)}, v{PBST}, {srd}, s{sTMP} offen')
            for k in range(0, 4):
                a(f's_add_u32 s{sTMP}, s{sRED}, {WS_MB + k*MB_STRIDE}')
                a(f'buffer_load_dwordx2 v[72:73], v{PBST}, {srd}, s{sTMP} offen sc1')
            a('s_mov_b32 exec_hi, -1')
            for k in range(2):
                a(f's_add_u32 s{sTMP}, s{sPBR}, {k*PB_STRIDE}')
                for i in range(4): a(f'buffer_load_dwordx4 v[72:75], v{L16}, {srd}, s{sTMP} offen offset:{i*1024} sc1')
            n += 13
        if (m, c) == (2, 2):
            a(f'''
            s_cmp_lg_u32 s{sW}, 0
            s_cbranch_scc1 C_noat
            s_mov_b64 exec, 1
            v_mov_b32 v70, 64
            v_mov_b32 v71, 1
            global_atomic_add v70, v71, s[92:93]
            s_mov_b64 exec, -1
C_noat:
            ''')
        return n
    cnt = stage_weights(a, 'C', [f's[{x}:{x+3}]' for x in (sA, sB, sC3)], reads, 'chain', LDS_WO, TMPB, [95, 96, 94],
                        extra_dma=wo_dma, after_issue=after_issue, post_read=pr)
    a(f'''
    v_mov_b32 v{T0}, 64
    v_lshrrev_b32 v{T1}, 2, v{L16}
    global_load_dword v76, v{T0}, s[92:93] sc1
    buffer_load_dword v{FLG}, v{T1}, {srd}, s{sKVF} offen sc1
    ''')
    cnt[-1] += 2
    for c in range(9):
        a(f's_waitcnt vmcnt({sum(cnt[27+c+1:]) + (2 if c == 8 else 0)})')
        b = 40 + 16*(c % 2)
        for u in range(4):
            for rh in range(2):
                a(f'ds_read_b64_tr_b16 v[{b+4*u+2*rh}:{b+4*u+2*rh+1}], v39 offset:{c*4096 + u*1024 + rh*512}')
        a('s_waitcnt lgkmcnt(0)')
        for u in range(4):
            a(f'ds_write_b128 v{WOA}, {vr(b+4*u)} offset:{(4*c+u)*1024}')
    a(f'''
    s_waitcnt vmcnt(0)
    s_branch C_wi2
C_wi:
    global_load_dword v76, v{T0}, s[92:93] sc1
    buffer_load_dword v{FLG}, v{T1}, {srd}, s{sKVF} offen sc1
    s_waitcnt vmcnt(0)
C_wi2:
    v_readfirstlane_b32 s{sTMP}, v76
    v_cmp_eq_u32 s[{sFM}:{sFM+1}], v{TAGV}, v{FLG}
    s_add_u32 s{sRT}, s{sRT}, 1
    s_cmp_gt_u32 s{sRT}, 0x100000
    s_cbranch_scc1 C_wfd
    s_cmp_lt_u32 s{sTMP}, 32
    s_cbranch_scc1 C_wi
    s_bitcmp1_b64 s[{sFM}:{sFM+1}], 0
    s_cbranch_scc0 C_wi
C_wfd:
    s_waitcnt lgkmcnt(0)
    buffer_load_dwordx4 {vr(KX)}, v{L16}, {srd}, s{sKV} offen sc1
    buffer_load_dwordx4 {vr(KX+4)}, v{L16}, {srd}, s{sKV} offen offset:1024 sc1
    ''')
    pstamp(a, prof, 5, 76)
    if OPT['noqkv']: a('s_endpgm')
    for r in range(Q0, VA1+4, 2): a(f'v_mov_b64 {vr(r,2)}, 0')
    if prof:
        for i in range(8): a(f's_mov_b32 s{sPROF+i}, 0')
        a('s_memrealtime s[28:29]\ns_memtime s[32:33]')
    a(f's_cmp_lt_u32 s{sW}, 2\ns_cbranch_scc1 F_ok0')
    gen_step(a, '', 'sc1', prof, 'F')
    a(f'''
    s_mov_b32 exec_hi, 0
    buffer_store_dwordx4 {vr(PUB)}, v{ORD}, {srd}, s{sMH} offen sc1
    s_mov_b64 exec, -1
F_end:
    ''')
    if prof:
        a(f'''
        s_memrealtime s[30:31]
        s_memtime s[74:75]
        s_waitcnt lgkmcnt(0)
        s_sub_u32 s74, s74, s32
        s_lshl_b32 s{sTMP}, s{sH}, 2
        s_add_u32 s{sTMP}, s{sTMP}, s{sW}
        s_lshl_b32 s{sTMP}, s{sTMP}, 7
        s_add_u32 s{sTMP}, s{sTMP}, {WS_PROF}
        v_mov_b32 v1, 0
        ''')
        regs = [sPROF+i for i in range(8)] + [sPROF]*4 + [70, 28, 30, sRT] + [74+2*i for i in range(14)]
        for i, r in enumerate(regs):
            a(f'v_mov_b32 v2, s{r}\nbuffer_store_dword v2, v1, {srd}, s{sTMP} offen offset:{4*i}')
    a('s_endpgm')
```

```python
from asmlib import *
KA_AX, KA_WR, KA_WI, KA_BX, KA_MEM0, KA_WQ, KA_WK, KA_WV, KA_WO, KA_SEG, KA_OUT, KA_DBG, KA_WS = [8*i for i in range(13)]
WS_PB   = 0x800000
PB_STRIDE = 0x80000
WS_MB   = 0x100000
MB_STRIDE = 0x4000
WS_KVF  = 0x180000
WS_OF   = 0x700000
WS_EPOCH = 0x1f0000
WS_PROF = 0x200000
WS_KV   = 0x1000000
KV_SEG  = 32*16384
WS_Q    = 0x3200000
WS_MH   = 0x400000
MH_STRIDE = 0x8000
QS_SEG  = 32*8192
WS_O    = 0x5200000
WS_X1   = 0x6200000
WS_Y1   = 0x6600000
WS_SIZE = 0x10000000
OOB = 0x7ff00000
SOOB = 0x7f000000
sXCC, sRANK, sWAVE, sTAG = 4, 5, 6, 7
sWS = 8
SRD_WS = f's[{sWS}:{sWS+3}]'
def vr(b, n=4): return f'v[{b}:{b+n-1}]'
def ar(b, n=4): return f'a[{b}:{b+n-1}]'
def cvt(d, x, y): return f'v_cvt_pk_bf16_f32 v{d}, v{x}, v{y}'
def pkadd(d, x, y): return f'v_pk_add_f32 {vr(d,2)}, {vr(x,2)}, {vr(y,2)}'
def mfma16(d, a, b, c=None):
    return f'v_mfma_f32_16x16x32_bf16 {vr(d)}, {vr(a)}, {vr(b)}, {vr(c) if c is not None else 0}'

def make_srd(a, s, karg_off, nbytes):
    a(f'''
    s_load_dwordx2 s[{s}:{s+1}], s[0:1], {karg_off}
    s_mov_b32 s{s+2}, {nbytes}
    s_mov_b32 s{s+3}, 0x00020000
    ''')

class Stamps:
    def __init__(self, a, on, base=74, n=14): self.a=a; self.on=on; self.base=base; self.k=0; self.n=n; self.names=[]
    def __call__(self, name):
        if self.on:
            assert self.k < self.n
            self.a(f's_memtime s[{self.base+2*self.k}:{self.base+2*self.k+1}]'); self.k += 1; self.names.append(name)

def stage_weights(a, tag, mats, nwave_reads, swz_kind, LDS_BASE, tmp, sT, extra_dma=None, after_issue=None, post_read=None):
    sHO, sOF, sLB = sT
    X, R = tmp+4, tmp+5
    a(f'''
    v_and_b32 v{X}, 63, v0
    v_lshrrev_b32 v{R}, 4, v{X}
    v_and_b32 v{X}, 15, v{X}
    ''')
    for j in range(4):
        if swz_kind == 'chain':
            a(f'v_and_b32 v{tmp+j}, 1, v{R}\nv_lshlrev_b32 v{tmp+j}, 1, v{tmp+j}\nv_xor_b32 v{tmp+j}, {j<<2}, v{tmp+j}')
        else:
            a(f'v_lshlrev_b32 v{tmp+j}, 2, v{R}')
        a(f'''
        v_xor_b32 v{tmp+j}, v{tmp+j}, v{X}
        v_lshlrev_b32 v{tmp+j}, 4, v{tmp+j}
        v_lshl_add_u32 v{tmp+j}, v{R}, 13, v{tmp+j}
        v_add_u32 v{tmp+j}, {j*4*8192}, v{tmp+j}
        ''')
    def dma(n):
        m, c = divmod(n, 9)
        out = [f's_add_u32 s{sOF}, s{sHO}, {c*64*8192}']
        for j in range(4):
            out.append(f's_add_u32 m0, s{sLB}, {c*4096 + j*1024}')
            out.append(f'buffer_load_dwordx4 v{tmp+j}, {mats[m]}, s{sOF} offen lds')
        return '\n'.join(out)
    N = 9*len(mats)
    cnt = []
    def issue(n):
        if n < N: a(dma(n)); cnt.append(4)
        elif extra_dma is not None and n - N < 9:
            k = extra_dma(n - N); cnt.append(k)
        else: cnt.append(0)
    for n in range(9): issue(n)
    if after_issue: cnt[-1] += after_issue() or 0
    for n in range(N):
        younger = sum(cnt[n+1:])
        a(f's_waitcnt vmcnt({min(younger,63)})')
        a('s_barrier')
        if n >= 1: issue(n-1+9)
        for ins in nwave_reads(*divmod(n, 9)): a(ins)
        a('s_waitcnt lgkmcnt(0)')
        if post_read: cnt[-1] += post_read(*divmod(n, 9)) or 0
    a('s_barrier')
    issue(N-1+9)
    return cnt
```

```python
import struct
from common import *
from qkv import mf32, pstamp
def fl(x): return '0x%08x' % struct.unpack('<I', struct.pack('<f', float(x)))[0]
sF, sT0, sT1, sT2, sIT, sBUF, sXO, sRT, sSO = 12, 13, 14, 15, 16, 17, 18, 19, 20
sAX, sWR, sWI, sOUT, sDBG = 24, 28, 32, 36, 40
LN, HI, N31, T0, T1, T2, T3, XR, XV, STA, CC, BB, BB2 = range(1, 14)
WF = 64
def mm(d, a, b, first): return f'v_mfma_f32_32x32x16_bf16 {vr(d,16)}, {a}, {b}, ' + ('0' if first else vr(d,16))

def trig_pair(a, dst, fn, c, k0, b0, k1, b1, agpr=False, neg_dst=None, mul=None):
    a(f'v_fmamk_f32 v{T0}, v{c}, {fl(k0)}, v{b0}')
    a(f'v_fmamk_f32 v{T1}, v{c}, {fl(k1)}, v{b1}')
    a(f'v_fract_f32 v{T0}, v{T0}'); a(f'v_fract_f32 v{T1}, v{T1}')
    a(f'v_{fn}_f32 v{T0}, v{T0}'); a(f'v_{fn}_f32 v{T1}, v{T1}')
    if mul is not None:
        a(f'v_mul_f32 v{T0}, v{mul}, v{T0}'); a(f'v_mul_f32 v{T1}, v{mul}, v{T1}')
    if agpr:
        a(cvt(T2, T0, T1)); a(f'v_accvgpr_write_b32 a{dst}, v{T2}')
        if neg_dst is not None:
            a(f'v_xor_b32 v{T2}, 0x80008000, v{T2}'); a(f'v_accvgpr_write_b32 a{neg_dst}, v{T2}')
    else:
        a(cvt(dst, T0, T1))
        if neg_dst is not None: a(f'v_xor_b32 v{neg_dst}, 0x80008000, v{dst}')

def grid_arrive(a, off):
    a(f'''
    s_waitcnt vmcnt(0)
    s_barrier
    s_cmp_lg_u32 s{sWAVE}, 0
    s_cbranch_scc1 FB_na{off}
    s_mov_b64 exec, 1
    v_mov_b32 v{T0}, {off}
    v_mov_b32 v{T1}, 1
    global_atomic_add v{T0}, v{T1}, s[{sDBG}:{sDBG+1}]
    s_mov_b64 exec, -1
FB_na{off}:
    ''')
def grid_wait(a, off, n):
    a(f'''
    v_mov_b32 v{T0}, {off}
FB_w{off}:
    s_mov_b64 exec, 1
    global_load_dword v{T1}, v{T0}, s[{sDBG}:{sDBG+1}] sc1
    s_waitcnt vmcnt(0)
    v_readfirstlane_b32 s{sT0}, v{T1}
    s_mov_b64 exec, -1
    s_add_u32 s{sRT}, s{sRT}, 1
    s_cmp_gt_u32 s{sRT}, 0x80000
    s_cbranch_scc1 FB_d{off}
    s_cmp_ge_u32 s{sT0}, {n}
    s_cbranch_scc1 FB_d{off}
    s_sleep 8
    s_branch FB_w{off}
FB_d{off}:
    ''')

def gen_fft(a, prof=False):
    srd = SRD_WS
    a('R_fft:')
    make_srd(a, sAX, KA_AX, 2048*1152); make_srd(a, sWR, KA_WR, 2048*578); make_srd(a, sWI, KA_WI, 2048*578)
    make_srd(a, sOUT, KA_OUT, 2048*2304)
    a(f's_load_dwordx2 s[{sDBG}:{sDBG+1}], s[0:1], {KA_DBG}')
    import chain
    PF = chain.OPT['pf'] == 1
    if PF:
        for i, k in enumerate((KA_WQ, KA_WK, KA_WV, KA_WO)): make_srd(a, 44+4*i, k, 576*8192)
    a(f'''
    s_sub_u32 s{sF}, s{sXCC}, 5
    s_lshl_b32 s{sF}, s{sF}, 5
    s_add_u32 s{sF}, s{sF}, s{sRANK}
    s_mov_b32 s{sRT}, 0
    v_and_b32 v{LN}, 63, v0
    v_lshrrev_b32 v{HI}, 5, v{LN}
    v_and_b32 v{N31}, 31, v{LN}
    s_waitcnt lgkmcnt(0)
    s_lshl_b32 s{sT0}, s{sF}, 2
    s_add_u32 s21, s{sT0}, s{sWAVE}            ; bin
    ''')
    if PF:
        a(f's_mul_i32 s{sT1}, s21, 12288\nv_lshlrev_b32 v{T0}, 4, v{LN}')
        for i in chain.OPT['pfm']:
            for j in range(12):
                if j % 4 == 0: a(f's_add_u32 s{sT2}, s{sT1}, {j*1024}')
                a(f'buffer_load_dwordx4 v[100:103], v{T0}, s[{44+4*i}:{47+4*i}], s{sT2} offen offset:{(j%4)*1024}')
        a('s_waitcnt vmcnt(0)')
    if chain.OPT['fdelay']: grid_wait(a, 64, 32)
    a(f'''
    s_cmp_gt_u32 s21, 288
    s_cbranch_scc1 F_now
    v_lshl_add_u32 v{T0}, v{HI}, 7, v{N31}
    v_mul_u32_u24 v{T0}, 578, v{T0}
    s_lshl_b32 s{sT1}, s21, 1
    ''')
    for sg in range(2):
        for r in range(16):
            k2 = 32*sg + 8*(r>>2) + (r&3)
            a(f's_add_u32 s{sT2}, s{sT1}, {k2*32*578}')
            a(f'buffer_load_ushort v{WF+16*sg+r}, v{T0}, s[{sWR}:{sWR+3}], s{sT2} offen')
            a(f'buffer_load_ushort v{16+16*sg+r}, v{T0}, s[{sWI}:{sWI+3}], s{sT2} offen')
            if r % 8 == 7: a('s_waitcnt vmcnt(40)')
    a('F_now:')
    BM, ACC, XF = 100, 16, 32
    a(f'''
    ; cg = F % 5, rg = F / 5
    s_mul_i32 s{sT0}, s{sF}, 205
    s_lshr_b32 s22, s{sT0}, 10                 ; rg
    s_mul_i32 s{sT0}, s22, 5
    s_sub_u32 s{sT0}, s{sF}, s{sT0}            ; cg
    s_lshl_b32 s{sT0}, s{sT0}, 2
    s_add_u32 s23, s{sT0}, s{sWAVE}            ; ct
    s_lshl_b32 s{sT0}, s23, 4
    v_lshrrev_b32 v{T0}, 1, v{N31}
    v_add_u32 v{T0}, s{sT0}, v{T0}
    v_cvt_f32_u32 v{T0}, v{T0}
    v_mul_f32 v{CC}, {fl(1.0/576)}, v{T0}
    v_and_b32 v{T0}, 1, v{N31}
    v_cvt_f32_u32 v{T0}, v{T0}
    v_mul_f32 v{BB}, 0.25, v{T0}
    v_cvt_f32_u32 v{T1}, v{HI}
    v_mul_f32 v{T1}, {fl(8.0)}, v{T1}
    v_fmac_f32 v{BB}, v{T1}, v{CC}
    v_bfe_u32 v{T0}, v{LN}, 4, 1
    v_lshlrev_b32 v{XR}, 10, v{T0}
    v_lshl_add_u32 v{XR}, v{HI}, 8, v{XR}
    v_and_b32 v{T0}, 15, v{LN}
    v_lshl_add_u32 v{XR}, v{T0}, 4, v{XR}
    v_bfe_u32 v{T0}, v{LN}, 3, 1
    v_lshlrev_b32 v{T0}, 3, v{T0}
    v_and_b32 v{T1}, 3, v{LN}
    v_add_u32 v{T0}, v{T0}, v{T1}
    v_lshlrev_b32 v{T0}, 6, v{T0}
    v_bfe_u32 v{T1}, v{LN}, 2, 1
    v_add_u32 v{T0}, v{T0}, v{T1}
    s_and_b32 s{sT0}, s{sWAVE}, 1
    s_lshl_b32 s{sT0}, s{sT0}, 1
    v_add_u32 v{T0}, s{sT0}, v{T0}
    v_mul_u32_u24 v{XV}, 1152, v{T0}
    v_lshrrev_b32 v{T0}, 4, v{LN}
    v_lshl_add_u32 v{XV}, v{T0}, 4, v{XV}
    s_lshr_b32 s{sT0}, s{sWAVE}, 1
    s_lshl_b32 s{sT0}, s{sT0}, 6
    v_add_u32 v{XV}, s{sT0}, v{XV}
    v_lshlrev_b32 v{STA}, 12, v{N31}
    v_lshl_add_u32 v{STA}, v{HI}, 4, v{STA}
    s_lshl_b32 s{sBUF}, s{sWAVE}, 10
    s_mov_b32 s{sIT}, s22                      ; rt
    s_cmp_ge_u32 s{sF}, 95
    s_cbranch_scc1 F_a1done
    ''')
    def tile_off():
        a(f'''
        s_lshr_b32 s{sT0}, s{sIT}, 5           ; o>>1
        s_lshl_b32 s{sT0}, s{sT0}, 10
        s_bfe_u32 s{sT1}, s{sIT}, 0x10004      ; o&1
        s_lshl_b32 s{sT1}, s{sT1}, 8
        s_add_u32 s{sT0}, s{sT0}, s{sT1}
        s_and_b32 s{sT1}, s{sIT}, 15
        s_lshl_b32 s{sT1}, s{sT1}, 2
        s_add_u32 s{sT0}, s{sT0}, s{sT1}
        s_mul_i32 s{sXO}, s{sT0}, 1152
        s_cmp_ge_u32 s{sIT}, 64
        s_cselect_b32 s{sXO}, {SOOB}, s{sXO}
        ''')
    def xdma():
        for i in range(9):
            a(f's_add_u32 m0, s{sBUF}, {4096*i - 128*i}')
            a(f'buffer_load_dwordx4 v{XV}, s[{sAX}:{sAX+3}], s{sXO} offen offset:{128*i} lds')
    tile_off(); xdma()
    for t in range(36):
        for i in range(4):
            trig_pair(a, BM+4*t+i, 'cos', CC, 16*t+2*i, BB, 16*t+2*i+1, BB)
    a('s_waitcnt vmcnt(0)')
    for r in range(32): a(f'v_lshl_or_b32 v{WF+r}, v{16+r}, 16, v{WF+r}')
    a('F_a1loop:')
    a(f'''
    s_barrier
    s_lshl_b32 s{sSO}, s23, 17
    s_lshr_b32 s{sT0}, s{sIT}, 4
    s_lshl_b32 s{sT0}, s{sT0}, 10
    s_add_u32 s{sSO}, s{sSO}, s{sT0}
    s_and_b32 s{sT0}, s{sIT}, 15
    s_lshl_b32 s{sT0}, s{sT0}, 6
    s_add_u32 s{sSO}, s{sSO}, s{sT0}
    s_add_u32 s{sSO}, s{sSO}, {WS_X1}
    s_cmp_ge_u32 s23, 19
    s_cselect_b32 s{sSO}, {SOOB}, s{sSO}
    s_xor_b32 s{sBUF}, s{sBUF}, 0x10000
    s_add_u32 s{sIT}, s{sIT}, 19
    ''')
    tile_off()
    def xrd(t): return f'ds_read_b128 {vr(XF+4*(t%4))}, v{XR} offset:{(t>>1)*2048 + (t&1)*512}'
    for t in range(3): a(xrd(t))
    for t in range(36):
        if t+3 < 36: a(xrd(t+3))
        a(f's_waitcnt lgkmcnt({min(3, 35-t)})')
        a(mm(ACC, vr(XF+4*(t%4)), vr(BM+4*t), t == 0))
        if t < 9:
            a(f's_add_u32 m0, s{sBUF}, {4096*t - 128*t}')
            a(f'buffer_load_dwordx4 v{XV}, s[{sAX}:{sAX+3}], s{sXO} offen offset:{128*t} lds')
    a(f'v_xor_b32 v{XR}, 0x10000, v{XR}')
    for i in range(8): a(cvt(ACC+i, ACC+2*i, ACC+2*i+1))
    a(f'''
    buffer_store_dwordx4 {vr(ACC)}, v{STA}, {srd}, s{sSO} offen sc1
    buffer_store_dwordx4 {vr(ACC+4)}, v{STA}, {srd}, s{sSO} offen offset:32 sc1
    s_cmp_lt_u32 s{sIT}, 64
    s_waitcnt vmcnt(2)
    s_cbranch_scc1 F_a1loop
F_a1done:
    ''')
    grid_arrive(a, 68)
    pstamp(a, prof, 0)
    C32, S32, N32 = 224, 232, 240
    a(f'''
    v_cvt_f32_u32 v{T3}, v{N31}
    v_cvt_f32_u32 v{BB2}, v{HI}
    v_mul_f32 v{BB2}, 4.0, v{BB2}              ; 4hi
    v_mul_f32 v{CC}, {fl(1.0/32)}, v{T3}
    v_mul_f32 v{BB}, v{BB2}, v{CC}
    ''')
    def kidx(aa, e): return 16*aa + 8*(e>>2) + (e&3)
    for aa in range(2):
        for i in range(4):
            trig_pair(a, C32+4*aa+i, 'cos', CC, kidx(aa,2*i), BB, kidx(aa,2*i+1), BB)
            trig_pair(a, S32+4*aa+i, 'sin', CC, kidx(aa,2*i), BB, kidx(aa,2*i+1), BB, neg_dst=N32+4*aa+i)
    def F64(kind, x, y, aa): return 32*kind + 16*x + 8*y + 4*aa
    for x in range(2):
        a(f'v_add_f32 v{CC}, {fl(32.0*x)}, v{T3}\nv_mul_f32 v{CC}, {fl(1.0/64)}, v{CC}\nv_mul_f32 v{BB}, v{BB2}, v{CC}')
        for y in range(2):
            for aa in range(2):
                for i in range(4):
                    k0, k1 = 32*y+kidx(aa,2*i), 32*y+kidx(aa,2*i+1)
                    trig_pair(a, F64(0,x,y,aa)+i, 'cos', CC, k0, BB, k1, BB, agpr=True)
                    trig_pair(a, F64(1,x,y,aa)+i, 'sin', CC, k0, BB, k1, BB, agpr=True, neg_dst=F64(2,x,y,aa)+i)
    GA = 96
    a(f'''
    s_mul_i32 s{sT0}, s21, 3641
    s_lshr_b32 s22, s{sT0}, 16                 ; grp
    s_mul_i32 s{sT0}, s22, 18
    s_sub_u32 s23, s21, s{sT0}                 ; dt
    v_bfe_u32 v{T0}, v{N31}, 2, 1
    v_lshlrev_b32 v{T0}, 4, v{T0}
    v_lshrrev_b32 v{T1}, 3, v{N31}
    v_lshl_add_u32 v{T0}, v{T1}, 2, v{T0}
    v_and_b32 v{T1}, 3, v{N31}
    v_add_u32 v{T0}, v{T0}, v{T1}
    s_lshl_b32 s{sT0}, s23, 5
    v_add_u32 v{T0}, s{sT0}, v{T0}
    v_cvt_f32_u32 v{T0}, v{T0}
    v_mul_f32 v{CC}, {fl(1.0/576)}, v{T0}
    v_mul_f32 v{BB}, v{BB2}, v{CC}
    v_add_f32 v{XV}, 0.25, v{BB}
    v_cmp_eq_u32 vcc, 0, v{HI}
    v_mov_b32 v{T0}, 1.0
    v_cndmask_b32 v{XR}, v{T0}, 0.5, vcc       ; hi==0 ? 0.5 : 1
    v_cndmask_b32 v{STA}, 0, 0.5, vcc          ; hi==0 ? 0.5 : 0
    ''')
    for t in range(37):
        for i in range(4):
            if t == 36 and i > 0:
                a(f'v_accvgpr_write_b32 a{GA+4*t+i}, 0'); continue
            mul = XR if (t == 0 and i == 0) else (STA if t == 36 else None)
            trig_pair(a, GA+4*t+i, 'cos', CC, 8*t+i, BB, 8*t+i, XV, agpr=True, mul=mul)
    grid_wait(a, 68, 96)
    pstamp(a, prof, 1)
    XI, DR, OP = 16, 100, 164
    def D(tile, im): return DR + 32*tile + 16*im
    def O(tile, im, aa): return OP + 16*tile + 8*im + 4*aa
    a(f'''
    s_cmp_ge_u32 s{sF}, 73
    s_cbranch_scc1 F_a2done
    v_lshlrev_b32 v{STA}, 4, v{N31}
    v_lshl_add_u32 v{STA}, v{HI}, 12, v{STA}
    s_lshl_b32 s{sT0}, s{sWAVE}, 2
    v_add_u32 v{STA}, s{sT0}, v{STA}
    s_cmp_gt_u32 s21, 288
    s_cbranch_scc1 F_a2zero
    v_lshlrev_b32 v{T3}, 4, v{N31}
    v_lshl_add_u32 v{T3}, v{HI}, 10, v{T3}
    s_lshl_b32 s{sT0}, s21, 13
    s_add_u32 s{sT0}, s{sT0}, {WS_X1}
    s_add_u32 s{sT1}, s{sT0}, 4096
    ''')
    def XIN(tile, im, aa): return XI + 16*tile + 8*im + 4*aa
    for tile in range(2):
        for im in range(2):
            for aa in range(2):
                a(f'buffer_load_dwordx4 {vr(XIN(tile,im,aa))}, v{T3}, {srd}, s{sT1 if im else sT0} offen offset:{aa*2048 + tile*512} sc1')
    a(f'''
    v_cvt_f32_u32 v{T3}, v{N31}
    v_mul_f32 v{CC}, {fl(1.0/2048)}, v{T3}
    v_mul_f32 v{BB}, v{BB2}, v{CC}
    ''')
    for tile in range(2):
        a(f's_waitcnt vmcnt({4*(1-tile)})')
        for aa in range(2): a(mm(D(tile,0), vr(XIN(tile,0,aa)), vr(C32+4*aa), aa == 0))
        for aa in range(2): a(mm(D(tile,1), vr(XIN(tile,1,aa)), vr(C32+4*aa), aa == 0))
        for aa in range(2): a(mm(D(tile,0), vr(XIN(tile,1,aa)), vr(S32+4*aa), False))
        for aa in range(2): a(mm(D(tile,1), vr(XIN(tile,0,aa)), vr(N32+4*aa), False))
    TW = 48
    def cmul_pack(tile, r, getcs, sign):
        for j in range(2):
            getcs(r+j, TW+2*j, TW+2*j+1)
        for j in range(2):
            re, im, c, s = D(tile,0)+r+j, D(tile,1)+r+j, TW+2*j, TW+2*j+1
            a(f'v_mul_f32 v{TW+4+j}, v{re}, v{c}')
            a(f'v_mul_f32 v{TW+6+j}, v{im}, v{c}')
            a(f'v_fma_f32 v{TW+4+j}, {"-" if sign > 0 else ""}v{im}, v{s}, v{TW+4+j}')
            a(f'v_fma_f32 v{TW+6+j}, {"" if sign > 0 else "-"}v{re}, v{s}, v{TW+6+j}')
        a(cvt(O(tile,0,0)+r//2, TW+4, TW+5)); a(cvt(O(tile,1,0)+r//2, TW+6, TW+7))
    def tw_cs(k_of):
        def f(r, c, s):
            a(f'v_fmamk_f32 v{c}, v{CC}, {fl(k_of(r))}, v{BB}')
            a(f'v_sin_f32 v{s}, v{c}'); a(f'v_cos_f32 v{c}, v{c}')
        return f
    for tile in range(2):
        for r in range(0, 16, 2): cmul_pack(tile, r, tw_cs(lambda r, tile=tile: 32*tile + 8*(r>>2) + (r&3)), -1)
    for sg in range(2):
        first = True
        for (dim, kind, im) in ((0,0,0),(1,0,1),(0,1,1),(1,2,0)):
            for tile in range(2):
                for aa in range(2):
                    a(mm(D(sg,dim), ar(F64(kind,sg,tile,aa)), vr(O(tile,im,aa)), kind == 0 and tile == 0 and aa == 0))
    def w_cs(sg):
        def f(r, c, s):
            a(f'v_lshlrev_b32 v{c}, 16, v{WF+16*sg+r}'); a(f'v_and_b32 v{s}, 0xffff0000, v{WF+16*sg+r}')
        return f
    for sg in range(2):
        for r in range(0, 16, 2): cmul_pack(sg, r, w_cs(sg), +1)
    for tile in range(2):
        for (dim, kind, im) in ((0,0,0),(1,0,1),(0,2,1),(1,1,0)):
            for sg in range(2):
                for aa in range(2):
                    a(mm(D(tile,dim), vr(O(sg,im,aa)), ar(F64(kind,tile,sg,aa)), kind == 0 and sg == 0 and aa == 0))
    for tile in range(2):
        a(f'v_add_f32 v{CC}, {fl(32.0*tile)}, v{T3}\nv_mul_f32 v{CC}, {fl(1.0/2048)}, v{CC}\nv_mul_f32 v{BB}, v{BB2}, v{CC}')
        for r in range(0, 16, 2): cmul_pack(tile, r, tw_cs(lambda r: 8*(r>>2) + (r&3)), +1)
    for tile in range(2):
        for (dim, K, im) in ((0,C32,0),(1,C32,1),(0,N32,1),(1,S32,0)):
            for aa in range(2):
                a(mm(D(tile,dim), vr(K+4*aa), vr(O(tile,im,aa)), K == C32 and aa == 0))
    for tile in range(2):
        for r in range(16):
            a(cvt(D(tile,0)+r, D(tile,0)+r, D(tile,1)+r))
            a(f'ds_write_b32 v{STA}, v{D(tile,0)+r} offset:{(64*(8*(r>>2)+(r&3)) + 32*tile)*16}')
    a('s_branch F_a2st')
    a('F_a2zero:')
    a(f'v_mov_b32 v{T0}, 0')
    for tile in range(2):
        for r in range(16):
            a(f'ds_write_b32 v{STA}, v{T0} offset:{(64*(8*(r>>2)+(r&3)) + 32*tile)*16}')
    a(f'''
F_a2st:
    s_waitcnt lgkmcnt(0)
    s_barrier
    v_lshlrev_b32 v{T3}, 4, v0
    s_lshl_b32 s{sT0}, s{sF}, 15
    s_add_u32 s{sT0}, s{sT0}, {WS_Y1}
    ''')
    for i in range(8): a(f'ds_read_b128 {vr(XI+4*i)}, v{T3} offset:{4096*i}')
    for i in range(8):
        a(f's_waitcnt lgkmcnt({7-i})')
        a(f'buffer_store_dwordx4 {vr(XI+4*i)}, v{T3}, {srd}, s{sT0} offen sc1')
        a(f's_add_u32 s{sT0}, s{sT0}, 4096')
    a('F_a2done:')
    grid_arrive(a, 72)
    grid_wait(a, 72, 96)
    pstamp(a, prof, 2)
    YD = 100
    a(f'''
    s_cmp_ge_u32 s22, 21
    s_cbranch_scc1 F_a3done
    v_lshlrev_b32 v{T3}, 4, v{N31}
    v_mov_b32 v{XV}, v{T3}
    v_lshl_add_u32 v{T3}, v{HI}, 15, v{T3}
    v_mul_u32_u24 v{STA}, 2304, v{N31}
    v_lshl_add_u32 v{STA}, v{HI}, 5, v{STA}
    s_mov_b32 s{sIT}, s22
    s_mov_b32 s42, {fl(2.0/576/2048)}
    s_mov_b32 s43, {fl(2.0/576/2048)}
F_a3loop:
    s_lshl_b32 s{sT0}, s{sIT}, 9
    s_add_u32 s{sT0}, s{sT0}, {WS_Y1}
    s_mul_i32 s{sSO}, s{sIT}, {32*2304}
    s_lshl_b32 s{sT1}, s23, 6
    s_add_u32 s{sSO}, s{sSO}, s{sT1}
    ''')
    for t in range(37):
        a(f'buffer_load_dwordx4 {vr(YD+4*t)}, v{T3 if t < 36 else XV}, {srd}, s{sT0} offen sc1')
        a(f's_add_u32 s{sT0}, s{sT0}, 65536')
    for t in range(37):
        a(f's_waitcnt vmcnt({36-t})')
        a(mm(ACC, ar(GA+4*t), vr(YD+4*t), t == 0))
    for i in range(8): a(f'v_pk_mul_f32 {vr(ACC+2*i,2)}, {vr(ACC+2*i,2)}, s[42:43]')
    for i in range(8): a(cvt(ACC+i, ACC+2*i, ACC+2*i+1))
    a(f'''
    buffer_store_dwordx4 {vr(ACC)}, v{STA}, s[{sOUT}:{sOUT+3}], s{sSO} offen
    buffer_store_dwordx4 {vr(ACC+4)}, v{STA}, s[{sOUT}:{sOUT+3}], s{sSO} offen offset:16
    s_add_u32 s{sIT}, s{sIT}, 21
    s_cmp_lt_u32 s{sIT}, 64
    s_waitcnt vmcnt(0)
    s_cbranch_scc1 F_a3loop
F_a3done:
    ''')
    pstamp(a, prof, 3)
```

```python
from common import *
LO, XR, XV, TAGV = 1, 2, 3, 4
ACC = [16, 32, 48]
XF = 64
sH, sJ, sT0, sT1, sSEG, sKV, sQ, sFL, sXO, sBUF, sIT, sFLP = 12, 13, 14, 15, 16, 17, 18, 19, 20, 21, 22, 23
sX = 24
def wq(m, t):
    if m == 0: return vr(80 + 4*t)
    idx = (m-1)*36 + t
    return ar(4*idx) if idx < 64 else vr(224 + 4*(idx-64))
def mf32(d, a, b, first): return f'v_mfma_f32_32x32x16_bf16 {vr(d,16)}, {a}, {b}, ' + ('0' if first else vr(d,16))

def gen_qkv(a, next_label, prof=False):
    srd = SRD_WS
    sA, sB, sC = 72, 76, 80
    a('R_qkv:')
    make_srd(a, sA, KA_WQ, 576*8192); make_srd(a, sB, KA_WK, 576*8192); make_srd(a, sC, KA_WV, 576*8192)
    make_srd(a, sX, KA_BX, 2048*1152)
    TA = 16; TMPB = 24
    a(f'''
    s_sub_u32 s{sT0}, s{sXCC}, 1
    s_lshl_b32 s{sT0}, s{sT0}, 5
    s_add_u32 s{sT0}, s{sT0}, s{sRANK}
    s_lshr_b32 s{sH}, s{sT0}, 2
    s_and_b32 s{sJ}, s{sT0}, 3
    v_mov_b32 v{TAGV}, s{sTAG}
    v_and_b32 v32, 63, v0
    v_lshrrev_b32 v33, 5, v32               ; hi
    v_bfe_u32 v34, v32, 4, 1
    v_bfe_u32 v35, v32, 2, 2                ; r4
    v_and_b32 v36, 3, v32                   ; c4
    v_and_b32 v37, 15, v32
    v_lshlrev_b32 v{LO}, 10, v34
    v_lshl_add_u32 v{LO}, v33, 8, v{LO}
    v_lshl_add_u32 v{LO}, v37, 4, v{LO}
    v_mov_b32 v{XR}, v{LO}
    ; XV = ((w&1)*16 + (l&15))*1152 + (l>>4)*16 + (w>>1)*64
    s_and_b32 s{sT0}, s{sWAVE}, 1
    s_lshl_b32 s{sT0}, s{sT0}, 4
    v_add_u32 v{XV}, s{sT0}, v37
    v_mul_u32_u24 v{XV}, 1152, v{XV}
    v_lshrrev_b32 v38, 4, v32
    v_lshl_add_u32 v{XV}, v38, 4, v{XV}
    s_lshr_b32 s{sT0}, s{sWAVE}, 1
    s_lshl_b32 s{sT0}, s{sT0}, 6
    v_add_u32 v{XV}, s{sT0}, v{XV}
    s_lshl_b32 s{sT0}, s{sWAVE}, 1
    v_add_u32 v38, s{sT0}, v34
    v_lshlrev_b32 v39, 1, v35
    v_xor_b32 v38, v38, v39
    v_lshl_add_u32 v39, v33, 3, v35
    v_lshlrev_b32 v39, 8, v39
    v_lshl_add_u32 v39, v38, 5, v39
    v_lshl_add_u32 v{TA}, v36, 3, v39
    v_add_u32 v{TA+1}, 36864, v{TA}
    v_add_u32 v{TA+2}, {2*36864}, v{TA}
    v_add_u32 v{TA+3}, {3*36864}, v{TA}
    s_mul_i32 s94, s{sWAVE}, 36864
    s_lshl_b32 s95, s{sH}, 8
    s_lshl_b32 s{sT0}, s{sWAVE}, 17
    s_add_u32 s95, s95, s{sT0}
    s_waitcnt lgkmcnt(0)
    ''')
    import chain
    order = chain.OPT['qorder']
    def reads(m, c):
        m = order[m]
        out = []
        for i in range(4):
            w = wq(m, 4*c+i); k, lo = w[0], int(w[2:w.index(':')])
            for rh in range(2):
                out.append(f'ds_read_b64_tr_b16 {k}[{lo+2*rh}:{lo+2*rh+1}], v{TA+i} offset:{c*4096 + rh*1024}')
        return out
    stage_weights(a, 'Q', [f's[{x}:{x+3}]' for x in [(sA, sB, sC)[i] for i in order]], reads, 'qkv', 0, TMPB, [95, 96, 94])
    def xdma():
        for i in range(9):
            a(f's_add_u32 m0, s{sBUF}, {4096*i - 128*i}')
            a(f'buffer_load_dwordx4 v{XV}, s[{sX}:{sX+3}], s{sXO} offen offset:{128*i} lds')
    a(f'''
    s_lshl_b32 s{sT0}, s{sH}, 2
    s_add_u32 s{sT0}, s{sT0}, s{sWAVE}          ; 4h+w
    s_lshl_b32 s{sKV}, s{sT0}, 12
    s_mul_i32 s{sT1}, s{sJ}, {KV_SEG}
    s_add_u32 s{sKV}, s{sKV}, s{sT1}
    s_add_u32 s{sKV}, s{sKV}, {WS_KV}
    s_lshl_b32 s{sQ}, s{sT0}, 11
    s_mul_i32 s{sT1}, s{sJ}, {QS_SEG}
    s_add_u32 s{sQ}, s{sQ}, s{sT1}
    s_add_u32 s{sQ}, s{sQ}, {WS_Q}
    s_lshl_b32 s{sFL}, s{sT0}, 8
    s_lshl_b32 s{sT1}, s{sJ}, 2
    s_add_u32 s{sFL}, s{sFL}, s{sT1}
    s_add_u32 s{sFL}, s{sFL}, {WS_KVF}
    s_mov_b32 s{sFLP}, {SOOB}
    s_mul_i32 s{sXO}, s{sJ}, 36864
    s_lshl_b32 s{sBUF}, s{sWAVE}, 10
    s_mov_b32 s{sIT}, 0
    v_mov_b32 v5, 0
    ''')
    pstamp(a, prof, 0)
    xdma()
    a('s_waitcnt vmcnt(0)')
    a('Q_loop:')
    a('s_barrier')
    a(f's_xor_b32 s{sBUF}, s{sBUF}, 0x10000')
    a(f's_add_u32 s{sXO}, s{sXO}, {4*36864}')
    def xrd(t): return f'ds_read_b128 {vr(XF+4*(t%4))}, v{XR} offset:{(t>>1)*2048 + (t&1)*512}'
    for t in range(3): a(xrd(t))
    for t in range(36):
        if t+3 < 36: a(xrd(t+3))
        a(f's_waitcnt lgkmcnt({min(3, 35-t)})')
        x = vr(XF+4*(t%4))
        a(mf32(ACC[0], wq(0,t), x, t == 0))
        a(mf32(ACC[1], wq(1,t), x, t == 0))
        a(mf32(ACC[2], x, wq(2,t), t == 0))
        if t < 9:
            a(f's_add_u32 m0, s{sBUF}, {4096*t - 128*t}')
            a(f'buffer_load_dwordx4 v{XV}, s[{sX}:{sX+3}], s{sXO} offen offset:{128*t} lds')
        if t == 18:
            a(f'''
            s_waitcnt vmcnt(9)
            s_mov_b64 exec, 1
            buffer_store_dword v{TAGV}, v5, {srd}, s{sFLP} offen sc1
            s_mov_b64 exec, -1
            ''')
    a(f'v_xor_b32 v{XR}, 0x10000, v{XR}')
    for m, (so, off) in enumerate(((sQ, 0), (sKV, 0), (sKV, 2048))):
        r = ACC[m]
        for (d, x) in ((0,0),(1,2),(2,8),(3,10),(4,4),(5,6),(6,12),(7,14)):
            a(cvt(r+d, r+x, r+x+1))
        a(f'buffer_store_dwordx4 {vr(r)}, v{LO}, {srd}, s{so} offen offset:{off} sc1')
        a(f'buffer_store_dwordx4 {vr(r+4)}, v{LO}, {srd}, s{so} offen offset:{off+512} sc1')
    a(f'''
    s_mov_b32 s{sFLP}, s{sFL}
    s_add_u32 s{sFL}, s{sFL}, 16
    s_add_u32 s{sKV}, s{sKV}, {4*KV_SEG}
    s_add_u32 s{sQ}, s{sQ}, {4*QS_SEG}
    s_add_u32 s{sIT}, s{sIT}, 1
    s_cmp_lt_u32 s{sIT}, 16
    s_waitcnt vmcnt(6)
    s_cbranch_scc1 Q_loop
    s_waitcnt vmcnt(0)
    s_mov_b64 exec, 1
    buffer_store_dword v{TAGV}, v5, {srd}, s{sFLP} offen sc1
    s_mov_b64 exec, -1
    ''')
    import chain
    if not chain.OPT['noattn']: gen_attn(a, prof)
    a(f's_branch {next_label}')

def pstamp(a, prof, i, r=14):
    if prof:
        a(f'''
        s_memrealtime s[98:99]
        s_lshl_b32 s100, s{sXCC}, 5
        s_add_u32 s100, s100, s{sRANK}
        s_lshl_b32 s100, s100, 5
        s_add_u32 s100, s100, {WS_PROF + 0x10000 + 4*i}
        s_waitcnt lgkmcnt(0)
        v_mov_b32 v{r}, s98
        v_mov_b32 v{r+1}, 0
        buffer_store_dword v{r}, v{r+1}, {SRD_WS}, s100 offen
        ''')

def gen_attn(a, prof):
    srd = SRD_WS
    QF, KF, VF, SX, ML, SM, PX, PM = 80, 112, 144, 152, 168, 188, 204, 212
    KA, VA, OA = ACC[1], ACC[2], ACC[0]
    L16, MWA, MRA, KWA, OLO, T0, T1, T2 = 6, 7, 8, 9, 10, 12, 13, 14
    sMSK = 28
    sMH, sO, sOF, sC, sRT = 60, 61, 62, 64, 63
    sKW = 66
    sQW = 70
    LM, LK = 0, 16384
    pstamp(a, prof, 1)
    a(f'''
    s_waitcnt vmcnt(0)
    s_barrier
    v_and_b32 v{T0}, 63, v0
    v_lshlrev_b32 v{L16}, 4, v{T0}
    ; MWA = (l>>4)*128 + (l&7)*16 + ((l>>3)&1)*8 + w*2304
    v_lshrrev_b32 v{T1}, 4, v{T0}
    v_lshlrev_b32 v{MWA}, 7, v{T1}
    v_and_b32 v{T1}, 7, v{T0}
    v_lshl_add_u32 v{MWA}, v{T1}, 4, v{MWA}
    v_bfe_u32 v{T2}, v{T0}, 3, 1
    v_lshl_add_u32 v{MWA}, v{T2}, 3, v{MWA}
    s_mul_i32 s{sT0}, s{sWAVE}, 2304
    v_add_u32 v{MWA}, s{sT0}, v{MWA}
    v_lshrrev_b32 v{T2}, 5, v{T0}
    v_lshlrev_b32 v{MRA}, 7, v{T2}
    v_lshl_add_u32 v{MRA}, v{T1}, 4, v{MRA}
    s_lshl_b32 s{sT0}, s{sWAVE}, 9
    v_add_u32 v{KWA}, s{sT0}, v{MRA}
    v_bfe_u32 v{T1}, v{T0}, 4, 1
    v_lshlrev_b32 v{OLO}, 17, v{T1}
    v_lshl_add_u32 v{OLO}, v{T2}, 8, v{OLO}
    v_and_b32 v{T1}, 15, v{T0}
    v_lshl_add_u32 v{OLO}, v{T1}, 4, v{OLO}
    v_and_b32 v{T1}, 31, v{T0}
    v_lshlrev_b32 v{T2}, 2, v{T2}
    v_sub_u32 v{T1}, v{T1}, v{T2}
    s_mov_b32 s{sC}, 0x3e0293ee
    s_mov_b32 s{sC+1}, 0x3e0293ee
    s_mov_b32 s{sRT}, 0
    ''')
    for r in range(16): a(f'v_cmp_le_i32 s[{sMSK+2*r}:{sMSK+2*r+1}], {8*(r>>2)+(r&3)}, v{T1}')
    a(f'''
    s_mul_i32 s{sKW}, s{sJ}, {KV_SEG}
    s_lshl_b32 s{sT0}, s{sH}, 14
    s_add_u32 s{sKW}, s{sKW}, s{sT0}
    s_add_u32 s{sKW}, s{sKW}, {WS_KV}
    s_mul_i32 s{sQW}, s{sJ}, {QS_SEG}
    s_lshl_b32 s{sT0}, s{sH}, 13
    s_add_u32 s{sQW}, s{sQW}, s{sT0}
    s_add_u32 s{sQW}, s{sQW}, {WS_Q}
    s_mul_i32 s{sMH}, s{sJ}, {MH_STRIDE}
    s_mul_i32 s{sT0}, s{sWAVE}, 4608
    s_add_u32 s{sMH}, s{sMH}, s{sT0}
    s_add_u32 s{sMH}, s{sMH}, {WS_MH}
    s_lshl_b32 s{sT0}, s{sH}, 2
    s_add_u32 s{sT0}, s{sT0}, s{sWAVE}
    s_lshl_b32 s{sO}, s{sT0}, 10
    s_lshl_b32 s{sT1}, s{sJ}, 18
    s_add_u32 s{sO}, s{sO}, s{sT1}
    s_add_u32 s{sO}, s{sO}, {WS_O}
    s_lshl_b32 s{sOF}, s{sT0}, 6
    s_lshl_b32 s{sT1}, s{sJ}, 13
    s_add_u32 s{sOF}, s{sOF}, s{sT1}
    s_add_u32 s{sOF}, s{sOF}, {WS_OF}
    s_mov_b32 s{sIT}, 0
A_loop:
    ''')
    for w in range(1, 4):
        a(f's_add_u32 s{sKW+w}, s{sKW}, {4096*w}')
    a(f's_add_u32 s{sQW+1}, s{sQW}, 4096')
    a(f's_lshl_b32 s{sT0}, s{sWAVE}, 12\ns_add_u32 s{sT0}, s{sT0}, s{sKW}')
    for k in range(8):
        w, p = k>>1, k&1
        a(f'buffer_load_dwordx4 {vr(QF+4*k)}, v{LO}, {srd}, s{sQW+(w>>1)} offen offset:{(w&1)*2048 + p*512} sc1')
        a(f'buffer_load_dwordx4 {vr(KF+4*k)}, v{LO}, {srd}, s{sKW+w} offen offset:{p*512} sc1')
    for p in range(2):
        a(f'buffer_load_dwordx4 {vr(VF+4*p)}, v{LO}, {srd}, s{sT0} offen offset:{2048+p*512} sc1')
    for k in range(8):
        a(f's_waitcnt vmcnt({2 + 2*(7-k)})')
        a(mf32(SX, vr(KF+4*k), vr(QF+4*k), k == 0))
    a(f'''
A_lp:
    s_mov_b64 exec, 1
    buffer_load_dword v{ML+2}, v{L16}, {srd}, s{sMH} offen offset:{4096+31*16+8} sc1
    s_waitcnt vmcnt(0)
    v_cmp_ne_u32 vcc, v{TAGV}, v{ML+2}
    s_mov_b64 exec, -1
    s_add_u32 s{sRT}, s{sRT}, 1
    s_cmp_gt_u32 s{sRT}, 0x80000
    s_cbranch_scc1 A_fp
    s_cbranch_vccz A_fp
    s_sleep 4
    s_branch A_lp
A_fp:
    ''')
    for i in range(4): a(f'buffer_load_dwordx4 {vr(ML+4*i)}, v{L16}, {srd}, s{sMH} offen offset:{1024*i} sc1')
    a(f'''
    v_mov_b32 v{ML+18}, v{TAGV}
    s_add_u32 s{sT0}, s{sMH}, 4096
    s_mov_b32 exec_hi, 0
    buffer_load_dwordx4 {vr(ML+16)}, v{L16}, {srd}, s{sT0} offen sc1
    s_mov_b64 exec, -1
    s_waitcnt vmcnt(0)
    v_xor_b32 v{T0}, v{TAGV}, v{ML+2}
    v_xor_b32 v{T1}, v{TAGV}, v{ML+6}
    v_xor_b32 v{T2}, v{TAGV}, v{ML+10}
    v_or3_b32 v{T0}, v{T0}, v{T1}, v{T2}
    v_xor_b32 v{T1}, v{TAGV}, v{ML+14}
    v_xor_b32 v{T2}, v{TAGV}, v{ML+18}
    v_or3_b32 v{T0}, v{T0}, v{T1}, v{T2}
    v_cmp_ne_u32 vcc, 0, v{T0}
    s_add_u32 s{sRT}, s{sRT}, 1
    s_cmp_gt_u32 s{sRT}, 0x80000
    s_cbranch_scc1 A_fd
    s_cbranch_vccnz A_fp
A_fd:
    ''')
    for i in range(4): a(f'ds_write_b64 v{MWA}, {vr(ML+4*i,2)} offset:{LM+512*i}')
    a(f'''
    s_mov_b32 exec_hi, 0
    ds_write_b64 v{MWA}, {vr(ML+16,2)} offset:{LM+2048}
    s_mov_b64 exec, -1
    v_mov_b32 v{T2}, 0xff800000
    ''')
    for r in range(16): a(f'v_cndmask_b32 v{SX+r}, v{T2}, v{SX+r}, s[{sMSK+2*r}:{sMSK+2*r+1}]')
    a('s_waitcnt lgkmcnt(0)\ns_barrier')
    def xrd(t): return f'ds_read_b128 {vr(XF+4*(t%4))}, v{MRA} offset:{LM+t*256}'
    for t in range(3): a(xrd(t))
    for t in range(36):
        if t+3 < 36: a(xrd(t+3))
        a(f's_waitcnt lgkmcnt({min(3, 35-t)})')
        x = vr(XF+4*(t%4))
        a(mf32(KA, wq(1,t), x, t == 0))
        a(mf32(VA, x, wq(2,t), t == 0))
    a(f'v_max3_f32 v{T0}, v{SX}, v{SX+1}, v{SX+2}')
    for r in range(3, 15, 2): a(f'v_max3_f32 v{T0}, v{T0}, v{SX+r}, v{SX+r+1}')
    a(f'v_max_f32 v{T0}, v{T0}, v{SX+15}')
    for (d, x) in ((0,0),(1,2),(2,8),(3,10),(4,4),(5,6),(6,12),(7,14)): a(cvt(KA+d, KA+x, KA+x+1))
    a(f'''
    s_mov_b32 exec_lo, 0xff
    s_mov_b32 exec_hi, 0xff
    ds_write_b128 v{KWA}, {vr(KA)} offset:{LK}
    ds_write_b128 v{KWA}, {vr(KA+4)} offset:{LK+256}
    s_mov_b64 exec, -1
    ''')
    a(cvt(VA, VA, VA+1)); a(cvt(VA+1, VA+2, VA+3))
    a('s_waitcnt lgkmcnt(0)\ns_barrier')
    for k in range(8): a(f'ds_read_b128 {vr(KF+4*k)}, v{MRA} offset:{LK + (k>>1)*512 + (k&1)*256}')
    for k in range(8):
        a(f's_waitcnt lgkmcnt({7-k})')
        a(mf32(SM, vr(KF+4*k), vr(QF+4*k), k == 0))
    a(f'''
    v_max3_f32 v{T0}, v{T0}, v{SM}, v{SM+1}
    v_max3_f32 v{T0}, v{T0}, v{SM+2}, v{SM+3}
    v_mov_b32 v{T1}, v{T0}
    v_permlane32_swap_b32 v{T0}, v{T1}
    v_max_f32 v{T0}, v{T0}, v{T1}
    v_mul_f32 v{T0}, s{sC}, v{T0}
    ''')
    pairs = [SX+2*i for i in range(8)] + [SM, SM+2]
    for r in pairs:
        a(f'v_pk_fma_f32 {vr(r,2)}, {vr(r,2)}, s[{sC}:{sC+1}], {vr(T0,2)} op_sel_hi:[1,1,0] neg_lo:[0,0,1] neg_hi:[0,0,1]')
    for r in pairs: a(f'v_exp_f32 v{r}, v{r}\nv_exp_f32 v{r+1}, v{r+1}')
    SA = SM+4
    a(pkadd(SA, pairs[0], pairs[1]))
    for r in pairs[2:]: a(pkadd(SA, SA, r))
    a(f'''
    v_add_f32 v{T0}, v{SA}, v{SA+1}
    v_mov_b32 v{T1}, v{T0}
    v_permlane32_swap_b32 v{T0}, v{T1}
    v_add_f32 v{T0}, v{T0}, v{T1}
    v_rcp_f32 v{T0}, v{T0}
    ''')
    for r in pairs: a(f'v_pk_mul_f32 {vr(r,2)}, {vr(r,2)}, {vr(T0,2)} op_sel_hi:[1,0]')
    for aa in range(2):
        a(cvt(PX+4*aa, SX+4*aa, SX+4*aa+1)); a(cvt(PX+4*aa+1, SX+4*aa+2, SX+4*aa+3))
        a(cvt(PX+4*aa+2, SX+4*aa+8, SX+4*aa+9)); a(cvt(PX+4*aa+3, SX+4*aa+10, SX+4*aa+11))
    a(cvt(PM, SM, SM+1)); a(cvt(PM+1, SM+2, SM+3))
    a(mf32(OA, vr(VF), vr(PX), True))
    a(mf32(OA, vr(VF+4), vr(PX+4), False))
    a(f'v_mfma_f32_32x32x8_bf16 {vr(OA,16)}, {vr(VA,2)}, {vr(PM,2)}, {vr(OA,16)}')
    for i in range(8): a(cvt(OA+i, OA+2*i, OA+2*i+1))
    a(f'''
    buffer_store_dwordx4 {vr(OA)}, v{OLO}, {srd}, s{sO} offen sc1
    buffer_store_dwordx4 {vr(OA+4)}, v{OLO}, {srd}, s{sO} offen offset:512 sc1
    s_add_u32 s{sKW}, s{sKW}, {4*KV_SEG}
    s_add_u32 s{sQW}, s{sQW}, {4*QS_SEG}
    s_add_u32 s{sMH}, s{sMH}, {4*MH_STRIDE}
    s_add_u32 s{sO}, s{sO}, {4<<18}
    s_add_u32 s{sIT}, s{sIT}, 1
    s_waitcnt vmcnt(0)
    s_mov_b64 exec, 1
    buffer_store_dword v{TAGV}, v5, {srd}, s{sOF} offen sc1
    s_mov_b64 exec, -1
    s_add_u32 s{sOF}, s{sOF}, {4<<13}
    s_cmp_lt_u32 s{sIT}, 16
    s_cbranch_scc1 A_loop
    ''')
    pstamp(a, prof, 2)
```

```python
from common import *
import layouts as L

LDS_SC  = 0
LDS_OB  = 5120
LDS_GATE = 0
LDS_MEM = 7168
LDS_DUMMY = 5120
LDS_WO  = 16384

L16, PBST, SEL2, SEL2b, MW, MR, OW, WOA, IDX, ORD, T0, T1 = range(12)
SEL, PUB, TAGV, FLG = 12, 16, 18, 19
Q0, K0, Q1, K1, VA0, VA1 = 20, 24, 28, 32, 36, 40
KX, VX = 44, 52
def AQ(i): return 60 + 4*i
def AF(c): return AQ(c % 5)

def wreg(tile, c):
    idx = tile*9 + c
    if idx < 32: return f'a[{8*idx}:{8*idx+7}]'
    b = 80 + 8*(idx-32)
    return f'v[{b}:{b+7}]'
ACC = [Q0, K0, Q1, K1, VA0, VA1]

sW, sH, sSTEP, sTMP, sTMP2, sTO = 12, 13, 14, 15, 16, 17
sMBRD, sMBWR, sMBNX = 18, 19, 20
sPBR = 22
sKV, sMH = 23, 25
sRED = 26
sMLO, sMHI = 28, 30
sMG = 32
sMG2 = 30
sC = 34
sRT = 37
sMW = 38
sMB4, sMB8 = 39, 21
sPROF = 44
sPBW = 52

def smf(acc, a, b): return f'v_smfmac_f32_16x16x64_bf16 {vr(acc)}, {vr(a)}, {b}, v{IDX}'
mfma = mfma16

def consts(a):
    C, G, G1, X, Y, Z = AF(0), AF(0)+1, AF(0)+2, AF(0)+3, AF(1), AF(1)+1
    a(f'''
    v_and_b32 v{X}, 63, v0
    v_lshlrev_b32 v{L16}, 4, v{X}
    v_and_b32 v{C}, 15, v{X}              ; c
    v_lshrrev_b32 v{G}, 4, v{X}           ; g
    v_and_b32 v{G1}, 1, v{G}              ; g&1
    v_lshrrev_b32 v{PBST}, 1, v{G}
    v_lshlrev_b32 v{PBST}, 12, v{PBST}
    v_lshl_add_u32 v{PBST}, v{G1}, 3, v{PBST}
    v_lshl_add_u32 v{PBST}, v{C}, 4, v{PBST}
    v_mov_b32 v{Y}, {OOB}
    v_cmp_gt_u32 vcc, 8, v{C}
    v_cndmask_b32 v{PBST}, v{Y}, v{PBST}, vcc
    v_and_b32 v{Z}, 7, v{C}
    v_lshlrev_b32 v{Z}, 4, v{Z}
    v_lshrrev_b32 v{T0}, 3, v{C}           ; hb
    v_lshl_add_u32 v{MR}, v{T0}, 3, v{Z}       ; (c&7)*16 + hb*8
    v_lshl_add_u32 v{ORD}, v{G}, 7, v{Z}
    v_add_u32 v{ORD}, {LDS_OB}, v{ORD}
    v_lshl_add_u32 v{OW}, v{G}, 7, v{MR}
    s_lshl_b32 s{sTMP}, s{sW}, 9
    s_add_u32 s{sTMP}, s{sTMP}, {LDS_OB}
    v_add_u32 v{OW}, s{sTMP}, v{OW}
    v_lshl_add_u32 v{MR}, v{G1}, 7, v{MR}
    v_add_u32 v{MR}, 1024, v{MR}
    s_mul_i32 s{sTMP}, s{sW}, 1280
    s_mov_b32 s{sSCW}, s{sTMP}
    v_lshlrev_b32 v{MW}, 7, v{G1}
    v_lshl_add_u32 v{MW}, v{C}, 4, v{MW}
    v_add_u32 v{MW}, s{sTMP}, v{MW}
    v_add_u32 v{MW}, 1024, v{MW}
    s_mul_i32 s{sTMP}, s{sW}, 36864
    s_add_u32 s{sTMP}, s{sTMP}, {LDS_WO}
    v_add_u32 v{WOA}, s{sTMP}, v{L16}
    s_mov_b32 s{sMG2}, -1
    s_mov_b32 s{sMG2+1}, 0
    s_mov_b32 s66, 0
    s_mov_b32 s67, 0x00ff00ff
    s_mov_b32 s{sC}, 0x3e0293ee            ; 128^-0.5 * log2(e) = 0.12751743
    s_mov_b32 s{sC+1}, 0x3e0293ee
    ''')
    a(f'''
    v_and_b32 v{SEL}, 7, v{C}
    v_lshlrev_b32 v{SEL+1}, 2, v{G1}
    v_sub_u32 v{SEL}, v{SEL}, v{SEL+1}
    v_lshrrev_b32 v{SEL+1}, 3, v{C}
    v_lshlrev_b32 v{SEL+1}, 2, v{SEL+1}
    v_cmp_gt_u32 vcc, 4, v{SEL}
    v_add_u32 v{SEL}, v{SEL}, v{SEL+1}
    v_cndmask_b32 v{T1}, 15, v{SEL}, vcc
    ''')
    def onehot(base, ereg, n=4):
        for i in range(n):
            a(f'''
            v_mov_b32 v{base+i}, 0
            v_mov_b32 v{Y}, 0x3f80
            v_cmp_eq_u32 vcc, {2*i}, v{ereg}
            v_cndmask_b32 v{base+i}, v{base+i}, v{Y}, vcc
            v_mov_b32 v{Y}, 0x3f800000
            v_cmp_eq_u32 vcc, {2*i+1}, v{ereg}
            v_cndmask_b32 v{base+i}, v{base+i}, v{Y}, vcc
            ''')
    onehot(SEL, T1)
    a(f'v_and_b32 v{T1}, 3, v{C}')
    onehot(SEL2, T1, 2)
    a(f'''
    v_mov_b32 v{IDX}, 0x4444
    v_mov_b32 v{Y}, 0xeeee
    v_cmp_gt_u32 vcc, 8, v{C}
    v_cndmask_b32 v{IDX}, v{Y}, v{IDX}, vcc
    ''')

OPT = dict(dir=0, bp=3, lg=1, fg=1, z0=2, z1=3, z2=2, ld=2, l0=0, e2=1, sb=1, ts=0, fs=0, pf=1, noqkv=0, qorder=(0,1,2), kv0=0, nofl=0, f3gap=3, l2pos=0, rsh=2, elate=0, NQ1=72, q2gap=2, noattn=0, nofft=0, es=0, nopub=0, gate=1, g1=1, g2=2, ez=6, qz=12, qgap=0, ers=5, qs=0, NM=48, egap=2, mgap=4, lgap=1, nocheck=0)
sVW = 19
sOOB = 68
sKIND, sPBO, sMBO = 27, 36, 65
sPBX = sPBW + 9
sXA = 19
sKVF, sFM = 69, 2
sSCW = 64
sM1, sM2, sM8 = 18, 39, 21
sX = 40
sMW2, sMW3 = 42, 43
sMBW = 24
def gen_step(a, ST, LD, prof, tag):
    srd = SRD_WS
    P = Stamps(a, prof)
    ool = []
    LOOP = f'{tag}_loop'; DONE = f'{tag}_done'
    A4 = AQ(4)
    def cnt(i): return f's_add_u32 s{sPROF+i}, s{sPROF+i}, 1\n' if prof else ''
    def tmo(ok): return f's_add_u32 s{sRT}, s{sRT}, 1\ns_cmp_gt_u32 s{sRT}, 0x100000\ns_cbranch_scc1 {ok}\n'
    def br(lbl): return f's_cbranch_vccnz {lbl}' if not OPT['nocheck'] else 's_nop 0'
    def ld(so): return f'buffer_load_dwordx4 {vr(A4)}, v{L16}, {srd}, s{so} offen {LD}'
    def cmpu(r): return f'v_cmp_u_f32 vcc, v{r}, v{r+2}'
    AD3 = T0
    lda = (f'buffer_load_dwordx4 {vr(VX)}, v{L16}, {srd}, s{sM1} offen {LD}\n'
           f'buffer_load_dwordx4 {vr(VX+4)}, v{L16}, {srd}, s{sM1} offen offset:1024 {LD}')
    book = (f'v_cmp_eq_u32 s[{sFM}:{sFM+1}], v{TAGV}, v{FLG}\n'
            f's_add_u32 s{sTMP}, s{sKV}, {0 if OPT["kv0"] else KV_SEG}\ns_add_u32 s{sSTEP}, s{sSTEP}, 1')
    a(f'{LOOP}:')
    P('top')
    a(lda)
    a(f'v_add_u32 v{T1}, s{sMW}, v{L16}')
    for r in range(Q0, VA1+4, 2): a(f'v_mov_b64 {vr(r,2)}, 0')
    for c in range(2, 10): a(f's_xor_b32 s{sPBW+c}, s{sPBW+c}, {PB_STRIDE}')
    a(f'{tag}_la:')
    a(lda)
    a('s_waitcnt vmcnt(3)')
    a(f'v_cmp_u_f32 s[{sX}:{sX+1}], v{VX}, v{VX+2}')
    a(f'ds_write_b128 v{T1}, {vr(VX)}')
    a('s_waitcnt vmcnt(2)')
    a(cmpu(VX+4))
    a(f'ds_write_b128 v{T1}, {vr(VX+4)} offset:1024')
    a(f's_or_b64 vcc, vcc, s[{sX}:{sX+1}]')
    a(br(f'{tag}_rt0'))
    ool.append(f'{tag}_rt0:\n' + cnt(0) + tmo(f'{tag}_ok0') + f's_branch {tag}_la')
    a(f'{tag}_ok0:')
    P('mem0')
    a(book)
    a(f'v_add_u32 v{T1}, s{sMW3}, v{L16}')
    a('s_waitcnt lgkmcnt(0)')
    a('s_barrier')
    def rd(c): return f'ds_read_b128 {vr(AF(c))}, v{L16} offset:{LDS_MEM + 1024*c}'
    def M(c, n): return [smf(ACC[t], AF(c), wreg(t, c)) for t in range(n)]
    def dl(c): return f'buffer_load_dwordx4 {vr(AF(c))}, v{L16}, {srd}, s{sM2} offen offset:{(c-4)*1024} {LD}'
    ldb = f's_mov_b32 exec_hi, 0xffff\nbuffer_load_dwordx4 {vr(VX)}, v{L16}, {srd}, s{sM8} offen {LD}\ns_mov_b32 exec_hi, -1'
    chkb = f's_mov_b32 exec_hi, 0xffff\n{cmpu(VX)}\nds_write_b128 v{T1}, {vr(VX)}\ns_mov_b32 exec_hi, -1'
    for c in range(4): a(rd(c))
    P('barA')
    bp = OPT['bp']
    seq = []
    for c in range(4):
        seq.append(f's_waitcnt lgkmcnt({3-c})')
        for x in M(c, 6): seq.append(x)
    if not OPT['dir']:
        k = 0
        orx = f's_or_b64 vcc, vcc, s[{sX}:{sX+1}]'
        for x in seq:
            a(x)
            if x.startswith('v_smfmac'):
                if k == bp: a(dl(4))
                if k == bp+1: a(ldb)
                if k == max(bp+2, 6): a(dl(5))
                if k == 21: a('s_waitcnt vmcnt(2)'); a(cmpu(AF(4)))
                if OPT['qs'] and k in (5, 11, 17): P(f'c{k//6}')
                k += 1
        a(br(f'{tag}_rt2'))
        ool.append(f'{tag}_rt2:\n' + cnt(3) + tmo(f'{tag}_ok2') + dl(4) + '\n' + ldb + '\n' + dl(5) + '\ns_waitcnt vmcnt(2)\n' + cmpu(AF(4)) + '\n' + br(f'{tag}_rt2') + f'\ns_branch {tag}_ok2')
        a(f'{tag}_ok2:')
        if OPT['qs']: P('c3')
        m = M(4, 4)
        a(m[0]); a('s_waitcnt vmcnt(1)'); a(chkb); a(m[1]); a('s_waitcnt vmcnt(0)'); a(f'v_cmp_u_f32 s[{sX}:{sX+1}], v{AF(5)}, v{AF(5)+2}'); a(m[2])
        a(m[3]); a(orx); a(br(f'{tag}_rt1'))
        ool.append(f'{tag}_rt1:\n' + cnt(2) + tmo(f'{tag}_ok1') + ldb + '\n' + dl(5) + '\ns_waitcnt vmcnt(0)\n' + chkb + f'\nv_cmp_u_f32 s[{sX}:{sX+1}], v{AF(5)}, v{AF(5)+2}\ns_nop 1\n'
                   + orx + '\n' + br(f'{tag}_rt1') + f'\ns_branch {tag}_ok1')
        a(f'{tag}_ok1:')
        a(f's_bitcmp1_b64 s[{sFM}:{sFM+1}], s{sSTEP}')
    else:
        def dd(c): return f'buffer_load_dwordx4 {vr(AF(c))}, v{L16}, {srd}, s{sM2 if c < 8 else sM8} offen offset:{((c-4)%4)*1024} {LD}'
        k = 0
        when = {bp: 4, max(bp+1, 6): 5, 12: 6, 18: 7}
        for x in seq:
            a(x)
            if x.startswith('v_smfmac'):
                if k in when: a(dd(when[k]))
                if k == 21: a('s_waitcnt vmcnt(3)'); a(cmpu(AF(4)))
                if OPT['qs'] and k in (5, 11, 17): P(f'c{k//6}')
                k += 1
        def rt(n, hi):
            ool.append(f'{tag}_d{n}:\n' + cnt(2) + tmo(f'{tag}_dk{n}') + '\n'.join(dd(x) for x in range(n, hi+1)) + f'\ns_waitcnt vmcnt({hi-n})\n' + cmpu(AF(n)) + '\n' + br(f'{tag}_d{n}') + f'\ns_branch {tag}_dk{n}')
        a(br(f'{tag}_d4')); rt(4, 7); a(f'{tag}_dk4:')
        if OPT['qs']: P('c3')
        for c in range(4, 8):
            m = M(c, 4)
            a(m[0])
            if c == 4: a(dd(8))
            a(m[1]); a(f's_waitcnt vmcnt({8-c-1})'); a(cmpu(AF(c+1))); a(m[2]); a(m[3]); a(br(f'{tag}_d{c+1}')); rt(c+1, 8); a(f'{tag}_dk{c+1}:')
            if OPT['qs'] and c in (4, 5): P('x')
        a(f's_bitcmp1_b64 s[{sFM}:{sFM+1}], s{sSTEP}')
    a(f's_cbranch_scc0 {tag}_fl')
    a(f'{tag}_flok:')
    if OPT['ts']:
        a(f's_lshl_b32 s{sTO}, s{sH}, 2\ns_add_u32 s{sTO}, s{sTO}, s{sW}\ns_lshl_b32 s{sTO}, s{sTO}, 6\ns_add_u32 s{sTO}, s{sTO}, s{sSTEP}\ns_lshl_b32 s{sTO}, s{sTO}, 2\ns_add_u32 s{sTO}, s{sTO}, {WS_PROF+0x30000}')
        a(f'v_mov_b32 v{T0}, s{P.base+4}\ns_mov_b64 exec, 1\nbuffer_store_dword v{T0}, v{L16}, {srd}, s{sTO} offen\ns_mov_b64 exec, -1')
    ool.append(f'{tag}_fl:\n' + tmo(f'{tag}_flok') + f'v_lshrrev_b32 v{T0}, 2, v{L16}\nbuffer_load_dword v{FLG}, v{T0}, {srd}, s{sKVF} offen sc1\ns_waitcnt vmcnt(0)\n'
               f'v_cmp_eq_u32 s[{sFM}:{sFM+1}], v{TAGV}, v{FLG}\ns_nop 1\ns_bitcmp1_b64 s[{sFM}:{sFM+1}], s{sSTEP}\ns_cbranch_scc0 {tag}_fl\ns_branch {tag}_flok')
    assert not OPT['dir']
    late = []
    rops = [
        f'v_mov_b64 {vr(T0,2)}, -1\ns_mov_b32 exec_hi, 0\nbuffer_store_dwordx4 {vr(PUB)}, v{ORD}, {srd}, s{sOOB if OPT["nopub"] else sMH} offen sc1\ns_mov_b32 exec_hi, -1',
        f's_mov_b32 exec_hi, 0\nbuffer_store_dwordx2 {vr(T0,2)}, v{PBST}, {srd}, s{sMBO} offen {ST}\ns_mov_b32 exec_hi, -1\nv_lshlrev_b32 v{T1}, {OPT["rsh"]}, v{L16}',
        f'buffer_store_dword v{T0}, v{T1}, {srd}, s{sPBO} offen {ST}',
    ]
    m = M(5, 4)
    a(f's_cmp_eq_u64 s[{sFM}:{sFM+1}], -1')
    a(m[0])
    a(f's_cbranch_scc0 {tag}_fa')
    a(f'{tag}_fad:')
    ool.append(f'{tag}_fa:\nv_lshrrev_b32 v{T1}, 2, v{L16}\nbuffer_load_dword v{FLG}, v{T1}, {srd}, s{sKVF} offen sc1\ns_branch {tag}_fad')
    a(m[1]); a(m[2])
    a('s_waitcnt lgkmcnt(0)')
    a(m[3])
    a('s_barrier')
    if OPT['qs']: P('barB')
    a(rd(6)); a(rd(7)); a(rd(8))
    vv = M(4, 6)[4:] + M(5, 6)[4:]
    a(vv[0]); a(f'buffer_load_dwordx4 {vr(VX)}, v{L16}, {srd}, s{sKV} offen offset:2048 sc1')
    a(vv[1]); a(vv[2]); a(f'buffer_load_dwordx4 {vr(VX+4)}, v{L16}, {srd}, s{sKV} offen offset:3072 sc1'); a(vv[3])
    if OPT['qs']: P('c5')
    for c in range(6, 9):
        m = M(c, 4)
        a(f's_waitcnt lgkmcnt({8-c})')
        for k, x in enumerate(m):
            if c == 8 and k == 3: a(cvt(Q0, Q0, Q0+1))
            a(x)
            if k == 0: a(rops[c-6])
    P('qk')
    vq = [(t, c) for c in (6, 7, 8) for t in (4, 5)]
    def vm(n=1):
        for _ in range(n):
            t, c = vq.pop(0); a(smf(ACC[t], AF(c), wreg(t, c)))
    a(cvt(Q0+1, Q0+2, Q0+3)); a(cvt(Q0+2, K0, K0+1)); a(cvt(Q0+3, K0+2, K0+3))
    a(cvt(Q1, Q1, Q1+1)); a(cvt(Q1+1, Q1+2, Q1+3))
    a(mfma(K0, Q0, SEL))
    a(cvt(Q1+2, K1, K1+1)); a(cvt(Q1+3, K1+2, K1+3))
    a(mfma(K1, Q1, SEL))
    U = Q0
    a(cvt(U, K0, K0+1)); a(cvt(U+1, K0+2, K0+3))
    vm(1)
    a(cvt(U+2, K1, K1+1)); a(cvt(U+3, K1+2, K1+3))
    TX0, TX1, TM = K0, Q1, K1
    a(f'v_add_u32 v{T0}, s{sSCW}, v{L16}')
    a(mfma(TX0, KX, U)); a(mfma(TX1, KX+4, U)); a(mfma(TM, U, U))
    if not OPT['qs']: P('S')
    for r in range(4):
        a(f'v_mov_b32_dpp v{TX0+r}, v{TX1+r} row_ror:8 row_mask:0xf bank_mask:0xc')
    a(f'ds_write_b128 v{T0}, {vr(TX0)} offset:{LDS_SC}')
    a(f's_mov_b64 exec, s[66:67]')
    a(f'ds_write_b128 v{MW}, {vr(TM)} offset:{LDS_SC}')
    a(f's_mov_b64 exec, -1')
    vm(1)
    a(f'buffer_load_dwordx4 {vr(KX)}, v{L16}, {srd}, s{sTMP} offen sc1')
    vm(1)
    a(f'buffer_load_dwordx4 {vr(KX+4)}, v{L16}, {srd}, s{sTMP} offen offset:1024 sc1')
    vm(1)
    if not OPT['qs']: P('wr')
    a(f's_waitcnt lgkmcnt(0)')
    a('s_barrier')
    P('bar1')
    RD = AQ(0)
    a(f'ds_read_b128 {vr(RD)}, v{L16} offset:{LDS_SC}')
    a(f'ds_read_b128 {vr(RD+4)}, v{L16} offset:{LDS_SC+1280}')
    a(f'ds_read_b128 {vr(RD+8)}, v{L16} offset:{LDS_SC+2560}')
    a(f'ds_read_b128 {vr(TX0)}, v{L16} offset:{LDS_SC+3840}')
    MRD = Q1
    for w in range(4):
        a(f'ds_read_b64 {vr(MRD+2*w,2)}, v{MR} offset:{LDS_SC+1280*w}')
    vm(2)
    assert not vq
    a('s_waitcnt lgkmcnt(6)')
    a(pkadd(RD, RD, RD+4)); a(pkadd(RD+2, RD+2, RD+6))
    a('s_waitcnt lgkmcnt(4)')
    a(pkadd(TX0, TX0, RD+8)); a(pkadd(TX0+2, TX0+2, RD+10))
    a('s_waitcnt lgkmcnt(0)')
    a(pkadd(MRD, MRD, MRD+2)); a(pkadd(MRD+4, MRD+4, MRD+6))
    SX = RD; SM = MRD
    a(pkadd(SX, SX, TX0)); a(pkadd(SX+2, SX+2, TX0+2)); a(pkadd(SM, SM, MRD+4))
    MX = T0
    a(f'v_max3_f32 v{MX}, v{SX}, v{SX+1}, v{SX+2}')
    a(f'v_max3_f32 v{MX}, v{MX}, v{SX+3}, v{SM}')
    a(f'v_max_f32 v{MX}, v{MX}, v{SM+1}')
    if OPT['es']: P.k += 1; P.names.append('adds')
    elif not OPT['qs']: P('adds')
    def woread(i, buf): a(f'ds_read_b128 {vr(buf)}, v{WOA} offset:{i*1024}')
    WB = [K1, AQ(1), AQ(2), VX, VX+4, VA0, VA1]
    woread(1, WB[1]); woread(2, WB[2])
    a(f'v_max_f32_dpp v{MX}, v{MX}, v{MX} row_ror:8 row_mask:0xf bank_mask:0xf')
    a(f'v_mov_b32 v{T1}, v{MX}')
    VM = U
    a(cvt(VM, VA0, VA0+1)); a(cvt(VM+1, VA0+2, VA0+3))
    a(f'v_permlane16_swap_b32 v{MX}, v{T1}')
    a(f'v_max_f32 v{MX}, v{MX}, v{T1}')
    a(f'v_mov_b32 v{T1}, v{MX}')
    a(cvt(VM+2, VA1+2, VA1+3)); a(cvt(VM+3, VA1, VA1+1))
    a(f'v_permlane32_swap_b32 v{MX}, v{T1}')
    a(f'v_max_f32 v{MX}, v{MX}, v{T1}')
    a(f'v_mul_f32 v{MX}, s{sC}, v{MX}')
    for r in (SX, SX+2, SM):
        a(f'v_pk_fma_f32 {vr(r,2)}, {vr(r,2)}, s[{sC}:{sC+1}], {vr(MX,2)} op_sel_hi:[1,1,0] neg_lo:[0,0,1] neg_hi:[0,0,1]')
    for r in [SX, SX+1, SX+2, SX+3, SM, SM+1]: a(f'v_exp_f32 v{r}, v{r}')
    a('s_waitcnt vmcnt(5)')
    a(f'v_swap_b32 v{VX+4}, v{VX+6}')
    PR = TX0; PM = K1; VM = U
    a(cvt(PR, SX, SX+1)); a(cvt(PR+1, SX+2, SX+3)); a(cvt(PM, SM, SM+1))
    a(f'v_mov_b32_dpp v{PR+2}, v{PR} row_ror:8 row_mask:0xf bank_mask:0xf')
    a(f'v_mov_b32_dpp v{PR+3}, v{PR+1} row_ror:8 row_mask:0xf bank_mask:0xf')
    a(f'v_mov_b32_dpp v{PM+1}, v{PM} row_ror:8 row_mask:0xf bank_mask:0xf')
    a(f'v_swap_b32 v{VX+5}, v{VX+7}')
    if OPT['es']: P.k += 1; P.names.append('smax')
    elif not OPT['qs']: P('smax')
    PD = [AQ(3), AQ(4)]
    SUM = T0
    a(mfma(PD[0], VX, PR))
    a(f'v_add_f32 v{T1}, v{SM}, v{SM+1}')
    a(pkadd(SX, SX, SX+2))
    a(mfma(PD[1], VX+4, PR))
    a(f'v_cndmask_b32 v{T1}, 0, v{T1}, s[{sMG2}:{sMG2+1}]')
    a(f'v_add_f32 v{SUM}, v{SX}, v{SX+1}')
    a(f'v_mfma_f32_16x16x16_bf16 {vr(PD[0])}, {vr(VM,2)}, {vr(PM,2)}, {vr(PD[0])}')
    a(f'v_add_f32 v{SUM}, v{SUM}, v{T1}')
    a(f'v_mfma_f32_16x16x16_bf16 {vr(PD[1])}, {vr(VM+2,2)}, {vr(PM,2)}, {vr(PD[1])}')
    woread(0, WB[0]); woread(3, WB[3])
    a(f'v_add_f32_dpp v{SUM}, v{SUM}, v{SUM} row_ror:8 row_mask:0xf bank_mask:0xf')
    a(f'v_mov_b32 v{T1}, v{SUM}')
    for r in range(2): a(f'v_mov_b32_dpp v{PD[0]+r}, v{PD[1]+r} quad_perm:[0,1,2,3] row_mask:0xf bank_mask:0xc')
    a(f'v_permlane16_swap_b32 v{SUM}, v{T1}')
    a(f'v_add_f32 v{SUM}, v{SUM}, v{T1}')
    a(f'v_mov_b32 v{T1}, v{SUM}')
    for r in range(2,4): a(f'v_mov_b32_dpp v{PD[0]+r}, v{PD[1]+r} quad_perm:[0,1,2,3] row_mask:0xf bank_mask:0xc')
    a(f'v_permlane32_swap_b32 v{SUM}, v{T1}')
    a(f'v_add_f32 v{SUM}, v{SUM}, v{T1}')
    a(f'v_rcp_f32 v{SUM}, v{SUM}')
    O = PD[0]
    a('s_nop 0')
    for r in (0, 2): a(f'v_pk_mul_f32 {vr(O+r,2)}, {vr(O+r,2)}, {vr(SUM,2)} op_sel_hi:[1,0]')
    a(cvt(O, O, O+1)); a(cvt(O+1, O+2, O+3))
    a(f'ds_write_b64 v{OW}, {vr(O,2)}')
    if OPT['es']: P.k += 1; P.names.append('pv')
    else: P('pv')
    for i in range(4, 7): woread(i, WB[i])
    wrap = 0xfffcffff
    a(f"""
    s_add_u32 s{sM1}, s{sM1}, {MB_STRIDE}
    s_and_b32 s{sM1}, s{sM1}, {wrap}
    s_add_u32 s{sM8}, s{sM8}, {MB_STRIDE}
    s_and_b32 s{sM8}, s{sM8}, {wrap}
    s_add_u32 s{sM2}, s{sM2}, {MB_STRIDE}
    s_and_b32 s{sM2}, s{sM2}, {wrap}
    s_add_u32 s{sMBO}, s{sMBO}, {MB_STRIDE}
    s_and_b32 s{sMBO}, s{sMBO}, {wrap}
    """)
    a('s_waitcnt lgkmcnt(3)')
    a('s_barrier')
    if not OPT['qs']: P('bar2')
    if prof:
        a(f's_cmp_lg_u32 s{sSTEP}, 40\ns_cbranch_scc1 {tag}_nd')
        a(f's_lshl_b32 s{sTO}, s{sH}, 2\ns_add_u32 s{sTO}, s{sTO}, s{sW}\ns_lshl_b32 s{sTO}, s{sTO}, 7\ns_add_u32 s{sTO}, s{sTO}, {WS_PROF+0x20000}\ns_waitcnt lgkmcnt(0)\ns_mov_b64 exec, 1')
        for k in range(14): a(f'v_mov_b32 v{T0}, s{P.base+2*k}\nbuffer_store_dword v{T0}, v{L16}, {srd}, s{sTO} offen offset:{4*k}')
        a(f's_mov_b64 exec, -1\n{tag}_nd:')
    OA = [AQ(3), AQ(4), Q1, AQ(0)]
    for u in range(4): a(f'ds_read_b128 {vr(OA[u])}, v{ORD} offset:{u*512}')
    a(f"""
    s_add_u32 s{sMBW}, s{sMBW}, {MB_STRIDE}
    s_and_b32 s{sMBW}, s{sMBW}, {wrap}
    s_add_u32 s{sKV}, s{sKV}, {0 if OPT['kv0'] else KV_SEG}
    s_add_u32 s{sMH}, s{sMH}, {MH_STRIDE}
    s_xor_b32 s{sPBO}, s{sPBO}, {PB_STRIDE}
    s_cmp_eq_u32 s{sW}, 0
    """)
    a(f'v_add_u32 v{T0}, s{sXA}, v{L16}')
    NB = 7
    DD = [U, TX0]
    S2 = OA[0]; RDa = OA[3]
    own = lambda c: (WOA, c*4096, sPBW+c)
    X1 = (T0, 0, sPBX); X2 = (T1, 0, sPBX+1)
    T_W0 = [own(c) for c in range(6)]
    T_10 = [own(c) for c in range(7)] + [X1, own(7), own(8)]
    T_11 = T_10
    class St: pass
    st = St(); st.issued = NB; st.q = [4, 5, 6, 'o0', 'o1', 'o2', 'o3']
    def fork():
        n = St(); n.issued = st.issued; n.q = list(st.q); return n
    def need(S, ids):
        idx = max([S.q.index(x) for x in ids if x in S.q], default=-1)
        if idx >= 0:
            a(f's_waitcnt lgkmcnt({min(len(S.q)-1-idx, 15)})')
            del S.q[:idx+1]
    def post(T, c, k):
        d = DD[c % 2]
        if k == 0: a(cvt(d, d, d+1))
        if k == 1: a(cvt(d+1, d+2, d+3))
        if k == 2: a(f'buffer_store_dwordx2 {vr(d,2)}, v{PBST}, {srd}, s{T[c][2]} offen {ST}')
    def wread(S, T):
        i = S.issued; adr, imm, _ = T[i // 4]
        a(f'ds_read_b128 {vr(WB[i % NB])}, v{adr} offset:{imm + (i % 4)*1024}'); S.q.append(i); S.issued += 1
    s2b = {0: f'v_mov_b64 {vr(S2,2)}, 0\nv_mov_b64 {vr(S2+2,2)}, 0',
           1: f'v_mov_b32_dpp v{S2}, v{SEL2} quad_perm:[0,1,2,3] row_mask:0xf bank_mask:0x1',
           2: f'v_mov_b32_dpp v{S2+1}, v{SEL2+1} quad_perm:[0,1,2,3] row_mask:0xf bank_mask:0x1',
           3: f'v_mov_b32_dpp v{S2+2}, v{SEL2} quad_perm:[0,1,2,3] row_mask:0xf bank_mask:0x2\nv_mov_b32_dpp v{S2+3}, v{SEL2+1} quad_perm:[0,1,2,3] row_mask:0xf bank_mask:0x2'}
    def rload(R, i): return f'buffer_load_dwordx4 {vr(R[i])}, v{L16}, {srd}, s{sPBR} offen offset:{i*1024} {LD}'
    def slots(S, T, i0, i1, extra=None, red=False):
        N = 4*len(T)
        for i in range(i0, i1):
            c, u = divmod(i, 4)
            d = DD[c % 2]
            if c == 0: need(S, [f'o{u}'])
            elif u % 2 == 0: need(S, [i, i+1])
            a(mfma(d, WB[i % NB], OA[u], None if u == 0 else d))
            if S.issued < N and c > 0: wread(S, T)
            if extra and i in extra: a(extra[i])
            if c >= 2 and u >= 1: post(T, c-1, u-1)
            if red and c == len(T)-1: a(s2b[u])
        if i1 == N:
            for c in range(2): a(f's_xor_b32 s{sPBW+c}, s{sPBW+c}, {PB_STRIDE}')
            a(f's_cmp_eq_u32 s{sKIND}, 0')
            for k in range(3): post(T, len(T)-1, k)
    def zacc(o=None, lo=0, hi=12):
        for r in list(range(Q0, VA1+4, 2))[lo:hi]: a(f'v_mov_b64 {vr(r,2)}, 0')
    def xors(o=None):
        for c in range(2, 10): a(f's_xor_b32 s{sPBW+c}, s{sPBW+c}, {PB_STRIDE}')
    gwr = f'v_mov_b32 v{T0}, s{sSTEP}\nds_write_b32 v{L16}, v{T0} offset:{LDS_GATE}'
    def reduce(R, young, lbl, fail, gw=False):
        for i in range(4):
            a(f's_waitcnt vmcnt({young[i]})')
            a(mfma(RDa, S2, R[i], None if i == 0 else RDa))
        a('s_nop 6')
        a(f'{lbl}_c:')
        a(f'v_cmp_u_f32 vcc, v{RDa}, v{RDa}')
        for r in range(4): a(f'v_add_f32_dpp v{RDa+r}, v{RDa+r}, v{RDa+r} row_ror:8 row_mask:0xf bank_mask:0xf')
        a(cvt(PUB, RDa, RDa+1)); a(cvt(PUB+1, RDa+2, RDa+3))
        a(br(fail))
        a(f'{lbl}_ok:')
        a('s_mov_b32 exec_hi, 0')
        a(f'buffer_store_dwordx2 {vr(PUB,2)}, v{PBST}, {srd}, s{sMBW} offen {ST}')
        a('s_mov_b64 exec, -1')
        if gw: a(gwr)
        a(f's_xor_b32 s{sPBR}, s{sPBR}, {PB_STRIDE}')
        a(f's_cmp_eq_u32 s{sSTEP}, 63')
        a(f's_cbranch_scc1 {DONE}')
    def rl4(R): return '\n'.join(rload(R, i) for i in range(4))
    def plain_retry(R, lbl, okl, cl, site):
        ool.append(f'{lbl}:\n' + cnt(site) + tmo(okl) + rl4(R) + '\n' +
                   '\n'.join(f's_waitcnt vmcnt({3-i})\n' + mfma(RDa, S2, R[i], None if i == 0 else RDa) for i in range(4)) + f'\ns_nop 7\ns_branch {cl}')
    def gate(lbl):
        a(f'{lbl}:')
        a(f'ds_read_b32 v{T0}, v{L16} offset:{LDS_GATE}')
        a(tmo(f'{lbl}d'))
        a('s_waitcnt lgkmcnt(0)')
        a(f'v_cmp_ne_u32 vcc, s{sSTEP}, v{T0}')
        a(f's_cbranch_vccnz {lbl}')
        a(f'{lbl}d:')
    def PS(k):
        if prof: a(f's_memtime s[{P.base+2*k}:{P.base+2*k+1}]')
    kwo = P.k + (0 if OPT['qs'] else 1)
    R0 = [AQ(1), AQ(2), VX, VX+4]
    slots(st, T_11, 0, 4)
    for _ in range(4): wread(st, T_11)
    for k in range(3): post(T_11, 0, k)
    if not OPT['qs']: P('wo0')
    slots(st, T_11, 4, 16)
    S0 = fork()
    a(f's_cbranch_scc1 {tag}_w0')
    slots(st, T_11, 16, 29)
    S3e = fork()
    a(f's_cmp_eq_u32 s{sKIND}, 1')
    a(f's_cbranch_scc1 {tag}_w3e')
    slots(st, T_11, 29, 40, red=True)
    PS(kwo)
    a(f's_cbranch_scc1 {tag}_k2')
    zacc(); xors()
    if OPT['lg']: gate(f'{tag}_lgate')
    a(rl4(R0))
    if OPT['ld']:
        for i in range(OPT['ld']): a('s_nop 7')
        a(f'{tag}_l2:')
        a(rl4(R0))
        reduce(R0, [7, 6, 5, 4], f'{tag}_rl', f'{tag}_lf')
        ool.append(f'{tag}_lf:\n' + cnt(5) + tmo(f'{tag}_rl_ok') + f's_branch {tag}_l2')
    else:
        reduce(R0, [3, 2, 1, 0], f'{tag}_rl', f'{tag}_lf')
        plain_retry(R0, f'{tag}_lf', f'{tag}_rl_ok', f'{tag}_rl_c', 5)
    PS(kwo+1); PS(0)
    a('s_waitcnt vmcnt(1)')
    a(f's_branch {tag}_ok0')
    a(f'{tag}_w0:')
    a('s_nop 1')
    slots(S0, T_W0, 16, 24, red=True)
    P('wo')
    for i in range(OPT['z0']): a('s_nop 7')
    a(rl4(R0))
    for i in range(OPT['z1']): a('s_nop 7')
    a(f'{tag}_e2:')
    a(rl4(R0))
    reduce(R0, [7, 6, 5, 4], f'{tag}_re', f'{tag}_ef', gw=True)
    ool.append(f'{tag}_ef:\n' + cnt(1) + tmo(f'{tag}_re_ok') + f's_branch {tag}_e2')
    for i in range(OPT['z2']): a('s_nop 7')
    P('red')
    a(f's_branch {LOOP}')
    a(f'{tag}_k2:')
    a(f's_cmp_eq_u32 s{sSTEP}, 63')
    a(f's_cbranch_scc1 {tag}_end')
    a(f's_cmp_eq_u32 s{sW}, 3')
    a(f's_cbranch_scc1 {tag}_w3z')
    if OPT['fg']: gate(f'{tag}_gate')
    PS(kwo+1)
    a(f's_branch {LOOP}')
    a(f'{tag}_w3e:')
    R3 = [WB[i % NB] for i in range(33, 37)]
    slots(S3e, T_10, 29, 40, extra={33+i: rload(R3, i) for i in range(4)}, red=True)
    PS(kwo)
    reduce(R3, [6, 5, 4, 2], f'{tag}_r3', f'{tag}_3f')
    plain_retry(R3, f'{tag}_3f', f'{tag}_r3_ok', f'{tag}_r3_c', 4)
    a(f'{tag}_w3z:')
    zacc(); xors()
    PS(kwo+1); PS(0)
    a(f's_branch {tag}_ok0')
    for o in ool: a(o)
    a(f'{DONE}:')

def init_sgprs(a):
    srd = f's[{sWS}:{sWS+3}]'
    a(f'''
    s_mov_b32 s{sSTEP}, 0
    s_mov_b32 s{sRT}, 0
    s_mov_b32 s{sOOB}, 0x7f000000
    s_lshl_b32 s{sM1}, s{sW}, 10
    s_add_u32 s{sMW}, s{sM1}, {LDS_MEM}
    s_add_u32 s{sM1}, s{sM1}, {WS_MB+1024}
    s_mov_b32 s{sM2}, {WS_MB+1024+4096}
    s_mul_i32 s{sM8}, s{sW}, 768
    s_add_u32 s{sMW3}, s{sM8}, {LDS_MEM+6144}
    s_add_u32 s{sM8}, s{sM8}, {WS_MB+1024+6144}
    {'s_mov_b32 s%d, %d' % (sM8, WS_MB+1024+8192) if OPT['dir'] else ''}
    s_lshl_b32 s{sTMP}, s{sH}, 7
    s_lshl_b32 s{sTMP2}, s{sW}, 13
    s_add_u32 s{sPBW}, s{sTMP}, s{sTMP2}
    s_add_u32 s{sPBW}, s{sPBW}, {WS_PB}
    ''')
    for c in range(1, 9): a(f's_add_u32 s{sPBW+c}, s{sPBW}, {c*32768}')
    a(f'''
    s_lshl_b32 s{sTMP}, s{sH}, 2
    s_add_u32 s{sTMP}, s{sTMP}, s{sW}
    s_lshl_b32 s{sKV}, s{sTMP}, 12
    s_add_u32 s{sKV}, s{sKV}, {WS_KV}
    s_lshl_b32 s{sKVF}, s{sTMP}, 8
    s_add_u32 s{sKVF}, s{sKVF}, {WS_KVF}
    s_add_u32 s{sTMP}, s{sW}, 5
    s_lshl_b32 s{sXA}, s{sTMP}, 12
    s_add_u32 s{sXA}, s{sXA}, {LDS_WO}
    s_add_u32 s{sXA+1}, s{sXA}, {3*4096}
    s_lshl_b32 s{sPBX}, s{sTMP}, 15
    s_lshl_b32 s{sTMP2}, s{sH}, 7
    s_add_u32 s{sPBX}, s{sPBX}, s{sTMP2}
    s_add_u32 s{sPBX}, s{sPBX}, {WS_PB}
    s_add_u32 s{sPBX+1}, s{sPBX}, {3*32768}
    s_mov_b32 s{sKIND}, 0
    s_mov_b32 s{sTMP}, 72
    s_cmp_eq_u32 s{sW}, 0
    s_cselect_b32 s{sKIND}, 2, s{sKIND}
    s_cselect_b32 s{sTMP}, s{sH}, s{sTMP}
    s_add_u32 s{sTMP2}, s{sH}, 40
    s_cmp_eq_u32 s{sW}, 1
    s_cselect_b32 s{sKIND}, 2, s{sKIND}
    s_cselect_b32 s{sTMP}, s{sTMP2}, s{sTMP}
    s_add_u32 s{sTMP2}, s{sH}, 32
    s_cmp_eq_u32 s{sW}, 3
    s_cselect_b32 s{sTO}, s{sTMP2}, 99
    s_cmp_lt_u32 s{sTO}, 40
    s_cselect_b32 s{sKIND}, 1, s{sKIND}
    s_cselect_b32 s{sTMP}, s{sTO}, s{sTMP}
    s_lshl_b32 s{sPBR}, s{sTMP}, 12
    s_add_u32 s{sPBR}, s{sPBR}, {WS_PB}
    s_lshl_b32 s{sRED}, s{sTMP}, 7
    s_add_u32 s{sRED}, s{sRED}, 1024
    s_cmp_eq_u32 s{sKIND}, 0
    s_cselect_b32 s{sRED}, 0x7f000000, s{sRED}
    s_lshl_b32 s{sMH}, s{sTMP}, 8
    s_cmp_eq_u32 s{sKIND}, 0
    s_cselect_b32 s{sMH}, 0x7f000000, s{sMH}
    s_add_u32 s{sMH}, s{sMH}, {WS_MH - LDS_OB}
    s_add_u32 s{sMBO}, s{sRED}, {WS_MB+2*MB_STRIDE}
    s_add_u32 s{sMBW}, s{sRED}, {WS_MB}
    s_xor_b32 s{sPBO}, s{sPBR}, {PB_STRIDE}
    s_cmp_eq_u32 s{sKIND}, 0
    s_cselect_b32 s{sPBO}, 0x7f000000, s{sPBO}
    ''')

def gen_chain(a, prof=False):
    srd = SRD_WS
    sA, sB, sC3, sD = 72, 76, 80, 84
    sM0 = 88
    from qkv import pstamp
    a('R_chain:')
    pstamp(a, prof, 0, 76)
    make_srd(a, sA, KA_WQ, 576*8192); make_srd(a, sB, KA_WK, 576*8192); make_srd(a, sC3, KA_WV, 576*8192)
    make_srd(a, sD, KA_WO, 4096*1152); make_srd(a, sM0, KA_MEM0, 9216)
    a(f's_load_dwordx2 s[92:93], s[0:1], {KA_DBG}')
    TA = 44; TMPB = 20; WOV = 26
    a(f'''
    s_mov_b32 s{sW}, s{sWAVE}
    s_mov_b32 s{sH}, s{sRANK}
    s_mul_i32 s{sTMP2}, s{sW}, 36864
    s_add_u32 s94, s{sTMP2}, {LDS_WO}
    s_lshl_b32 s95, s{sH}, 8
    s_lshl_b32 s{sTMP}, s{sW}, 17
    s_add_u32 s95, s95, s{sTMP}             ; h*256 + w*16*8192
    s_mul_i32 s97, s{sH}, {128*1152}
    s_lshl_b32 s{sTMP}, s{sW}, 5
    s_add_u32 s97, s97, s{sTMP}             ; h*128*1152 + w*32
    v_and_b32 v28, 63, v0
    s_waitcnt lgkmcnt(0)
    ''')
    def after_issue():
        a(f'''
        v_lshrrev_b32 v29, 4, v28               ; g'
        v_bfe_u32 v30, v28, 2, 2                ; r4
        v_and_b32 v31, 3, v28                   ; c4
        v_and_b32 v32, 1, v30                   ; r4&1
        v_lshrrev_b32 v33, 1, v30               ; r4>>1
        v_and_b32 v34, 1, v29                   ; g'&1
        v_lshl_add_u32 v35, v33, 3, v32
        v_lshl_add_u32 v35, v34, 2, v35         ; row16
        v_lshl_add_u32 v36, v34, 1, v32
        v_lshl_add_u32 v36, v33, 2, v36         ; swz
        s_lshl_b32 s{sTMP}, s{sW}, 1
        v_xor_b32 v36, s{sTMP}, v36
        v_lshlrev_b32 v35, 8, v35
        v_lshl_add_u32 v35, v36, 5, v35
        v_lshl_add_u32 v35, v31, 3, v35
        v_lshrrev_b32 v37, 1, v29
        v_mul_u32_u24 v37, 36864, v37
        v_add_u32 v35, v35, v37
        v_add_u32 v{TA}, {LDS_WO}, v35
        v_xor_b32 v{TA+1}, 32, v{TA}
        v_add_u32 v{TA+2}, {2*36864}, v{TA}
        v_add_u32 v{TA+3}, {2*36864}, v{TA+1}
        v_lshrrev_b32 v{WOV}, 1, v28
        v_mul_u32_u24 v{WOV}, 1152, v{WOV}
        v_and_b32 v38, 1, v28
        v_lshl_add_u32 v{WOV}, v38, 4, v{WOV}
        v_lshrrev_b32 v39, 2, v28
        v_lshlrev_b32 v39, 5, v39
        v_lshl_add_u32 v39, v31, 3, v39
        v_add_u32 v39, s94, v39
        v_and_b32 v70, 7, v28
        v_mul_u32_u24 v70, 1152, v70
        v_lshl_add_u32 v70, v34, 3, v70
        ''')
        consts(a)
        init_sgprs(a)
        a(f'''
        v_mov_b32 v{TAGV}, s{sTAG}
        v_mov_b64 v[72:73], -1
        v_mov_b64 v[74:75], -1
        s_sub_u32 s{sTMP}, s{sRED}, 1024
        s_lshr_b32 s{sTMP}, s{sTMP}, 3
        buffer_load_dwordx2 {vr(PUB,2)}, v70, s[{sM0}:{sM0+3}], s{sTMP} offen
        ''')
        if DBG.get('noinit'): return 1
        for k in range(2):
            a(f's_add_u32 s{sTMP}, s{sPBR}, {k*PB_STRIDE}')
            for i in range(4): a(f'buffer_store_dwordx4 v[72:75], v{L16}, {srd}, s{sTMP} offen offset:{i*1024}')
        a('s_mov_b32 exec_hi, 0')
        for k in range(1, 4):
            a(f's_add_u32 s{sTMP}, s{sRED}, {WS_MB + k*MB_STRIDE}')
            a(f'buffer_store_dwordx2 v[72:73], v{PBST}, {srd}, s{sTMP} offen')
        a('s_mov_b32 exec_hi, -1')
        return 12
    def reads(m, c):
        out = []
        for t in range(2):
            tile = [0, 1, 4][m] + ([0, 2][t] if m < 2 else t)
            w = wreg(tile, c)
            k, lo = w[0], int(w[2:w.index(':')])
            for hb2 in range(2):
                for rh in range(2):
                    r = lo + 4*hb2 + 2*rh
                    out.append(f'ds_read_b64_tr_b16 {k}[{r}:{r+1}], v{TA+2*hb2+t} offset:{c*4096 + rh*512}')
        return out
    def wo_dma(c):
        if DBG.get('nowo'): return []
        return [f's_add_u32 s96, s97, {c*128 + j*32*1152}\ns_add_u32 m0, s94, {c*4096 + j*1024}\n'
                f'buffer_load_dwordx4 v{WOV}, s[{sD}:{sD+3}], s96 offen lds' for j in range(4)]
    pstamp(a, prof, 1, 76)
    def pr(m, c):
        n = 0
        if c == 8 and prof: pstamp(a, prof, 2+m, 76); n += 1
        if (m, c) == (1, 0) and not DBG.get('noinit'):
            a(f's_add_u32 s{sTMP}, s{sRED}, {WS_MB}')
            a(f's_mov_b32 exec_hi, 0\nbuffer_store_dwordx2 {vr(PUB,2)}, v{PBST}, {srd}, s{sTMP} offen')
            for k in range(0, 4):
                a(f's_add_u32 s{sTMP}, s{sRED}, {WS_MB + k*MB_STRIDE}')
                a(f'buffer_load_dwordx2 v[72:73], v{PBST}, {srd}, s{sTMP} offen sc1')
            a('s_mov_b32 exec_hi, -1')
            for k in range(2):
                a(f's_add_u32 s{sTMP}, s{sPBR}, {k*PB_STRIDE}')
                for i in range(4): a(f'buffer_load_dwordx4 v[72:75], v{L16}, {srd}, s{sTMP} offen offset:{i*1024} sc1')
            n += 13
        if (m, c) == (2, 2):
            a(f'''
            s_cmp_lg_u32 s{sW}, 0
            s_cbranch_scc1 C_noat
            s_mov_b64 exec, 1
            v_mov_b32 v70, 64
            v_mov_b32 v71, 1
            global_atomic_add v70, v71, s[92:93]
            s_mov_b64 exec, -1
C_noat:
            ''')
        return n
    cnt = stage_weights(a, 'C', [f's[{x}:{x+3}]' for x in (sA, sB, sC3)], reads, 'chain', LDS_WO, TMPB, [95, 96, 94],
                        extra_dma=wo_dma, after_issue=after_issue, post_read=pr)
    a(f'''
    v_mov_b32 v{T0}, 64
    v_lshrrev_b32 v{T1}, 2, v{L16}
    global_load_dword v76, v{T0}, s[92:93] sc1
    buffer_load_dword v{FLG}, v{T1}, {srd}, s{sKVF} offen sc1
    ''')
    cnt[-1] += 2
    for c in range(9):
        a(f's_waitcnt vmcnt({sum(cnt[27+c+1:]) + (2 if c == 8 else 0)})')
        b = 40 + 16*(c % 2)
        for u in range(4):
            for rh in range(2):
                a(f'ds_read_b64_tr_b16 v[{b+4*u+2*rh}:{b+4*u+2*rh+1}], v39 offset:{c*4096 + u*1024 + rh*512}')
        a('s_waitcnt lgkmcnt(0)')
        for u in range(4):
            a(f'ds_write_b128 v{WOA}, {vr(b+4*u)} offset:{(4*c+u)*1024}')
    if OPT['noqkv']:
        a('s_waitcnt vmcnt(0)'); pstamp(a, prof, 5, 76); a('s_endpgm')
    a(f'''
    s_waitcnt vmcnt(0)
    s_branch C_wi2
C_wi:
    global_load_dword v76, v{T0}, s[92:93] sc1
    buffer_load_dword v{FLG}, v{T1}, {srd}, s{sKVF} offen sc1
    s_waitcnt vmcnt(0)
C_wi2:
    v_readfirstlane_b32 s{sTMP}, v76
    v_cmp_eq_u32 s[{sFM}:{sFM+1}], v{TAGV}, v{FLG}
    s_add_u32 s{sRT}, s{sRT}, 1
    s_cmp_gt_u32 s{sRT}, 0x100000
    s_cbranch_scc1 C_wfd
    s_cmp_lt_u32 s{sTMP}, 32
    s_cbranch_scc1 C_wi
    s_bitcmp1_b64 s[{sFM}:{sFM+1}], 0
    s_cbranch_scc0 C_wi
C_wfd:
    s_waitcnt lgkmcnt(0)
    buffer_load_dwordx4 {vr(KX)}, v{L16}, {srd}, s{sKV} offen sc1
    buffer_load_dwordx4 {vr(KX+4)}, v{L16}, {srd}, s{sKV} offen offset:1024 sc1
    ''')
    pstamp(a, prof, 5, 76)
    if OPT['noqkv']: a('s_endpgm')
    for r in range(Q0, VA1+4, 2): a(f'v_mov_b64 {vr(r,2)}, 0')
    if prof:
        for i in range(8): a(f's_mov_b32 s{sPROF+i}, 0')
        a('s_memrealtime s[28:29]\ns_memtime s[32:33]')
    a(f's_bitcmp1_b32 s{sW}, 0\ns_cbranch_scc1 F_ok0')
    for c in range(2, 10): a(f's_xor_b32 s{sPBW+c}, s{sPBW+c}, {PB_STRIDE}')
    gen_step(a, '', 'sc1', prof, 'F')
    a(f'''
    s_mov_b32 exec_hi, 0
    buffer_store_dwordx4 {vr(PUB)}, v{ORD}, {srd}, s{sMH} offen sc1
    s_mov_b64 exec, -1
F_end:
    ''')
    if prof:
        a(f'''
        s_memrealtime s[30:31]
        s_memtime s[74:75]
        s_waitcnt lgkmcnt(0)
        s_sub_u32 s74, s74, s32
        s_lshl_b32 s{sTMP}, s{sH}, 2
        s_add_u32 s{sTMP}, s{sTMP}, s{sW}
        s_lshl_b32 s{sTMP}, s{sTMP}, 7
        s_add_u32 s{sTMP}, s{sTMP}, {WS_PROF}
        v_mov_b32 v1, 0
        ''')
        regs = [sPROF+i for i in range(8)] + [sPROF]*4 + [70, 28, 30, sRT] + [74+2*i for i in range(14)]
        for i, r in enumerate(regs):
            a(f'v_mov_b32 v2, s{r}\nbuffer_store_dword v2, v1, {srd}, s{sTMP} offen offset:{4*i}')
    a('s_endpgm')
```

```python
from asmlib import *
KA_AX, KA_WR, KA_WI, KA_BX, KA_MEM0, KA_WQ, KA_WK, KA_WV, KA_WO, KA_SEG, KA_OUT, KA_DBG, KA_WS = [8*i for i in range(13)]
WS_PB   = 0x800000
PB_STRIDE = 0x80000
WS_MB   = 0x100000
MB_STRIDE = 0x4000
WS_KVF  = 0x180000
WS_OF   = 0x700000
WS_EPOCH = 0x1f0000
WS_PROF = 0x200000
WS_KV   = 0x1000000
KV_SEG  = 32*16384
WS_Q    = 0x3200000
WS_MH   = 0x400000
MH_STRIDE = 0x8000
QS_SEG  = 32*8192
WS_O    = 0x5200000
WS_X1   = 0x6200000
WS_Y1   = 0x6600000
WS_SIZE = 0x10000000
OOB = 0x7ff00000
SOOB = 0x7f000000
sXCC, sRANK, sWAVE, sTAG = 4, 5, 6, 7
sWS = 8
SRD_WS = f's[{sWS}:{sWS+3}]'
def vr(b, n=4): return f'v[{b}:{b+n-1}]'
def ar(b, n=4): return f'a[{b}:{b+n-1}]'
def cvt(d, x, y): return f'v_cvt_pk_bf16_f32 v{d}, v{x}, v{y}'
def pkadd(d, x, y): return f'v_pk_add_f32 {vr(d,2)}, {vr(x,2)}, {vr(y,2)}'
def mfma16(d, a, b, c=None):
    return f'v_mfma_f32_16x16x32_bf16 {vr(d)}, {vr(a)}, {vr(b)}, {vr(c) if c is not None else 0}'

def make_srd(a, s, karg_off, nbytes):
    a(f'''
    s_load_dwordx2 s[{s}:{s+1}], s[0:1], {karg_off}
    s_mov_b32 s{s+2}, {nbytes}
    s_mov_b32 s{s+3}, 0x00020000
    ''')

DBG = {}
class Stamps:
    def __init__(self, a, on, base=74, n=14): self.a=a; self.on=on; self.base=base; self.k=0; self.n=n; self.names=[]
    def __call__(self, name):
        if self.on:
            assert self.k < self.n
            self.a(f's_memtime s[{self.base+2*self.k}:{self.base+2*self.k+1}]'); self.k += 1; self.names.append(name)

def stage_weights(a, tag, mats, nwave_reads, swz_kind, LDS_BASE, tmp, sT, extra_dma=None, after_issue=None, post_read=None):
    sHO, sOF, sLB = sT
    X, R = tmp+4, tmp+5
    a(f'''
    v_and_b32 v{X}, 63, v0
    v_lshrrev_b32 v{R}, 4, v{X}
    v_and_b32 v{X}, 15, v{X}
    ''')
    for j in range(4):
        if swz_kind == 'chain':
            a(f'v_and_b32 v{tmp+j}, 1, v{R}\nv_lshlrev_b32 v{tmp+j}, 1, v{tmp+j}\nv_xor_b32 v{tmp+j}, {j<<2}, v{tmp+j}')
        else:
            a(f'v_lshlrev_b32 v{tmp+j}, 2, v{R}')
        a(f'''
        v_xor_b32 v{tmp+j}, v{tmp+j}, v{X}
        v_lshlrev_b32 v{tmp+j}, 4, v{tmp+j}
        v_lshl_add_u32 v{tmp+j}, v{R}, 13, v{tmp+j}
        v_add_u32 v{tmp+j}, {j*4*8192}, v{tmp+j}
        ''')
    def dma(n):
        m, c = divmod(n, 9)
        out = []
        for j in range(4):
            out.append((f's_add_u32 s{sOF}, s{sHO}, {c*64*8192}\n' if j == 0 else '') + f's_add_u32 m0, s{sLB}, {c*4096 + j*1024}\n'
                       f'buffer_load_dwordx4 v{tmp+j}, {mats[m]}, s{sOF} offen lds')
        return out
    N = 9*len(mats)
    cnt = []
    def group(n):
        if n < N: return dma(n)
        if extra_dma is not None and n - N < 9: return extra_dma(n - N)
        return []
    for n in range(9):
        for x in group(n): a(x)
        cnt.append(4)
        if n < 8: a('s_barrier')
    if after_issue: cnt[-1] += after_issue() or 0
    for n in range(N):
        younger = sum(cnt[n+1:])
        a(f's_waitcnt vmcnt({min(younger,63)}) lgkmcnt(0)')
        if not DBG.get('nobar'): a('s_barrier')
        g = group(n-1+9) if n >= 1 else []
        if n >= 1: cnt.append(len(g))
        rds = nwave_reads(*divmod(n, 9))
        if DBG.get('notr'): rds = []
        for j in range(4):
            for ins in rds[2*j:2*j+2]: a(ins)
            if j < len(g): a(g[j])
        if post_read: cnt[-1] += post_read(*divmod(n, 9)) or 0
    a('s_waitcnt lgkmcnt(0)')
    a('s_barrier')
    g = group(N-1+9)
    for x in g: a(x)
    cnt.append(len(g))
    return cnt
```

```python
import sys
from common import *
import chain, qkv, fft, oproj
NAME = 'concat_heads__spectral_gfnet__memory_aug_recurrent_mem_tr__prompt_kernel'
def gen(prof=False, name=NAME):
    a = Asm()
    a('; @launch grid=(256,1,1) block=(256,1,1) lds=163840')
    a('.amdgcn_target "amdgcn-amd-amdhsa--gfx950"\n.text')
    a(kernel_header(name))
    a(f'''
    s_load_dwordx2 s[12:13], s[0:1], {KA_DBG}
    s_load_dwordx2 s[{sWS}:{sWS+1}], s[0:1], {KA_WS}
    s_getreg_b32 s{sXCC}, hwreg(HW_REG_XCC_ID)
    s_mov_b32 s{sWS+2}, {WS_SIZE}
    s_mov_b32 s{sWS+3}, 0x00020000
    ''')
    if prof: a('s_memrealtime s[70:71]')
    a(f'''
    s_and_b32 s{sXCC}, s{sXCC}, 7
    v_lshrrev_b32 v2, 6, v0
    v_mov_b32 v5, {WS_EPOCH}
    s_waitcnt lgkmcnt(0)
    buffer_load_dword v4, v5, {SRD_WS}, 0 offen sc1
    v_readfirstlane_b32 s{sWAVE}, v2
    v_cmp_eq_u32 vcc, 0, v0
    s_and_saveexec_b64 s[14:15], vcc
    s_cbranch_execz L_skip
    s_lshl_b32 s16, s{sXCC}, 2
    v_mov_b32 v1, s16
    v_mov_b32 v2, 1
    global_atomic_add v3, v1, v2, s[12:13] sc0
    v_mov_b32 v1, 0
    s_waitcnt vmcnt(0)
    ds_write_b32 v1, v3
    s_waitcnt lgkmcnt(0)
L_skip:
    s_mov_b64 exec, s[14:15]
    s_barrier
    v_mov_b32 v1, 0
    ds_read_b32 v3, v1
    s_waitcnt vmcnt(0) lgkmcnt(0)
    v_readfirstlane_b32 s{sRANK}, v3
    v_readfirstlane_b32 s{sTAG}, v4
    s_barrier
    s_add_u32 s{sTAG}, s{sTAG}, 1
    s_cmp_ge_u32 s{sRANK}, 32
    s_cbranch_scc1 L_exit
    s_getpc_b64 s[16:17]
L_pc:
    s_lshl_b32 s18, s{sRANK}, 12
    v_lshlrev_b32 v1, 4, v0
    v_add_u32 v1, s18, v1
    v_cmp_gt_u32 vcc, L_code_end - L_pc - 16, v1
    s_and_saveexec_b64 s[14:15], vcc
    s_cbranch_execz L_nopf
    global_load_dwordx4 v[60:63], v1, s[16:17]
L_nopf:
    s_mov_b64 exec, s[14:15]
    s_cmp_eq_u32 s{sXCC}, 0
    s_cbranch_scc1 R_chain
    ''')
    if chain.OPT['pf'] == 2:
        for i, k in enumerate((KA_WQ, KA_WK, KA_WV, KA_WO)): make_srd(a, 44+4*i, k, 576*8192)
        a(f'''
        s_sub_u32 s16, s{sXCC}, 1
        s_lshl_b32 s16, s16, 5
        s_add_u32 s16, s16, s{sRANK}
        s_lshl_b32 s16, s16, 2
        s_add_u32 s16, s16, s{sWAVE}
        s_mul_i32 s16, s16, 5376
        s_add_u32 s17, s16, 4096
        v_and_b32 v1, 63, v0
        v_lshlrev_b32 v1, 4, v1
        s_waitcnt lgkmcnt(0)
        ''')
        for i in range(4):
            for j in range(6):
                if j == 5: a('s_mov_b64 exec, 0xffff')
                a(f'buffer_load_dwordx4 v[60:63], v1, s[{44+4*i}:{47+4*i}], s{16 + j//4} offen offset:{(j%4)*1024}')
            a('s_mov_b64 exec, -1')
    a(f'''
    s_cmp_le_u32 s{sXCC}, 4
    s_cbranch_scc1 {'L_exit' if chain.OPT['noqkv'] else 'R_qkv'}
    s_branch {'L_exit' if chain.OPT['nofft'] else 'R_fft'}
L_exit:
    s_endpgm
    ''')
    qkv.gen_qkv(a, 'L_exit', prof)
    chain.gen_chain(a, prof)
    fft.gen_fft(a, prof)
    oproj.gen_oproj(a, prof)
    a('L_code_end:')
    a('.section .rodata,"a"')
    txt = a.render() + kernel_desc(name)
    for p in a.branch_check(): print('HAZ', p)
    return txt
if __name__ == '__main__':
    def out(n, prof, **kw):
        DBG.clear(); DBG.update(kw)
        old = dict(chain.OPT); chain.OPT.update(kw)
        open(f'mb/{n}.s', 'w').write(gen(prof, 'full_kernel')); chain.OPT.update(old)
    out('full', False); out('full_prof', True)
    hdr = ''.join(l for l in open('cdna_kernels/' + NAME[:-7] + '.s.ref') if l.startswith(';') and '@launch' not in l)
    open('cdna_kernels/' + NAME[:-7] + '.s', 'w').write(hdr + gen(False))
    for a in sys.argv[1:]:
        n, kw = a.split(':', 1); out(n, True, **eval(f'dict({kw})'))
```

```python
from common import *
import layouts as L

LDS_SC  = 0
LDS_OB  = 5120
LDS_GATE = 0
LDS_MEM = 7168
LDS_DUMMY = 5120
LDS_WO  = 16384

L16, PBST, SEL2, SEL2b, MW, MR, OW, WOA, IDX, ORD, T0, T1 = range(12)
SEL, PUB, TAGV, FLG = 12, 16, 18, 19
Q0, K0, Q1, K1, VA0, VA1 = 20, 24, 28, 32, 36, 40
KX, VX = 44, 52
def AQ(i): return 60 + 4*i
def AF(c): return AQ(c % 5)

def wreg(tile, c):
    idx = tile*9 + c
    if idx < 32: return f'a[{8*idx}:{8*idx+7}]'
    b = 80 + 8*(idx-32)
    return f'v[{b}:{b+7}]'
ACC = [Q0, K0, Q1, K1, VA0, VA1]

sW, sH, sSTEP, sTMP, sTMP2, sTO = 12, 13, 14, 15, 16, 17
sMBRD, sMBWR, sMBNX = 18, 19, 20
sPBR = 22
sKV, sMH = 23, 25
sRED = 26
sMLO, sMHI = 28, 30
sMG = 32
sMG2 = 30
sC = 34
sRT = 37
sMW = 38
sMB4, sMB8 = 39, 21
sPROF = 44
sPBW = 52

def smf(acc, a, b): return f'v_smfmac_f32_16x16x64_bf16 {vr(acc)}, {vr(a)}, {b}, v{IDX}'
mfma = mfma16

def consts(a):
    C, G, G1, X, Y, Z = AF(0), AF(0)+1, AF(0)+2, AF(0)+3, AF(1), AF(1)+1
    a(f'''
    v_and_b32 v{X}, 63, v0
    v_lshlrev_b32 v{L16}, 4, v{X}
    v_and_b32 v{C}, 15, v{X}              ; c
    v_lshrrev_b32 v{G}, 4, v{X}           ; g
    v_and_b32 v{G1}, 1, v{G}              ; g&1
    v_lshrrev_b32 v{PBST}, 1, v{G}
    v_lshlrev_b32 v{PBST}, 12, v{PBST}
    v_lshl_add_u32 v{PBST}, v{G1}, 3, v{PBST}
    v_lshl_add_u32 v{PBST}, v{C}, 4, v{PBST}
    v_mov_b32 v{Y}, {OOB}
    v_cmp_gt_u32 vcc, 8, v{C}
    v_cndmask_b32 v{PBST}, v{Y}, v{PBST}, vcc
    v_and_b32 v{Z}, 7, v{C}
    v_lshlrev_b32 v{Z}, 4, v{Z}
    v_lshrrev_b32 v{T0}, 3, v{C}           ; hb
    v_lshl_add_u32 v{MR}, v{T0}, 3, v{Z}       ; (c&7)*16 + hb*8
    v_lshl_add_u32 v{ORD}, v{G}, 7, v{Z}
    v_add_u32 v{ORD}, {LDS_OB}, v{ORD}
    v_lshl_add_u32 v{OW}, v{G}, 7, v{MR}
    s_lshl_b32 s{sTMP}, s{sW}, 9
    s_add_u32 s{sTMP}, s{sTMP}, {LDS_OB}
    v_add_u32 v{OW}, s{sTMP}, v{OW}
    v_lshl_add_u32 v{MR}, v{G1}, 7, v{MR}
    v_add_u32 v{MR}, 1024, v{MR}
    s_mul_i32 s{sTMP}, s{sW}, 1280
    s_mov_b32 s{sSCW}, s{sTMP}
    v_lshlrev_b32 v{MW}, 7, v{G1}
    v_lshl_add_u32 v{MW}, v{C}, 4, v{MW}
    v_add_u32 v{MW}, s{sTMP}, v{MW}
    v_add_u32 v{MW}, 1024, v{MW}
    s_mul_i32 s{sTMP}, s{sW}, 36864
    s_add_u32 s{sTMP}, s{sTMP}, {LDS_WO}
    v_add_u32 v{WOA}, s{sTMP}, v{L16}
    s_mov_b32 s{sMG2}, -1
    s_mov_b32 s{sMG2+1}, 0
    s_mov_b32 s66, 0
    s_mov_b32 s67, 0x00ff00ff
    s_mov_b32 s{sC}, 0x3e0293ee            ; 128^-0.5 * log2(e) = 0.12751743
    s_mov_b32 s{sC+1}, 0x3e0293ee
    ''')
    a(f'''
    v_and_b32 v{SEL}, 7, v{C}
    v_lshlrev_b32 v{SEL+1}, 2, v{G1}
    v_sub_u32 v{SEL}, v{SEL}, v{SEL+1}
    v_lshrrev_b32 v{SEL+1}, 3, v{C}
    v_lshlrev_b32 v{SEL+1}, 2, v{SEL+1}
    v_cmp_gt_u32 vcc, 4, v{SEL}
    v_add_u32 v{SEL}, v{SEL}, v{SEL+1}
    v_cndmask_b32 v{T1}, 15, v{SEL}, vcc
    ''')
    def onehot(base, ereg, n=4):
        for i in range(n):
            a(f'''
            v_mov_b32 v{base+i}, 0
            v_mov_b32 v{Y}, 0x3f80
            v_cmp_eq_u32 vcc, {2*i}, v{ereg}
            v_cndmask_b32 v{base+i}, v{base+i}, v{Y}, vcc
            v_mov_b32 v{Y}, 0x3f800000
            v_cmp_eq_u32 vcc, {2*i+1}, v{ereg}
            v_cndmask_b32 v{base+i}, v{base+i}, v{Y}, vcc
            ''')
    onehot(SEL, T1)
    a(f'v_and_b32 v{T1}, 3, v{C}')
    onehot(SEL2, T1, 2)
    a(f'''
    v_mov_b32 v{IDX}, 0x4444
    v_mov_b32 v{Y}, 0xeeee
    v_cmp_gt_u32 vcc, 8, v{C}
    v_cndmask_b32 v{IDX}, v{Y}, v{IDX}, vcc
    ''')

OPT = dict(p0=0, lz=6, fdelay=0, dir=0, bp=3, lg=1, fg=1, z0=0, z1=3, z2=0, ld=2, l0=0, e2=1, sb=1, ts=0, fs=0, pf=1, noqkv=0, qorder=(0,1,2), kv0=0, nofl=0, f3gap=3, l2pos=0, rsh=2, elate=0, NQ1=72, q2gap=2, noattn=0, nofft=0, es=0, nopub=0, gate=1, g1=1, g2=0, ez=6, qz=12, qgap=0, ers=5, qs=0, NM=48, egap=2, mgap=4, lgap=1, nocheck=0)
sVW = 19
sOOB = 68
sKIND, sPBO, sMBO = 27, 36, 65
sPBX = sPBW + 9
sXA = 19
sKVF, sFM = 69, 2
sSCW = 64
sM1, sM2, sM8 = 18, 39, 21
sX = 40
sMW2, sMW3 = 42, 43
sMBW = 24
def gen_step(a, ST, LD, prof, tag):
    srd = SRD_WS
    P = Stamps(a, prof)
    ool = []
    LOOP = f'{tag}_loop'; DONE = f'{tag}_done'
    A4 = AQ(4)
    def cnt(i): return f's_add_u32 s{sPROF+i}, s{sPROF+i}, 1\n' if prof else ''
    def tmo(ok): return f's_add_u32 s{sRT}, s{sRT}, 1\ns_cmp_gt_u32 s{sRT}, 0x100000\ns_cbranch_scc1 {ok}\n'
    def br(lbl): return f's_cbranch_vccnz {lbl}' if not OPT['nocheck'] else 's_nop 0'
    def ld(so): return f'buffer_load_dwordx4 {vr(A4)}, v{L16}, {srd}, s{so} offen {LD}'
    def cmpu(r): return f'v_cmp_u_f32 vcc, v{r}, v{r+2}'
    AD3 = T0
    lda = (f'buffer_load_dwordx4 {vr(VX)}, v{L16}, {srd}, s{sM1} offen {LD}\n'
           f'buffer_load_dwordx4 {vr(VX+4)}, v{L16}, {srd}, s{sM1} offen offset:1024 {LD}')
    book = (f'v_cmp_eq_u32 s[{sFM}:{sFM+1}], v{TAGV}, v{FLG}\n'
            f's_add_u32 s{sTMP}, s{sKV}, {0 if OPT["kv0"] else KV_SEG}\ns_add_u32 s{sSTEP}, s{sSTEP}, 1')
    a(f'{LOOP}:')
    P('top')
    a(lda)
    a(f'v_add_u32 v{T1}, s{sMW}, v{L16}')
    for r in range(Q0, VA1+4, 2): a(f'v_mov_b64 {vr(r,2)}, 0')
    for c in range(2, 10): a(f's_xor_b32 s{sPBW+c}, s{sPBW+c}, {PB_STRIDE}')
    a(f'{tag}_la:')
    a(lda)
    a('s_waitcnt vmcnt(3)')
    a(f'v_cmp_u_f32 s[{sX}:{sX+1}], v{VX}, v{VX+2}')
    a(f'ds_write_b128 v{T1}, {vr(VX)}')
    a('s_waitcnt vmcnt(2)')
    a(cmpu(VX+4))
    a(f'ds_write_b128 v{T1}, {vr(VX+4)} offset:1024')
    a(f's_or_b64 vcc, vcc, s[{sX}:{sX+1}]')
    a(br(f'{tag}_rt0'))
    ool.append(f'{tag}_rt0:\n' + cnt(0) + tmo(f'{tag}_ok0') + f's_branch {tag}_la')
    a(f'{tag}_ok0:')
    P('mem0')
    a(book)
    a(f'v_add_u32 v{T1}, s{sMW3}, v{L16}')
    a('s_waitcnt lgkmcnt(0)')
    a('s_barrier')
    def rd(c): return f'ds_read_b128 {vr(AF(c))}, v{L16} offset:{LDS_MEM + 1024*c}'
    def M(c, n): return [smf(ACC[t], AF(c), wreg(t, c)) for t in range(n)]
    def dl(c): return f'buffer_load_dwordx4 {vr(AF(c))}, v{L16}, {srd}, s{sM2} offen offset:{(c-4)*1024} {LD}'
    ldb = f's_mov_b32 exec_hi, 0xffff\nbuffer_load_dwordx4 {vr(VX)}, v{L16}, {srd}, s{sM8} offen {LD}\ns_mov_b32 exec_hi, -1'
    chkb = f's_mov_b32 exec_hi, 0xffff\n{cmpu(VX)}\nds_write_b128 v{T1}, {vr(VX)}\ns_mov_b32 exec_hi, -1'
    for c in range(4): a(rd(c))
    P('barA')
    bp = OPT['bp']
    seq = []
    for c in range(4):
        seq.append(f's_waitcnt lgkmcnt({3-c})')
        for x in M(c, 6): seq.append(x)
    if not OPT['dir']:
        k = 0
        orx = f's_or_b64 vcc, vcc, s[{sX}:{sX+1}]'
        for x in seq:
            a(x)
            if x.startswith('v_smfmac'):
                if k == bp: a(dl(4))
                if k == bp+1: a(ldb)
                if k == max(bp+2, 6): a(dl(5))
                if k == 21: a('s_waitcnt vmcnt(2)'); a(cmpu(AF(4)))
                if OPT['qs'] and k in (5, 11, 17): P(f'c{k//6}')
                k += 1
        a(br(f'{tag}_rt2'))
        ool.append(f'{tag}_rt2:\n' + cnt(3) + tmo(f'{tag}_ok2') + dl(4) + '\n' + ldb + '\n' + dl(5) + '\ns_waitcnt vmcnt(2)\n' + cmpu(AF(4)) + '\n' + br(f'{tag}_rt2') + f'\ns_branch {tag}_ok2')
        a(f'{tag}_ok2:')
        if OPT['qs']: P('c3')
        m = M(4, 4)
        a(m[0]); a('s_waitcnt vmcnt(1)'); a(chkb); a(m[1]); a('s_waitcnt vmcnt(0)'); a(f'v_cmp_u_f32 s[{sX}:{sX+1}], v{AF(5)}, v{AF(5)+2}'); a(m[2])
        a(m[3]); a(orx); a(br(f'{tag}_rt1'))
        ool.append(f'{tag}_rt1:\n' + cnt(2) + tmo(f'{tag}_ok1') + ldb + '\n' + dl(5) + '\ns_waitcnt vmcnt(0)\n' + chkb + f'\nv_cmp_u_f32 s[{sX}:{sX+1}], v{AF(5)}, v{AF(5)+2}\ns_nop 1\n'
                   + orx + '\n' + br(f'{tag}_rt1') + f'\ns_branch {tag}_ok1')
        a(f'{tag}_ok1:')
        a(f's_bitcmp1_b64 s[{sFM}:{sFM+1}], s{sSTEP}')
        a('s_waitcnt lgkmcnt(0)')
        a('s_barrier')
        if OPT['qs']: P('barB')
        a(rd(6)); a(rd(7)); a(rd(8))
    else:
        def dd(c): return f'buffer_load_dwordx4 {vr(AF(c))}, v{L16}, {srd}, s{sM2 if c < 8 else sM8} offen offset:{((c-4)%4)*1024} {LD}'
        k = 0
        when = {bp: 4, max(bp+1, 6): 5, 12: 6, 18: 7}
        for x in seq:
            a(x)
            if x.startswith('v_smfmac'):
                if k in when: a(dd(when[k]))
                if k == 21: a('s_waitcnt vmcnt(3)'); a(cmpu(AF(4)))
                if OPT['qs'] and k in (5, 11, 17): P(f'c{k//6}')
                k += 1
        def rt(n, hi):
            ool.append(f'{tag}_d{n}:\n' + cnt(2) + tmo(f'{tag}_dk{n}') + '\n'.join(dd(x) for x in range(n, hi+1)) + f'\ns_waitcnt vmcnt({hi-n})\n' + cmpu(AF(n)) + '\n' + br(f'{tag}_d{n}') + f'\ns_branch {tag}_dk{n}')
        a(br(f'{tag}_d4')); rt(4, 7); a(f'{tag}_dk4:')
        if OPT['qs']: P('c3')
        for c in range(4, 8):
            m = M(c, 4)
            a(m[0])
            if c == 4: a(dd(8))
            a(m[1]); a(f's_waitcnt vmcnt({8-c-1})'); a(cmpu(AF(c+1))); a(m[2]); a(m[3]); a(br(f'{tag}_d{c+1}')); rt(c+1, 8); a(f'{tag}_dk{c+1}:')
            if OPT['qs'] and c in (4, 5): P('x')
        a(f's_bitcmp1_b64 s[{sFM}:{sFM+1}], s{sSTEP}')
    a(f's_cbranch_scc0 {tag}_fl')
    a(f'{tag}_flok:')
    if OPT['ts']:
        a(f's_lshl_b32 s{sTO}, s{sH}, 2\ns_add_u32 s{sTO}, s{sTO}, s{sW}\ns_lshl_b32 s{sTO}, s{sTO}, 6\ns_add_u32 s{sTO}, s{sTO}, s{sSTEP}\ns_lshl_b32 s{sTO}, s{sTO}, 2\ns_add_u32 s{sTO}, s{sTO}, {WS_PROF+0x30000}')
        a(f'v_mov_b32 v{T0}, s{P.base+4}\ns_mov_b64 exec, 1\nbuffer_store_dword v{T0}, v{L16}, {srd}, s{sTO} offen\ns_mov_b64 exec, -1')
    ool.append(f'{tag}_fl:\n' + tmo(f'{tag}_flok') + f'v_lshrrev_b32 v{T0}, 2, v{L16}\nbuffer_load_dword v{FLG}, v{T0}, {srd}, s{sKVF} offen sc1\ns_waitcnt vmcnt(0)\n'
               f'v_cmp_eq_u32 s[{sFM}:{sFM+1}], v{TAGV}, v{FLG}\ns_nop 1\ns_bitcmp1_b64 s[{sFM}:{sFM+1}], s{sSTEP}\ns_cbranch_scc0 {tag}_fl\ns_branch {tag}_flok')
    assert not OPT['dir']
    late = []
    rops = [
        f'v_mov_b64 {vr(T0,2)}, -1\ns_mov_b32 exec_hi, 0\nbuffer_store_dwordx4 {vr(PUB)}, v{ORD}, {srd}, s{sOOB if OPT["nopub"] else sMH} offen sc1',
        f'buffer_store_dwordx2 {vr(T0,2)}, v{PBST}, {srd}, s{sMBO} offen {ST}\ns_mov_b32 exec_hi, -1\nv_lshlrev_b32 v{T1}, {OPT["rsh"]}, v{L16}',
        f'buffer_store_dword v{T0}, v{T1}, {srd}, s{sPBO} offen {ST}',
    ]
    m = M(5, 4)
    a(f's_cmp_eq_u64 s[{sFM}:{sFM+1}], -1')
    a(m[0])
    a(f's_cbranch_scc0 {tag}_fa')
    a(f'{tag}_fad:')
    ool.append(f'{tag}_fa:\nv_lshrrev_b32 v{T1}, 2, v{L16}\nbuffer_load_dword v{FLG}, v{T1}, {srd}, s{sKVF} offen sc1\ns_branch {tag}_fad')
    a(m[1]); a(f'buffer_load_dwordx4 {vr(VX)}, v{L16}, {srd}, s{sKV} offen offset:2048 sc1')
    a(m[2]); a(m[3]); a(f'buffer_load_dwordx4 {vr(VX+4)}, v{L16}, {srd}, s{sKV} offen offset:3072 sc1')
    if OPT['qs']: P('c5')
    m = M(6, 4)
    a('s_waitcnt lgkmcnt(2)')
    for k in range(4):
        a(m[k])
        if k < 3: a(rops[k])
    for c in range(7, 9):
        m = M(c, 4)
        a(f's_waitcnt lgkmcnt({8-c})')
        for k, x in enumerate(m):
            if c == 8 and k == 3: a(cvt(Q0, Q0, Q0+1))
            a(x)
    P('qk')
    vq = [(t, c) for c in (5, 6, 7, 4, 8) for t in (4, 5)]
    def vm(n=1):
        for _ in range(n):
            t, c = vq.pop(0); a(smf(ACC[t], AF(c), wreg(t, c)))
    a(cvt(Q0+1, Q0+2, Q0+3)); a(cvt(Q0+2, K0, K0+1)); a(cvt(Q0+3, K0+2, K0+3))
    a(cvt(Q1, Q1, Q1+1)); a(cvt(Q1+1, Q1+2, Q1+3))
    a(mfma(K0, Q0, SEL))
    a(cvt(Q1+2, K1, K1+1)); a(cvt(Q1+3, K1+2, K1+3))
    a(mfma(K1, Q1, SEL))
    U = Q0
    a(cvt(U, K0, K0+1)); a(cvt(U+1, K0+2, K0+3))
    vm(1)
    a(cvt(U+2, K1, K1+1)); a(cvt(U+3, K1+2, K1+3))
    TX0, TX1, TM = K0, Q1, K1
    a(f'v_add_u32 v{T0}, s{sSCW}, v{L16}')
    a(mfma(TX0, KX, U)); a(mfma(TX1, KX+4, U)); a(mfma(TM, U, U))
    if not OPT['qs']: P('S')
    for r in range(4):
        a(f'v_mov_b32_dpp v{TX0+r}, v{TX1+r} row_ror:8 row_mask:0xf bank_mask:0xc')
    a(f'ds_write_b128 v{T0}, {vr(TX0)} offset:{LDS_SC}')
    a(f's_mov_b64 exec, s[66:67]')
    a(f'ds_write_b128 v{MW}, {vr(TM)} offset:{LDS_SC}')
    a(f's_mov_b64 exec, -1')
    vm(1)
    a(f'buffer_load_dwordx4 {vr(KX)}, v{L16}, {srd}, s{sTMP} offen sc1')
    vm(1)
    a(f'buffer_load_dwordx4 {vr(KX+4)}, v{L16}, {srd}, s{sTMP} offen offset:1024 sc1')
    for _ in range(3):
        vm(1)
        for x in late[:2]: a(x)
        late = late[2:]
    assert not late
    if not OPT['qs']: P('wr')
    a(f's_waitcnt lgkmcnt(0)')
    a('s_barrier')
    P('bar1')
    RD = AQ(0)
    a(f'ds_read_b128 {vr(RD)}, v{L16} offset:{LDS_SC}')
    a(f'ds_read_b128 {vr(RD+4)}, v{L16} offset:{LDS_SC+1280}')
    vm(1)
    a(f'ds_read_b128 {vr(RD+8)}, v{L16} offset:{LDS_SC+2560}')
    a(f'ds_read_b128 {vr(TX0)}, v{L16} offset:{LDS_SC+3840}')
    vm(1)
    MRD = Q1
    for w in range(4):
        a(f'ds_read_b64 {vr(MRD+2*w,2)}, v{MR} offset:{LDS_SC+1280*w}')
        if w == 1: vm(1)
    vm(1)
    assert not vq
    a('s_waitcnt lgkmcnt(6)')
    a(pkadd(RD, RD, RD+4)); a(pkadd(RD+2, RD+2, RD+6))
    a('s_waitcnt lgkmcnt(4)')
    a(pkadd(TX0, TX0, RD+8)); a(pkadd(TX0+2, TX0+2, RD+10))
    a('s_waitcnt lgkmcnt(0)')
    a(pkadd(MRD, MRD, MRD+2)); a(pkadd(MRD+4, MRD+4, MRD+6))
    SX = RD; SM = MRD
    a(pkadd(SX, SX, TX0)); a(pkadd(SX+2, SX+2, TX0+2)); a(pkadd(SM, SM, MRD+4))
    MX = T0
    a(f'v_max3_f32 v{MX}, v{SX}, v{SX+1}, v{SX+2}')
    a(f'v_max3_f32 v{MX}, v{MX}, v{SX+3}, v{SM}')
    a(f'v_max_f32 v{MX}, v{MX}, v{SM+1}')
    if OPT['es']: P.k += 1; P.names.append('adds')
    elif not OPT['qs']: P('adds')
    def woread(i, buf): a(f'ds_read_b128 {vr(buf)}, v{WOA} offset:{i*1024}')
    WB = [K1, AQ(1), AQ(2), VX, VX+4, VA0, VA1]
    woread(1, WB[1]); woread(2, WB[2])
    a(f'v_max_f32_dpp v{MX}, v{MX}, v{MX} row_ror:8 row_mask:0xf bank_mask:0xf')
    a(f'v_mov_b32 v{T1}, v{MX}')
    VM = U
    a(cvt(VM, VA0, VA0+1)); a(cvt(VM+1, VA0+2, VA0+3))
    a(f'v_permlane16_swap_b32 v{MX}, v{T1}')
    a(f'v_max_f32 v{MX}, v{MX}, v{T1}')
    a(f'v_mov_b32 v{T1}, v{MX}')
    a(cvt(VM+2, VA1+2, VA1+3)); a(cvt(VM+3, VA1, VA1+1))
    a(f'v_permlane32_swap_b32 v{MX}, v{T1}')
    a(f'v_max_f32 v{MX}, v{MX}, v{T1}')
    a(f'v_mul_f32 v{MX}, s{sC}, v{MX}')
    for r in (SX, SX+2, SM):
        a(f'v_pk_fma_f32 {vr(r,2)}, {vr(r,2)}, s[{sC}:{sC+1}], {vr(MX,2)} op_sel_hi:[1,1,0] neg_lo:[0,0,1] neg_hi:[0,0,1]')
    for r in [SX, SX+1, SX+2, SX+3, SM, SM+1]: a(f'v_exp_f32 v{r}, v{r}')
    a('s_waitcnt vmcnt(5)')
    a(f'v_swap_b32 v{VX+4}, v{VX+6}')
    PR = TX0; PM = K1; VM = U
    a(cvt(PR, SX, SX+1)); a(cvt(PR+1, SX+2, SX+3)); a(cvt(PM, SM, SM+1))
    a(f'v_mov_b32_dpp v{PR+2}, v{PR} row_ror:8 row_mask:0xf bank_mask:0xf')
    a(f'v_mov_b32_dpp v{PR+3}, v{PR+1} row_ror:8 row_mask:0xf bank_mask:0xf')
    a(f'v_mov_b32_dpp v{PM+1}, v{PM} row_ror:8 row_mask:0xf bank_mask:0xf')
    a(f'v_swap_b32 v{VX+5}, v{VX+7}')
    if OPT['es']: P.k += 1; P.names.append('smax')
    elif not OPT['qs']: P('smax')
    PD = [AQ(3), AQ(4)]
    SUM = T0
    a(mfma(PD[0], VX, PR))
    a(f'v_add_f32 v{T1}, v{SM}, v{SM+1}')
    a(pkadd(SX, SX, SX+2))
    a(mfma(PD[1], VX+4, PR))
    a(f'v_cndmask_b32 v{T1}, 0, v{T1}, s[{sMG2}:{sMG2+1}]')
    a(f'v_add_f32 v{SUM}, v{SX}, v{SX+1}')
    a(f'v_mfma_f32_16x16x16_bf16 {vr(PD[0])}, {vr(VM,2)}, {vr(PM,2)}, {vr(PD[0])}')
    a(f'v_add_f32 v{SUM}, v{SUM}, v{T1}')
    a(f'v_mfma_f32_16x16x16_bf16 {vr(PD[1])}, {vr(VM+2,2)}, {vr(PM,2)}, {vr(PD[1])}')
    woread(0, WB[0]); woread(3, WB[3])
    a(f'v_add_f32_dpp v{SUM}, v{SUM}, v{SUM} row_ror:8 row_mask:0xf bank_mask:0xf')
    a(f'v_mov_b32 v{T1}, v{SUM}')
    for r in range(2): a(f'v_mov_b32_dpp v{PD[0]+r}, v{PD[1]+r} quad_perm:[0,1,2,3] row_mask:0xf bank_mask:0xc')
    a(f'v_permlane16_swap_b32 v{SUM}, v{T1}')
    a(f'v_add_f32 v{SUM}, v{SUM}, v{T1}')
    a(f'v_mov_b32 v{T1}, v{SUM}')
    for r in range(2,4): a(f'v_mov_b32_dpp v{PD[0]+r}, v{PD[1]+r} quad_perm:[0,1,2,3] row_mask:0xf bank_mask:0xc')
    a(f'v_permlane32_swap_b32 v{SUM}, v{T1}')
    a(f'v_add_f32 v{SUM}, v{SUM}, v{T1}')
    a(f'v_rcp_f32 v{SUM}, v{SUM}')
    O = PD[0]
    a('s_nop 0')
    for r in (0, 2): a(f'v_pk_mul_f32 {vr(O+r,2)}, {vr(O+r,2)}, {vr(SUM,2)} op_sel_hi:[1,0]')
    a(cvt(O, O, O+1)); a(cvt(O+1, O+2, O+3))
    a(f'ds_write_b64 v{OW}, {vr(O,2)}')
    if OPT['es']: P.k += 1; P.names.append('pv')
    else: P('pv')
    for i in range(4, 7): woread(i, WB[i])
    wrap = 0xfffcffff
    a(f"""
    s_add_u32 s{sM1}, s{sM1}, {MB_STRIDE}
    s_and_b32 s{sM1}, s{sM1}, {wrap}
    s_add_u32 s{sM8}, s{sM8}, {MB_STRIDE}
    s_and_b32 s{sM8}, s{sM8}, {wrap}
    s_add_u32 s{sM2}, s{sM2}, {MB_STRIDE}
    s_and_b32 s{sM2}, s{sM2}, {wrap}
    s_add_u32 s{sMBO}, s{sMBO}, {MB_STRIDE}
    s_and_b32 s{sMBO}, s{sMBO}, {wrap}
    """)
    a('s_waitcnt lgkmcnt(3)')
    a('s_barrier')
    if not OPT['qs']: P('bar2')
    if prof:
        a(f's_cmp_lg_u32 s{sSTEP}, 40\ns_cbranch_scc1 {tag}_nd')
        a(f's_lshl_b32 s{sTO}, s{sH}, 2\ns_add_u32 s{sTO}, s{sTO}, s{sW}\ns_lshl_b32 s{sTO}, s{sTO}, 7\ns_add_u32 s{sTO}, s{sTO}, {WS_PROF+0x20000}\ns_waitcnt lgkmcnt(0)\ns_mov_b64 exec, 1')
        for k in range(14): a(f'v_mov_b32 v{T0}, s{P.base+2*k}\nbuffer_store_dword v{T0}, v{L16}, {srd}, s{sTO} offen offset:{4*k}')
        a(f's_mov_b64 exec, -1\n{tag}_nd:')
    OA = [AQ(3), AQ(4), Q1, AQ(0)]
    for u in range(4): a(f'ds_read_b128 {vr(OA[u])}, v{ORD} offset:{u*512}')
    a(f"""
    s_add_u32 s{sMBW}, s{sMBW}, {MB_STRIDE}
    s_and_b32 s{sMBW}, s{sMBW}, {wrap}
    s_add_u32 s{sKV}, s{sKV}, {0 if OPT['kv0'] else KV_SEG}
    s_add_u32 s{sMH}, s{sMH}, {MH_STRIDE}
    s_xor_b32 s{sPBO}, s{sPBO}, {PB_STRIDE}
    s_cmp_eq_u32 s{sW}, 0
    """)
    a(f'v_add_u32 v{T0}, s{sXA}, v{L16}')
    NB = 7
    DD = [U, TX0]
    S2 = OA[0]; RDa = OA[3]
    own = lambda c: (WOA, c*4096, sPBW+c)
    X1 = (T0, 0, sPBX); X2 = (T1, 0, sPBX+1)
    T_W0 = [own(c) for c in range(6)]
    T_10 = [own(c) for c in range(7)] + [X1, own(7), own(8)]
    T_11 = T_10
    class St: pass
    st = St(); st.issued = NB; st.q = [4, 5, 6, 'o0', 'o1', 'o2', 'o3']
    def fork():
        n = St(); n.issued = st.issued; n.q = list(st.q); return n
    def need(S, ids):
        idx = max([S.q.index(x) for x in ids if x in S.q], default=-1)
        if idx >= 0:
            a(f's_waitcnt lgkmcnt({min(len(S.q)-1-idx, 15)})')
            del S.q[:idx+1]
    def post(T, c, k):
        d = DD[c % 2]
        if k == 0: a(cvt(d, d, d+1))
        if k == 1: a(cvt(d+1, d+2, d+3))
        if k == 2: a(f'buffer_store_dwordx2 {vr(d,2)}, v{PBST}, {srd}, s{T[c][2]} offen {ST}')
    def wread(S, T):
        i = S.issued; adr, imm, _ = T[i // 4]
        a(f'ds_read_b128 {vr(WB[i % NB])}, v{adr} offset:{imm + (i % 4)*1024}'); S.q.append(i); S.issued += 1
    s2b = {0: f'v_mov_b64 {vr(S2,2)}, 0\nv_mov_b64 {vr(S2+2,2)}, 0',
           1: f'v_mov_b32_dpp v{S2}, v{SEL2} quad_perm:[0,1,2,3] row_mask:0xf bank_mask:0x1',
           2: f'v_mov_b32_dpp v{S2+1}, v{SEL2+1} quad_perm:[0,1,2,3] row_mask:0xf bank_mask:0x1',
           3: f'v_mov_b32_dpp v{S2+2}, v{SEL2} quad_perm:[0,1,2,3] row_mask:0xf bank_mask:0x2\nv_mov_b32_dpp v{S2+3}, v{SEL2+1} quad_perm:[0,1,2,3] row_mask:0xf bank_mask:0x2'}
    def rload(R, i): return f'buffer_load_dwordx4 {vr(R[i])}, v{L16}, {srd}, s{sPBR} offen offset:{i*1024} {LD}'
    def slots(S, T, i0, i1, extra=None, red=False):
        N = 4*len(T)
        for i in range(i0, i1):
            c, u = divmod(i, 4)
            d = DD[c % 2]
            if c == 0: need(S, [f'o{u}'])
            elif u % 2 == 0: need(S, [i, i+1])
            a(mfma(d, WB[i % NB], OA[u], None if u == 0 else d))
            if S.issued < N and (c > 0 or not OPT['p0']): wread(S, T)
            if extra and i in extra: a(extra[i])
            if c >= (2 if OPT['p0'] else 1) and u >= 1: post(T, c-1, u-1)
            if red and c == len(T)-1: a(s2b[u])
        if i1 == N:
            for c in range(2): a(f's_xor_b32 s{sPBW+c}, s{sPBW+c}, {PB_STRIDE}')
            a(f's_cmp_eq_u32 s{sKIND}, 0')
            for k in range(3): post(T, len(T)-1, k)
    def zacc(o=None, lo=0, hi=12):
        for r in list(range(Q0, VA1+4, 2))[lo:hi]: a(f'v_mov_b64 {vr(r,2)}, 0')
    def xors(o=None):
        for c in range(2, 10): a(f's_xor_b32 s{sPBW+c}, s{sPBW+c}, {PB_STRIDE}')
    gwr = f'v_mov_b32 v{T0}, s{sSTEP}\nds_write_b32 v{L16}, v{T0} offset:{LDS_GATE}'
    def reduce(R, young, lbl, fail, gw=False):
        for i in range(4):
            a(f's_waitcnt vmcnt({young[i]})')
            a(mfma(RDa, S2, R[i], None if i == 0 else RDa))
        a('s_nop 6')
        a(f'{lbl}_c:')
        a(f'v_cmp_u_f32 vcc, v{RDa}, v{RDa}')
        for r in range(4): a(f'v_add_f32_dpp v{RDa+r}, v{RDa+r}, v{RDa+r} row_ror:8 row_mask:0xf bank_mask:0xf')
        a(cvt(PUB, RDa, RDa+1)); a(cvt(PUB+1, RDa+2, RDa+3))
        a(br(fail))
        a(f'{lbl}_ok:')
        a('s_mov_b32 exec_hi, 0')
        a(f'buffer_store_dwordx2 {vr(PUB,2)}, v{PBST}, {srd}, s{sMBW} offen {ST}')
        a('s_mov_b64 exec, -1')
        if gw: a(gwr)
        a(f's_xor_b32 s{sPBR}, s{sPBR}, {PB_STRIDE}')
        a(f's_cmp_eq_u32 s{sSTEP}, 63')
        a(f's_cbranch_scc1 {DONE}')
    def rl4(R): return '\n'.join(rload(R, i) for i in range(4))
    def plain_retry(R, lbl, okl, cl, site):
        ool.append(f'{lbl}:\n' + cnt(site) + tmo(okl) + rl4(R) + '\n' +
                   '\n'.join(f's_waitcnt vmcnt({3-i})\n' + mfma(RDa, S2, R[i], None if i == 0 else RDa) for i in range(4)) + f'\ns_nop 7\ns_branch {cl}')
    def gate(lbl):
        a(f'{lbl}:')
        a(f'ds_read_b32 v{T0}, v{L16} offset:{LDS_GATE}')
        a(tmo(f'{lbl}d'))
        a('s_waitcnt lgkmcnt(0)')
        a(f'v_cmp_ne_u32 vcc, s{sSTEP}, v{T0}')
        a(f's_cbranch_vccnz {lbl}')
        a(f'{lbl}d:')
    def PS(k):
        if prof: a(f's_memtime s[{P.base+2*k}:{P.base+2*k+1}]')
    def nops(n, why):
        n *= 8
        while n > 0:
            k = min(n, 16); a(f's_nop {k-1}   ; {why}'); n -= k
    kwo = P.k + (0 if OPT['qs'] else 1)
    R0 = [AQ(1), AQ(2), VX, VX+4]
    slots(st, T_11, 0, 4)
    if OPT['p0']:
        for _ in range(4): wread(st, T_11)
        for k in range(3): post(T_11, 0, k)
    if not OPT['qs']: P('wo0')
    slots(st, T_11, 4, 16)
    S0 = fork()
    a(f's_cbranch_scc1 {tag}_w0')
    slots(st, T_11, 16, 29)
    S3e = fork()
    a(f's_cmp_eq_u32 s{sKIND}, 1')
    a(f's_cbranch_scc1 {tag}_w3e')
    slots(st, T_11, 29, 40, red=True)
    PS(kwo)
    a(f's_cbranch_scc1 {tag}_k2')
    if not OPT['lz']: zacc()
    xors()
    if OPT['lg']: gate(f'{tag}_lgate')
    if OPT['lz']: zacc(lo=0, hi=OPT['lz'])
    for i in range(OPT['l0']): a('s_nop 7')
    a(rl4(R0))
    if OPT['lz']: zacc(lo=OPT['lz'])
    if OPT['ld']:
        if not OPT['lz']: a('s_sleep 1')
        a(f'{tag}_l2:')
        a(rl4(R0))
        reduce(R0, [7, 6, 5, 4], f'{tag}_rl', f'{tag}_lf')
        ool.append(f'{tag}_lf:\n' + cnt(5) + tmo(f'{tag}_rl_ok') + f's_branch {tag}_l2')
    else:
        reduce(R0, [3, 2, 1, 0], f'{tag}_rl', f'{tag}_lf')
        plain_retry(R0, f'{tag}_lf', f'{tag}_rl_ok', f'{tag}_rl_c', 5)
    PS(kwo+1); PS(0)
    a('s_waitcnt vmcnt(1)')
    a(f's_branch {tag}_ok0')
    a(f'{tag}_w0:')
    a('s_nop 1')
    slots(S0, T_W0, 16, 24, red=True)
    P('wo')
    nops(OPT['z0'], 'let the last partial stores land before the first poll')
    a(rl4(R0))
    nops(OPT['z1'], 'spacing between two overlapped poll rounds')
    a(f'{tag}_e2:')
    a(rl4(R0))
    reduce(R0, [7, 6, 5, 4], f'{tag}_re', f'{tag}_ef', gw=True)
    ool.append(f'{tag}_ef:\n' + cnt(1) + tmo(f'{tag}_re_ok') + f's_branch {tag}_e2')
    nops(OPT['z2'], 'let the publish stores land before the first poll')
    P('red')
    a(f's_branch {LOOP}')
    a(f'{tag}_k2:')
    a(f's_cmp_eq_u32 s{sSTEP}, 63')
    a(f's_cbranch_scc1 {tag}_end')
    a(f's_cmp_eq_u32 s{sW}, 3')
    a(f's_cbranch_scc1 {tag}_w3z')
    if OPT['fg']: gate(f'{tag}_gate')
    for i in range(OPT['g2']): a('s_nop 7')
    PS(kwo+1)
    a(f's_branch {LOOP}')
    a(f'{tag}_w3e:')
    R3 = [WB[i % NB] for i in range(33, 37)]
    slots(S3e, T_10, 29, 40, extra={33+i: rload(R3, i) for i in range(4)}, red=True)
    PS(kwo)
    reduce(R3, [6, 5, 4, 2], f'{tag}_r3', f'{tag}_3f')
    plain_retry(R3, f'{tag}_3f', f'{tag}_r3_ok', f'{tag}_r3_c', 4)
    a(f'{tag}_w3z:')
    zacc(); xors()
    PS(kwo+1); PS(0)
    a(f's_branch {tag}_ok0')
    for o in ool: a(o)
    a(f'{DONE}:')

def init_sgprs(a):
    srd = f's[{sWS}:{sWS+3}]'
    a(f'''
    s_mov_b32 s{sSTEP}, 0
    s_mov_b32 s{sRT}, 0
    s_mov_b32 s{sOOB}, 0x7f000000
    s_lshl_b32 s{sM1}, s{sW}, 10
    s_add_u32 s{sMW}, s{sM1}, {LDS_MEM}
    s_add_u32 s{sM1}, s{sM1}, {WS_MB+1024}
    s_mov_b32 s{sM2}, {WS_MB+1024+4096}
    s_mul_i32 s{sM8}, s{sW}, 768
    s_add_u32 s{sMW3}, s{sM8}, {LDS_MEM+6144}
    s_add_u32 s{sM8}, s{sM8}, {WS_MB+1024+6144}
    {'s_mov_b32 s%d, %d' % (sM8, WS_MB+1024+8192) if OPT['dir'] else ''}
    s_lshl_b32 s{sTMP}, s{sH}, 7
    s_lshl_b32 s{sTMP2}, s{sW}, 13
    s_add_u32 s{sPBW}, s{sTMP}, s{sTMP2}
    s_add_u32 s{sPBW}, s{sPBW}, {WS_PB}
    ''')
    for c in range(1, 9): a(f's_add_u32 s{sPBW+c}, s{sPBW}, {c*32768}')
    a(f'''
    s_lshl_b32 s{sTMP}, s{sH}, 2
    s_add_u32 s{sTMP}, s{sTMP}, s{sW}
    s_lshl_b32 s{sKV}, s{sTMP}, 12
    s_add_u32 s{sKV}, s{sKV}, {WS_KV}
    s_lshl_b32 s{sKVF}, s{sTMP}, 8
    s_add_u32 s{sKVF}, s{sKVF}, {WS_KVF}
    s_add_u32 s{sTMP}, s{sW}, 5
    s_lshl_b32 s{sXA}, s{sTMP}, 12
    s_add_u32 s{sXA}, s{sXA}, {LDS_WO}
    s_add_u32 s{sXA+1}, s{sXA}, {3*4096}
    s_lshl_b32 s{sPBX}, s{sTMP}, 15
    s_lshl_b32 s{sTMP2}, s{sH}, 7
    s_add_u32 s{sPBX}, s{sPBX}, s{sTMP2}
    s_add_u32 s{sPBX}, s{sPBX}, {WS_PB}
    s_add_u32 s{sPBX+1}, s{sPBX}, {3*32768}
    s_mov_b32 s{sKIND}, 0
    s_mov_b32 s{sTMP}, 72
    s_cmp_eq_u32 s{sW}, 0
    s_cselect_b32 s{sKIND}, 2, s{sKIND}
    s_cselect_b32 s{sTMP}, s{sH}, s{sTMP}
    s_add_u32 s{sTMP2}, s{sH}, 40
    s_cmp_eq_u32 s{sW}, 1
    s_cselect_b32 s{sKIND}, 2, s{sKIND}
    s_cselect_b32 s{sTMP}, s{sTMP2}, s{sTMP}
    s_add_u32 s{sTMP2}, s{sH}, 32
    s_cmp_eq_u32 s{sW}, 3
    s_cselect_b32 s{sTO}, s{sTMP2}, 99
    s_cmp_lt_u32 s{sTO}, 40
    s_cselect_b32 s{sKIND}, 1, s{sKIND}
    s_cselect_b32 s{sTMP}, s{sTO}, s{sTMP}
    s_lshl_b32 s{sPBR}, s{sTMP}, 12
    s_add_u32 s{sPBR}, s{sPBR}, {WS_PB}
    s_lshl_b32 s{sRED}, s{sTMP}, 7
    s_add_u32 s{sRED}, s{sRED}, 1024
    s_cmp_eq_u32 s{sKIND}, 0
    s_cselect_b32 s{sRED}, 0x7f000000, s{sRED}
    s_lshl_b32 s{sMH}, s{sTMP}, 8
    s_cmp_eq_u32 s{sKIND}, 0
    s_cselect_b32 s{sMH}, 0x7f000000, s{sMH}
    s_add_u32 s{sMH}, s{sMH}, {WS_MH - LDS_OB}
    s_add_u32 s{sMBO}, s{sRED}, {WS_MB+2*MB_STRIDE}
    s_add_u32 s{sMBW}, s{sRED}, {WS_MB}
    s_xor_b32 s{sPBO}, s{sPBR}, {PB_STRIDE}
    s_cmp_eq_u32 s{sKIND}, 0
    s_cselect_b32 s{sPBO}, 0x7f000000, s{sPBO}
    ''')

def gen_chain(a, prof=False):
    srd = SRD_WS
    sA, sB, sC3, sD = 72, 76, 80, 84
    sM0 = 88
    from qkv import pstamp
    a('R_chain:')
    pstamp(a, prof, 0, 76)
    make_srd(a, sA, KA_WQ, 576*8192); make_srd(a, sB, KA_WK, 576*8192); make_srd(a, sC3, KA_WV, 576*8192)
    make_srd(a, sD, KA_WO, 4096*1152); make_srd(a, sM0, KA_MEM0, 9216)
    a(f's_load_dwordx2 s[92:93], s[0:1], {KA_DBG}')
    TA = 44; TMPB = 20; WOV = 26
    a(f'''
    s_mov_b32 s{sW}, s{sWAVE}
    s_mov_b32 s{sH}, s{sRANK}
    s_mul_i32 s{sTMP2}, s{sW}, 36864
    s_add_u32 s94, s{sTMP2}, {LDS_WO}
    s_lshl_b32 s95, s{sH}, 8
    s_lshl_b32 s{sTMP}, s{sW}, 17
    s_add_u32 s95, s95, s{sTMP}             ; h*256 + w*16*8192
    s_mul_i32 s97, s{sH}, {128*1152}
    s_lshl_b32 s{sTMP}, s{sW}, 5
    s_add_u32 s97, s97, s{sTMP}             ; h*128*1152 + w*32
    v_and_b32 v28, 63, v0
    s_waitcnt lgkmcnt(0)
    ''')
    def after_issue():
        a(f'''
        v_lshrrev_b32 v29, 4, v28               ; g'
        v_bfe_u32 v30, v28, 2, 2                ; r4
        v_and_b32 v31, 3, v28                   ; c4
        v_and_b32 v32, 1, v30                   ; r4&1
        v_lshrrev_b32 v33, 1, v30               ; r4>>1
        v_and_b32 v34, 1, v29                   ; g'&1
        v_lshl_add_u32 v35, v33, 3, v32
        v_lshl_add_u32 v35, v34, 2, v35         ; row16
        v_lshl_add_u32 v36, v34, 1, v32
        v_lshl_add_u32 v36, v33, 2, v36         ; swz
        s_lshl_b32 s{sTMP}, s{sW}, 1
        v_xor_b32 v36, s{sTMP}, v36
        v_lshlrev_b32 v35, 8, v35
        v_lshl_add_u32 v35, v36, 5, v35
        v_lshl_add_u32 v35, v31, 3, v35
        v_lshrrev_b32 v37, 1, v29
        v_mul_u32_u24 v37, 36864, v37
        v_add_u32 v35, v35, v37
        v_add_u32 v{TA}, {LDS_WO}, v35
        v_xor_b32 v{TA+1}, 32, v{TA}
        v_add_u32 v{TA+2}, {2*36864}, v{TA}
        v_add_u32 v{TA+3}, {2*36864}, v{TA+1}
        v_lshrrev_b32 v{WOV}, 1, v28
        v_mul_u32_u24 v{WOV}, 1152, v{WOV}
        v_and_b32 v38, 1, v28
        v_lshl_add_u32 v{WOV}, v38, 4, v{WOV}
        v_lshrrev_b32 v39, 2, v28
        v_lshlrev_b32 v39, 5, v39
        v_lshl_add_u32 v39, v31, 3, v39
        v_add_u32 v39, s94, v39
        v_and_b32 v70, 7, v28
        v_mul_u32_u24 v70, 1152, v70
        v_lshl_add_u32 v70, v34, 3, v70
        ''')
        consts(a)
        init_sgprs(a)
        a(f'''
        v_mov_b32 v{TAGV}, s{sTAG}
        v_mov_b64 v[72:73], -1
        v_mov_b64 v[74:75], -1
        s_sub_u32 s{sTMP}, s{sRED}, 1024
        s_lshr_b32 s{sTMP}, s{sTMP}, 3
        buffer_load_dwordx2 {vr(PUB,2)}, v70, s[{sM0}:{sM0+3}], s{sTMP} offen
        ''')
        a(f'v_lshlrev_b32 v71, 2, v{L16}')
        a(f'buffer_store_dword v72, v71, {srd}, s{sPBO} offen')
        a(f's_xor_b32 s{sTMP}, s{sPBO}, {PB_STRIDE}')
        a(f'buffer_store_dword v72, v71, {srd}, s{sTMP} offen')
        a('s_mov_b32 exec_hi, 0')
        for k in range(1, 4):
            a(f's_add_u32 s{sTMP}, s{sRED}, {WS_MB + k*MB_STRIDE}')
            a(f'buffer_store_dwordx2 v[72:73], v{PBST}, {srd}, s{sTMP} offen')
        a('s_mov_b32 exec_hi, -1')
        return 6
    def reads(m, c):
        out = []
        for t in range(2):
            tile = [0, 1, 4][m] + ([0, 2][t] if m < 2 else t)
            w = wreg(tile, c)
            k, lo = w[0], int(w[2:w.index(':')])
            for hb2 in range(2):
                for rh in range(2):
                    r = lo + 4*hb2 + 2*rh
                    out.append(f'ds_read_b64_tr_b16 {k}[{r}:{r+1}], v{TA+2*hb2+t} offset:{c*4096 + rh*512}')
        return out
    def wo_dma(c):
        if DBG.get('nowo'): return []
        return [f's_add_u32 s96, s97, {c*128 + j*32*1152}\ns_add_u32 m0, s94, {c*4096 + j*1024}\n'
                f'buffer_load_dwordx4 v{WOV}, s[{sD}:{sD+3}], s96 offen lds' for j in range(4)]
    pstamp(a, prof, 1, 76)
    def pr(m, c):
        n = 0
        if c == 8 and prof: pstamp(a, prof, 2+m, 76); n += 1
        if (m, c) == (1, 0) and not DBG.get('noinit'):
            a(f's_add_u32 s{sTMP}, s{sRED}, {WS_MB}')
            a(f's_mov_b32 exec_hi, 0\nbuffer_store_dwordx2 {vr(PUB,2)}, v{PBST}, {srd}, s{sTMP} offen')
            for k in range(0, 4):
                a(f's_add_u32 s{sTMP}, s{sRED}, {WS_MB + k*MB_STRIDE}')
                a(f'buffer_load_dwordx2 v[72:73], v{PBST}, {srd}, s{sTMP} offen sc1')
            a('s_mov_b32 exec_hi, -1')
            a(f'buffer_load_dword v72, v71, {srd}, s{sPBO} offen sc1')
            a(f's_xor_b32 s{sTMP}, s{sPBO}, {PB_STRIDE}')
            a(f'buffer_load_dword v72, v71, {srd}, s{sTMP} offen sc1')
            n += 7
        if (m, c) == (2, 2):
            a(f'''
            s_cmp_lg_u32 s{sW}, 0
            s_cbranch_scc1 C_noat
            s_mov_b64 exec, 1
            v_mov_b32 v70, 64
            v_mov_b32 v73, 1
            global_atomic_add v70, v73, s[92:93]
            s_mov_b64 exec, -1
C_noat:
            ''')
        return n
    cnt = stage_weights(a, 'C', [f's[{x}:{x+3}]' for x in (sA, sB, sC3)], reads, 'chain', LDS_WO, TMPB, [95, 96, 94],
                        extra_dma=wo_dma, after_issue=after_issue, post_read=pr)
    a(f'''
    v_mov_b32 v{T0}, 64
    v_lshrrev_b32 v{T1}, 2, v{L16}
    global_load_dword v76, v{T0}, s[92:93] sc1
    buffer_load_dword v{FLG}, v{T1}, {srd}, s{sKVF} offen sc1
    ''')
    cnt[-1] += 2
    for c in range(9):
        a(f's_waitcnt vmcnt({sum(cnt[27+c+1:]) + (2 if c == 8 else 0)})')
        b = 40 + 16*(c % 2)
        for u in range(4):
            for rh in range(2):
                a(f'ds_read_b64_tr_b16 v[{b+4*u+2*rh}:{b+4*u+2*rh+1}], v39 offset:{c*4096 + u*1024 + rh*512}')
        a('s_waitcnt lgkmcnt(0)')
        for u in range(4):
            a(f'ds_write_b128 v{WOA}, {vr(b+4*u)} offset:{(4*c+u)*1024}')
    if OPT['noqkv']:
        a('s_waitcnt vmcnt(0)'); pstamp(a, prof, 5, 76); a('s_endpgm')
    a(f'''
    s_waitcnt vmcnt(0)
    s_branch C_wi2
C_wi:
    global_load_dword v76, v{T0}, s[92:93] sc1
    buffer_load_dword v{FLG}, v{T1}, {srd}, s{sKVF} offen sc1
    s_waitcnt vmcnt(0)
C_wi2:
    v_readfirstlane_b32 s{sTMP}, v76
    v_cmp_eq_u32 s[{sFM}:{sFM+1}], v{TAGV}, v{FLG}
    s_add_u32 s{sRT}, s{sRT}, 1
    s_cmp_gt_u32 s{sRT}, 0x100000
    s_cbranch_scc1 C_wfd
    s_cmp_lt_u32 s{sTMP}, 32
    s_cbranch_scc1 C_wi
    s_bitcmp1_b64 s[{sFM}:{sFM+1}], 0
    s_cbranch_scc0 C_wi
C_wfd:
    s_waitcnt lgkmcnt(0)
    buffer_load_dwordx4 {vr(KX)}, v{L16}, {srd}, s{sKV} offen sc1
    buffer_load_dwordx4 {vr(KX+4)}, v{L16}, {srd}, s{sKV} offen offset:1024 sc1
    ''')
    pstamp(a, prof, 5, 76)
    if OPT['noqkv']: a('s_endpgm')
    for r in range(Q0, VA1+4, 2): a(f'v_mov_b64 {vr(r,2)}, 0')
    if prof:
        for i in range(8): a(f's_mov_b32 s{sPROF+i}, 0')
        a('s_memrealtime s[28:29]\ns_memtime s[32:33]')
    a(f's_bitcmp1_b32 s{sW}, 0\ns_cbranch_scc1 F_ok0')
    for c in range(2, 10): a(f's_xor_b32 s{sPBW+c}, s{sPBW+c}, {PB_STRIDE}')
    gen_step(a, '', 'sc1', prof, 'F')
    a(f'''
    s_mov_b32 exec_hi, 0
    buffer_store_dwordx4 {vr(PUB)}, v{ORD}, {srd}, s{sMH} offen sc1
    s_mov_b64 exec, -1
F_end:
    ''')
    if prof:
        a(f'''
        s_memrealtime s[30:31]
        s_memtime s[74:75]
        s_waitcnt lgkmcnt(0)
        s_sub_u32 s74, s74, s32
        s_lshl_b32 s{sTMP}, s{sH}, 2
        s_add_u32 s{sTMP}, s{sTMP}, s{sW}
        s_lshl_b32 s{sTMP}, s{sTMP}, 7
        s_add_u32 s{sTMP}, s{sTMP}, {WS_PROF}
        v_mov_b32 v1, 0
        ''')
        regs = [sPROF+i for i in range(8)] + [sPROF]*4 + [70, 28, 30, sRT] + [74+2*i for i in range(14)]
        for i, r in enumerate(regs):
            a(f'v_mov_b32 v2, s{r}\nbuffer_store_dword v2, v1, {srd}, s{sTMP} offen offset:{4*i}')
    a('s_endpgm')
```

```python
from common import *
from qkv import pstamp
import fft
def gen_oproj(a, prof=False):
    srd = SRD_WS
    sT0, sT1, sRT, sOUT = fft.sT0, fft.sT1, fft.sRT, fft.sOUT
    sWO = 24; sCG, sTH, sS, sG, sLB, sOB, sFO, sSO, sPAR = 44, 45, 46, 47, 48, 49, 50, 51, 52
    LN, L16, DV, TA, FA, OA_, TAGV, T0, T1, RW, RR, OL = 1, 2, 3, 4, 5, 6, 7, 8, 9, 10, 11, 12
    ACC = 16; OB = 32; SUM = 96
    def wreg(q): return ar(4*q) if q < 64 else vr(128 + 4*(q-64))
    a(f'''
    ''')
    make_srd(a, sWO, KA_WO, 4096*1152)
    a(f'''
    ; F = 0..95 : group = F / 48 ; tq = (F % 48) / 12 ; cg = F % 12
    s_mul_i32 s{sT0}, s{fft.sF}, 171
    s_lshr_b32 s{sT0}, s{sT0}, 11              ; F / 12
    s_mul_i32 s{sT1}, s{sT0}, 12
    s_sub_u32 s{sCG}, s{fft.sF}, s{sT1}
    s_and_b32 s{sTH}, s{sT0}, 3
    s_lshr_b32 s53, s{sT0}, 2                  ; group
    v_and_b32 v{LN}, 63, v0
    v_lshlrev_b32 v{L16}, 4, v{LN}
    v_mov_b32 v{TAGV}, s{sTAG}
    v_lshrrev_b32 v{DV}, 1, v{LN}
    v_mul_u32_u24 v{DV}, 1152, v{DV}
    v_and_b32 v{T0}, 1, v{LN}
    v_lshl_add_u32 v{DV}, v{T0}, 4, v{DV}
    ; TA = (16*(g>>1) + 4*(g&1) + r4)*32 + c4*8 + w*40960
    v_lshrrev_b32 v{T0}, 5, v{LN}
    v_lshlrev_b32 v{TA}, 4, v{T0}
    v_bfe_u32 v{T0}, v{LN}, 2, 3
    v_add_u32 v{TA}, v{TA}, v{T0}
    v_lshlrev_b32 v{TA}, 5, v{TA}
    v_and_b32 v{T0}, 3, v{LN}
    v_lshl_add_u32 v{TA}, v{T0}, 3, v{TA}
    s_mul_i32 s{sLB}, s{sWAVE}, 40960
    v_add_u32 v{TA}, s{sLB}, v{TA}
    s_mul_i32 s{sG}, s{sWAVE}, {1024*1152}
    s_mul_i32 s{sT0}, s{sCG}, 96
    s_add_u32 s{sG}, s{sG}, s{sT0}
    s_lshl_b32 s{sT0}, s{sWAVE}, 11
    v_lshlrev_b32 v{FA}, 6, v{LN}
    v_add_u32 v{FA}, s{sT0}, v{FA}
    v_and_b32 v{T0}, 15, v{LN}
    v_mul_u32_u24 v{OA_}, 2304, v{T0}
    v_lshrrev_b32 v{T0}, 4, v{LN}
    v_lshl_add_u32 v{OA_}, v{T0}, 3, v{OA_}
    v_and_b32 v{OL}, 0x370, v{L16}
    s_and_b32 s{sT0}, s{sTH}, 1
    s_lshl_b32 s{sT0}, s{sT0}, 7
    v_add_u32 v{OL}, s{sT0}, v{OL}
    v_mov_b32 v{T0}, {OOB}
    v_and_b32 v{T1}, 8, v{LN}
    v_cmp_eq_u32 vcc, 0, v{T1}
    v_cndmask_b32 v{OA_}, v{T0}, v{OA_}, vcc
    s_mul_i32 s{sT0}, s{sWAVE}, 3072
    v_add_u32 v{RW}, s{sT0}, v{L16}
    s_lshl_b32 s{sT0}, s{sWAVE}, 10
    v_add_u32 v{RR}, s{sT0}, v{L16}
    s_waitcnt lgkmcnt(0)
    ''')
    def dma(hh):
        for ct in range(3):
            for j in range(4):
                a(f's_add_u32 s{sT0}, s{sG}, {(hh*128 + 32*j)*1152 + ct*32}')
                a(f's_add_u32 m0, s{sLB}, {(hh%3)*12288 + ct*4096 + j*1024}')
                a(f'buffer_load_dwordx4 v{DV}, s[{sWO}:{sWO+3}], s{sT0} offen lds')
    for hh in range(3): dma(hh)
    for hh in range(8):
        a(f's_waitcnt vmcnt({12*min(2, 7-hh)})')
        for wp in range(4):
            for ct in range(3):
                w = wreg((hh*4+wp)*3+ct); k, lo = w[0], int(w[2:w.index(':')])
                for rh in range(2):
                    a(f'ds_read_b64_tr_b16 {k}[{lo+2*rh}:{lo+2*rh+1}], v{TA} offset:{(hh%3)*12288 + ct*4096 + wp*1024 + rh*256}')
            a('s_waitcnt lgkmcnt(0)')
        if hh+3 < 8: dma(hh+3)
    pstamp(a, prof, 4)
    a(f'''
    s_barrier
    s_mov_b32 s{sS}, s53
    s_mov_b32 s{sPAR}, 0
    s_mov_b32 s{sRT}, 0
O_loop:
    s_lshl_b32 s{sFO}, s{sS}, 13
    s_add_u32 s{sFO}, s{sFO}, {WS_OF}
    s_lshl_b32 s{sOB}, s{sS}, 18
    s_lshr_b32 s{sT0}, s{sTH}, 1
    s_lshl_b32 s{sT0}, s{sT0}, 17
    s_add_u32 s{sOB}, s{sOB}, s{sT0}
    s_lshl_b32 s{sT0}, s{sWAVE}, 15
    s_add_u32 s{sOB}, s{sOB}, s{sT0}
    s_add_u32 s{sOB}, s{sOB}, {WS_O}
    s_lshl_b32 s{sSO}, s{sS}, 2
    s_add_u32 s{sSO}, s{sSO}, s{sTH}
    s_mul_i32 s{sSO}, s{sSO}, {8*2304}
    s_mul_i32 s{sT0}, s{sCG}, 96
    s_add_u32 s{sSO}, s{sSO}, s{sT0}
    s_lshl_b32 s{sT0}, s{sWAVE}, 5
    s_add_u32 s{sSO}, s{sSO}, s{sT0}
    s_add_u32 s{sSO}, s{sSO}, 1152
O_poll:
    s_mov_b32 exec_hi, 0
    buffer_load_dword v{T0}, v{FA}, {srd}, s{sFO} offen sc1
    s_waitcnt vmcnt(0)
    v_cmp_ne_u32 vcc, v{TAGV}, v{T0}
    s_mov_b64 exec, -1
    s_add_u32 s{sRT}, s{sRT}, 1
    s_cmp_gt_u32 s{sRT}, 0x80000
    s_cbranch_scc1 O_go
    s_cbranch_vccz O_go
    s_sleep 1
    s_branch O_poll
O_go:
    ''')
    def old(k):
        if k % 4 == 0 and k: a(f's_add_u32 s{sOB}, s{sOB}, 4096')
        a(f'buffer_load_dwordx4 {vr(OB+4*(k%16))}, v{OL}, {srd}, s{sOB} offen offset:{(k%4)*1024} sc1')
    for k in range(16): old(k)
    for k in range(32):
        a(f's_waitcnt vmcnt({min(15, 31-k)})')
        for ct in range(3):
            a(f'v_mfma_f32_16x16x32_bf16 {vr(ACC+4*ct)}, {wreg(k*3+ct)}, {vr(OB+4*(k%16))}, ' + ('0' if k == 0 else vr(ACC+4*ct)))
        if k+16 < 32: old(k+16)
    a(f'v_add_u32 v{T0}, s{sPAR}, v{RW}')
    a(f'v_add_u32 v{T1}, s{sPAR}, v{RR}')
    for ct in range(3): a(f'ds_write_b128 v{T0}, {vr(ACC+4*ct)} offset:{1024*ct}')
    a(f'''
    s_waitcnt lgkmcnt(0)
    s_barrier
    s_cmp_eq_u32 s{sWAVE}, 3
    s_cbranch_scc1 O_next
    ''')
    for w in range(4): a(f'ds_read_b128 {vr(SUM+4*w)}, v{T1} offset:{3072*w}')
    a('s_waitcnt lgkmcnt(0)')
    a(pkadd(SUM, SUM, SUM+4)); a(pkadd(SUM+2, SUM+2, SUM+6)); a(pkadd(SUM+8, SUM+8, SUM+12)); a(pkadd(SUM+10, SUM+10, SUM+14))
    a(pkadd(SUM, SUM, SUM+8)); a(pkadd(SUM+2, SUM+2, SUM+10))
    a(cvt(SUM, SUM, SUM+1)); a(cvt(SUM+1, SUM+2, SUM+3))
    a(f'''
    buffer_store_dwordx2 {vr(SUM,2)}, v{OA_}, s[{sOUT}:{sOUT+3}], s{sSO} offen
O_next:
    s_xor_b32 s{sPAR}, s{sPAR}, 0x4000
    s_add_u32 s{sS}, s{sS}, 2
    s_cmp_lt_u32 s{sS}, 64
    s_cbranch_scc1 O_loop
    ''')
    pstamp(a, prof, 5)
    a(f'''
    s_cmp_lg_u32 s{fft.sF}, 0
    s_cbranch_scc1 L_exit
    s_cmp_lg_u32 s{sWAVE}, 0
    s_cbranch_scc1 L_exit
    s_mov_b64 exec, 1
    v_mov_b32 v{T0}, {WS_EPOCH}
    buffer_store_dword v{TAGV}, v{T0}, {srd}, 0 offen sc1
    s_endpgm
    ''')
```

```python
from common import *
LO, XR, XV, TAGV = 1, 2, 3, 4
ACC = [16, 32, 48]
XF = 64
sH, sJ, sT0, sT1, sSEG, sKV, sQ, sFL, sXO, sBUF, sIT, sFLP = 12, 13, 14, 15, 16, 17, 18, 19, 20, 21, 22, 23
sX = 24
def wq(m, t):
    if m == 0: return vr(80 + 4*t)
    idx = (m-1)*36 + t
    return ar(4*idx) if idx < 64 else vr(224 + 4*(idx-64))
def mf32(d, a, b, first): return f'v_mfma_f32_32x32x16_bf16 {vr(d,16)}, {a}, {b}, ' + ('0' if first else vr(d,16))

def gen_qkv(a, next_label, prof=False):
    srd = SRD_WS
    sA, sB, sC = 72, 76, 80
    a('R_qkv:')
    make_srd(a, sA, KA_WQ, 576*8192); make_srd(a, sB, KA_WK, 576*8192); make_srd(a, sC, KA_WV, 576*8192)
    make_srd(a, sX, KA_BX, 2048*1152)
    a(f's_load_dwordx2 s[84:85], s[0:1], {KA_DBG}')
    TA = 16; TMPB = 24
    a(f'''
    s_sub_u32 s{sT0}, s{sXCC}, 1
    s_lshl_b32 s{sT0}, s{sT0}, 5
    s_add_u32 s{sT0}, s{sT0}, s{sRANK}
    s_lshr_b32 s{sH}, s{sT0}, 2
    s_and_b32 s{sJ}, s{sT0}, 3
    v_mov_b32 v{TAGV}, s{sTAG}
    v_and_b32 v32, 63, v0
    v_lshrrev_b32 v33, 5, v32               ; hi
    v_bfe_u32 v34, v32, 4, 1
    v_bfe_u32 v35, v32, 2, 2                ; r4
    v_and_b32 v36, 3, v32                   ; c4
    v_and_b32 v37, 15, v32
    v_lshlrev_b32 v{LO}, 10, v34
    v_lshl_add_u32 v{LO}, v33, 8, v{LO}
    v_lshl_add_u32 v{LO}, v37, 4, v{LO}
    v_mov_b32 v{XR}, v{LO}
    ; XV = ((w&1)*16 + (l&15))*1152 + (l>>4)*16 + (w>>1)*64
    s_and_b32 s{sT0}, s{sWAVE}, 1
    s_lshl_b32 s{sT0}, s{sT0}, 4
    v_add_u32 v{XV}, s{sT0}, v37
    v_mul_u32_u24 v{XV}, 1152, v{XV}
    v_lshrrev_b32 v38, 4, v32
    v_lshl_add_u32 v{XV}, v38, 4, v{XV}
    s_lshr_b32 s{sT0}, s{sWAVE}, 1
    s_lshl_b32 s{sT0}, s{sT0}, 6
    v_add_u32 v{XV}, s{sT0}, v{XV}
    s_lshl_b32 s{sT0}, s{sWAVE}, 1
    v_add_u32 v38, s{sT0}, v34
    v_lshlrev_b32 v39, 1, v35
    v_xor_b32 v38, v38, v39
    v_lshl_add_u32 v39, v33, 3, v35
    v_lshlrev_b32 v39, 8, v39
    v_lshl_add_u32 v39, v38, 5, v39
    v_lshl_add_u32 v{TA}, v36, 3, v39
    v_add_u32 v{TA+1}, 36864, v{TA}
    v_add_u32 v{TA+2}, {2*36864}, v{TA}
    v_add_u32 v{TA+3}, {3*36864}, v{TA}
    s_mul_i32 s94, s{sWAVE}, 36864
    s_lshl_b32 s95, s{sH}, 8
    s_lshl_b32 s{sT0}, s{sWAVE}, 17
    s_add_u32 s95, s95, s{sT0}
    s_waitcnt lgkmcnt(0)
    ''')
    import chain
    order = chain.OPT['qorder']
    def reads(m, c):
        m = order[m]
        out = []
        for i in range(4):
            w = wq(m, 4*c+i); k, lo = w[0], int(w[2:w.index(':')])
            for rh in range(2):
                out.append(f'ds_read_b64_tr_b16 {k}[{lo+2*rh}:{lo+2*rh+1}], v{TA+i} offset:{c*4096 + rh*1024}')
        return out
    stage_weights(a, 'Q', [f's[{x}:{x+3}]' for x in [(sA, sB, sC)[i] for i in order]], reads, 'qkv', 0, TMPB, [95, 96, 94])
    def xdma():
        for i in range(9):
            a(f's_add_u32 m0, s{sBUF}, {4096*i - 128*i}')
            a(f'buffer_load_dwordx4 v{XV}, s[{sX}:{sX+3}], s{sXO} offen offset:{128*i} lds')
    a(f'''
    s_lshl_b32 s{sT0}, s{sH}, 2
    s_add_u32 s{sT0}, s{sT0}, s{sWAVE}          ; 4h+w
    s_lshl_b32 s{sKV}, s{sT0}, 12
    s_mul_i32 s{sT1}, s{sJ}, {KV_SEG}
    s_add_u32 s{sKV}, s{sKV}, s{sT1}
    s_add_u32 s{sKV}, s{sKV}, {WS_KV}
    s_lshl_b32 s{sQ}, s{sT0}, 11
    s_mul_i32 s{sT1}, s{sJ}, {QS_SEG}
    s_add_u32 s{sQ}, s{sQ}, s{sT1}
    s_add_u32 s{sQ}, s{sQ}, {WS_Q}
    s_lshl_b32 s{sFL}, s{sT0}, 8
    s_lshl_b32 s{sT1}, s{sJ}, 2
    s_add_u32 s{sFL}, s{sFL}, s{sT1}
    s_add_u32 s{sFL}, s{sFL}, {WS_KVF}
    s_mov_b32 s{sFLP}, {SOOB}
    s_mul_i32 s{sXO}, s{sJ}, 36864
    s_lshl_b32 s{sBUF}, s{sWAVE}, 10
    s_mov_b32 s{sIT}, 0
    v_mov_b32 v5, 0
    ''')
    late_arrive(a, 'Q', 84, 6)
    pstamp(a, prof, 0)
    xdma()
    a('s_waitcnt vmcnt(0)')
    a('Q_loop:')
    a('s_barrier')
    a(f's_xor_b32 s{sBUF}, s{sBUF}, 0x10000')
    a(f's_add_u32 s{sXO}, s{sXO}, {4*36864}')
    def xrd(t): return f'ds_read_b128 {vr(XF+4*(t%4))}, v{XR} offset:{(t>>1)*2048 + (t&1)*512}'
    for t in range(3): a(xrd(t))
    for t in range(36):
        if t+3 < 36: a(xrd(t+3))
        a(f's_waitcnt lgkmcnt({min(3, 35-t)})')
        x = vr(XF+4*(t%4))
        a(mf32(ACC[0], wq(0,t), x, t == 0))
        a(mf32(ACC[1], wq(1,t), x, t == 0))
        a(mf32(ACC[2], x, wq(2,t), t == 0))
        if t < 9:
            a(f's_add_u32 m0, s{sBUF}, {4096*t - 128*t}')
            a(f'buffer_load_dwordx4 v{XV}, s[{sX}:{sX+3}], s{sXO} offen offset:{128*t} lds')
        if t == 18:
            a(f'''
            s_waitcnt vmcnt(9)
            s_mov_b64 exec, 1
            buffer_store_dword v{TAGV}, v5, {srd}, s{sFLP} offen sc1
            s_mov_b64 exec, -1
            ''')
    a(f'v_xor_b32 v{XR}, 0x10000, v{XR}')
    for m, (so, off) in enumerate(((sQ, 0), (sKV, 0), (sKV, 2048))):
        r = ACC[m]
        for (d, x) in ((0,0),(1,2),(2,8),(3,10),(4,4),(5,6),(6,12),(7,14)):
            a(cvt(r+d, r+x, r+x+1))
        a(f'buffer_store_dwordx4 {vr(r)}, v{LO}, {srd}, s{so} offen offset:{off} sc1')
        a(f'buffer_store_dwordx4 {vr(r+4)}, v{LO}, {srd}, s{so} offen offset:{off+512} sc1')
    a(f'''
    s_mov_b32 s{sFLP}, s{sFL}
    s_add_u32 s{sFL}, s{sFL}, 16
    s_add_u32 s{sKV}, s{sKV}, {4*KV_SEG}
    s_add_u32 s{sQ}, s{sQ}, {4*QS_SEG}
    s_add_u32 s{sIT}, s{sIT}, 1
    s_cmp_lt_u32 s{sIT}, 16
    s_waitcnt vmcnt(6)
    s_cbranch_scc1 Q_loop
    s_waitcnt vmcnt(0)
    s_mov_b64 exec, 1
    buffer_store_dword v{TAGV}, v5, {srd}, s{sFLP} offen sc1
    s_mov_b64 exec, -1
    ''')
    import chain
    if not chain.OPT['noattn']: gen_attn(a, prof)
    a(f's_branch {next_label}')

def pstamp(a, prof, i, r=14):
    if prof and not (r == 76 and DBG.get('nops')):
        a(f'''
        s_memrealtime s[98:99]
        s_lshl_b32 s100, s{sXCC}, 5
        s_add_u32 s100, s100, s{sRANK}
        s_lshl_b32 s100, s100, 5
        s_add_u32 s100, s100, {WS_PROF + 0x10000 + 4*i}
        s_waitcnt lgkmcnt(0)
        v_mov_b32 v{r}, s98
        v_mov_b32 v{r+1}, 0
        buffer_store_dword v{r}, v{r+1}, {SRD_WS}, s100 offen
        ''')

def gen_attn(a, prof):
    srd = SRD_WS
    QF, KF, VF, SX, ML, SM, PX, PM = 80, 112, 144, 152, 168, 188, 204, 212
    KA, VA, OA = ACC[1], ACC[2], ACC[0]
    L16, MWA, MRA, KWA, OLO, T0, T1, T2 = 6, 7, 8, 9, 10, 12, 13, 14
    sMSK = 28
    sMH, sO, sOF, sC, sRT = 60, 61, 62, 64, 63
    sKW = 66
    sQW = 70
    LM, LK = 0, 16384
    pstamp(a, prof, 1)
    a(f'''
    s_waitcnt vmcnt(0)
    s_barrier
    v_and_b32 v{T0}, 63, v0
    v_lshlrev_b32 v{L16}, 4, v{T0}
    ; MWA = (l>>4)*128 + (l&7)*16 + ((l>>3)&1)*8 + w*2304
    v_lshrrev_b32 v{T1}, 4, v{T0}
    v_lshlrev_b32 v{MWA}, 7, v{T1}
    v_and_b32 v{T1}, 7, v{T0}
    v_lshl_add_u32 v{MWA}, v{T1}, 4, v{MWA}
    v_bfe_u32 v{T2}, v{T0}, 3, 1
    v_lshl_add_u32 v{MWA}, v{T2}, 3, v{MWA}
    s_mul_i32 s{sT0}, s{sWAVE}, 2304
    v_add_u32 v{MWA}, s{sT0}, v{MWA}
    v_lshrrev_b32 v{T2}, 5, v{T0}
    v_lshlrev_b32 v{MRA}, 7, v{T2}
    v_lshl_add_u32 v{MRA}, v{T1}, 4, v{MRA}
    s_lshl_b32 s{sT0}, s{sWAVE}, 9
    v_add_u32 v{KWA}, s{sT0}, v{MRA}
    v_bfe_u32 v{T1}, v{T0}, 4, 1
    v_lshlrev_b32 v{OLO}, 17, v{T1}
    v_lshl_add_u32 v{OLO}, v{T2}, 8, v{OLO}
    v_and_b32 v{T1}, 15, v{T0}
    v_lshl_add_u32 v{OLO}, v{T1}, 4, v{OLO}
    v_and_b32 v{T1}, 31, v{T0}
    v_lshlrev_b32 v{T2}, 2, v{T2}
    v_sub_u32 v{T1}, v{T1}, v{T2}
    s_mov_b32 s{sC}, 0x3e0293ee
    s_mov_b32 s{sC+1}, 0x3e0293ee
    s_mov_b32 s{sRT}, 0
    ''')
    for r in range(16): a(f'v_cmp_le_i32 s[{sMSK+2*r}:{sMSK+2*r+1}], {8*(r>>2)+(r&3)}, v{T1}')
    a(f'''
    s_mul_i32 s{sKW}, s{sJ}, {KV_SEG}
    s_lshl_b32 s{sT0}, s{sH}, 14
    s_add_u32 s{sKW}, s{sKW}, s{sT0}
    s_add_u32 s{sKW}, s{sKW}, {WS_KV}
    s_mul_i32 s{sQW}, s{sJ}, {QS_SEG}
    s_lshl_b32 s{sT0}, s{sH}, 13
    s_add_u32 s{sQW}, s{sQW}, s{sT0}
    s_add_u32 s{sQW}, s{sQW}, {WS_Q}
    s_mul_i32 s{sMH}, s{sJ}, {MH_STRIDE}
    s_mul_i32 s{sT0}, s{sWAVE}, 4608
    s_add_u32 s{sMH}, s{sMH}, s{sT0}
    s_add_u32 s{sMH}, s{sMH}, {WS_MH}
    s_lshl_b32 s{sT0}, s{sH}, 2
    s_add_u32 s{sT0}, s{sT0}, s{sWAVE}
    s_lshl_b32 s{sO}, s{sT0}, 10
    s_lshl_b32 s{sT1}, s{sJ}, 18
    s_add_u32 s{sO}, s{sO}, s{sT1}
    s_add_u32 s{sO}, s{sO}, {WS_O}
    s_lshl_b32 s{sOF}, s{sT0}, 6
    s_lshl_b32 s{sT1}, s{sJ}, 13
    s_add_u32 s{sOF}, s{sOF}, s{sT1}
    s_add_u32 s{sOF}, s{sOF}, {WS_OF}
    s_mov_b32 s{sIT}, 0
A_loop:
    ''')
    for w in range(1, 4):
        a(f's_add_u32 s{sKW+w}, s{sKW}, {4096*w}')
    a(f's_add_u32 s{sQW+1}, s{sQW}, 4096')
    a(f's_lshl_b32 s{sT0}, s{sWAVE}, 12\ns_add_u32 s{sT0}, s{sT0}, s{sKW}')
    for k in range(8):
        w, p = k>>1, k&1
        a(f'buffer_load_dwordx4 {vr(QF+4*k)}, v{LO}, {srd}, s{sQW+(w>>1)} offen offset:{(w&1)*2048 + p*512} sc1')
        a(f'buffer_load_dwordx4 {vr(KF+4*k)}, v{LO}, {srd}, s{sKW+w} offen offset:{p*512} sc1')
    for p in range(2):
        a(f'buffer_load_dwordx4 {vr(VF+4*p)}, v{LO}, {srd}, s{sT0} offen offset:{2048+p*512} sc1')
    for k in range(8):
        a(f's_waitcnt vmcnt({2 + 2*(7-k)})')
        a(mf32(SX, vr(KF+4*k), vr(QF+4*k), k == 0))
    a(f'''
    s_sub_u32 s{sT1}, s{sMH}, {MH_STRIDE}
    s_cmp_lt_u32 s{sT1}, {WS_MH}
    s_cselect_b32 s{sT1}, s{sMH}, s{sT1}
A_lp:
    s_mov_b64 exec, 1
    buffer_load_dword v{ML+2}, v{L16}, {srd}, s{sT1} offen offset:{3072+31*16+8} sc1
    s_waitcnt vmcnt(0)
    v_cmp_ne_u32 vcc, v{TAGV}, v{ML+2}
    s_mov_b64 exec, -1
    s_add_u32 s{sRT}, s{sRT}, 1
    s_cmp_gt_u32 s{sRT}, 0x80000
    s_cbranch_scc1 A_fp
    s_cbranch_vccz A_fp
    s_sleep 4
    s_branch A_lp
A_fp:
    ''')
    for i in range(4): a(f'buffer_load_dwordx4 {vr(ML+4*i)}, v{L16}, {srd}, s{sMH} offen offset:{1024*i} sc1')
    a(f'''
    v_mov_b32 v{ML+18}, v{TAGV}
    s_add_u32 s{sT0}, s{sMH}, 4096
    s_mov_b32 exec_hi, 0
    buffer_load_dwordx4 {vr(ML+16)}, v{L16}, {srd}, s{sT0} offen sc1
    s_mov_b64 exec, -1
    s_waitcnt vmcnt(0)
    v_xor_b32 v{T0}, v{TAGV}, v{ML+2}
    v_xor_b32 v{T1}, v{TAGV}, v{ML+6}
    v_xor_b32 v{T2}, v{TAGV}, v{ML+10}
    v_or3_b32 v{T0}, v{T0}, v{T1}, v{T2}
    v_xor_b32 v{T1}, v{TAGV}, v{ML+14}
    v_xor_b32 v{T2}, v{TAGV}, v{ML+18}
    v_or3_b32 v{T0}, v{T0}, v{T1}, v{T2}
    v_cmp_ne_u32 vcc, 0, v{T0}
    s_add_u32 s{sRT}, s{sRT}, 1
    s_cmp_gt_u32 s{sRT}, 0x80000
    s_cbranch_scc1 A_fd
    s_cbranch_vccnz A_fp
A_fd:
    ''')
    for i in range(4): a(f'ds_write_b64 v{MWA}, {vr(ML+4*i,2)} offset:{LM+512*i}')
    a(f'''
    s_mov_b32 exec_hi, 0
    ds_write_b64 v{MWA}, {vr(ML+16,2)} offset:{LM+2048}
    s_mov_b64 exec, -1
    v_mov_b32 v{T2}, 0xff800000
    ''')
    for r in range(16): a(f'v_cndmask_b32 v{SX+r}, v{T2}, v{SX+r}, s[{sMSK+2*r}:{sMSK+2*r+1}]')
    a('s_waitcnt lgkmcnt(0)\ns_barrier')
    def xrd(t): return f'ds_read_b128 {vr(XF+4*(t%4))}, v{MRA} offset:{LM+t*256}'
    for t in range(3): a(xrd(t))
    for t in range(36):
        if t+3 < 36: a(xrd(t+3))
        a(f's_waitcnt lgkmcnt({min(3, 35-t)})')
        x = vr(XF+4*(t%4))
        a(mf32(KA, wq(1,t), x, t == 0))
        a(mf32(VA, x, wq(2,t), t == 0))
    a(f'v_max3_f32 v{T0}, v{SX}, v{SX+1}, v{SX+2}')
    for r in range(3, 15, 2): a(f'v_max3_f32 v{T0}, v{T0}, v{SX+r}, v{SX+r+1}')
    a(f'v_max_f32 v{T0}, v{T0}, v{SX+15}')
    for (d, x) in ((0,0),(1,2),(2,8),(3,10),(4,4),(5,6),(6,12),(7,14)): a(cvt(KA+d, KA+x, KA+x+1))
    a(f'''
    s_mov_b32 exec_lo, 0xff
    s_mov_b32 exec_hi, 0xff
    ds_write_b128 v{KWA}, {vr(KA)} offset:{LK}
    ds_write_b128 v{KWA}, {vr(KA+4)} offset:{LK+256}
    s_mov_b64 exec, -1
    ''')
    a(cvt(VA, VA, VA+1)); a(cvt(VA+1, VA+2, VA+3))
    a('s_waitcnt lgkmcnt(0)\ns_barrier')
    for k in range(8): a(f'ds_read_b128 {vr(KF+4*k)}, v{MRA} offset:{LK + (k>>1)*512 + (k&1)*256}')
    for k in range(8):
        a(f's_waitcnt lgkmcnt({7-k})')
        a(mf32(SM, vr(KF+4*k), vr(QF+4*k), k == 0))
    a(f'''
    v_max3_f32 v{T0}, v{T0}, v{SM}, v{SM+1}
    v_max3_f32 v{T0}, v{T0}, v{SM+2}, v{SM+3}
    v_mov_b32 v{T1}, v{T0}
    v_permlane32_swap_b32 v{T0}, v{T1}
    v_max_f32 v{T0}, v{T0}, v{T1}
    v_mul_f32 v{T0}, s{sC}, v{T0}
    ''')
    pairs = [SX+2*i for i in range(8)] + [SM, SM+2]
    for r in pairs:
        a(f'v_pk_fma_f32 {vr(r,2)}, {vr(r,2)}, s[{sC}:{sC+1}], {vr(T0,2)} op_sel_hi:[1,1,0] neg_lo:[0,0,1] neg_hi:[0,0,1]')
    for r in pairs: a(f'v_exp_f32 v{r}, v{r}\nv_exp_f32 v{r+1}, v{r+1}')
    SA = SM+4
    a(pkadd(SA, pairs[0], pairs[1]))
    for r in pairs[2:]: a(pkadd(SA, SA, r))
    a(f'''
    v_add_f32 v{T0}, v{SA}, v{SA+1}
    v_mov_b32 v{T1}, v{T0}
    v_permlane32_swap_b32 v{T0}, v{T1}
    v_add_f32 v{T0}, v{T0}, v{T1}
    v_rcp_f32 v{T0}, v{T0}
    ''')
    for r in pairs: a(f'v_pk_mul_f32 {vr(r,2)}, {vr(r,2)}, {vr(T0,2)} op_sel_hi:[1,0]')
    for aa in range(2):
        a(cvt(PX+4*aa, SX+4*aa, SX+4*aa+1)); a(cvt(PX+4*aa+1, SX+4*aa+2, SX+4*aa+3))
        a(cvt(PX+4*aa+2, SX+4*aa+8, SX+4*aa+9)); a(cvt(PX+4*aa+3, SX+4*aa+10, SX+4*aa+11))
    a(cvt(PM, SM, SM+1)); a(cvt(PM+1, SM+2, SM+3))
    a(mf32(OA, vr(VF), vr(PX), True))
    a(mf32(OA, vr(VF+4), vr(PX+4), False))
    a(f'v_mfma_f32_32x32x8_bf16 {vr(OA,16)}, {vr(VA,2)}, {vr(PM,2)}, {vr(OA,16)}')
    for i in range(8): a(cvt(OA+i, OA+2*i, OA+2*i+1))
    a(f'''
    buffer_store_dwordx4 {vr(OA)}, v{OLO}, {srd}, s{sO} offen sc1
    buffer_store_dwordx4 {vr(OA+4)}, v{OLO}, {srd}, s{sO} offen offset:512 sc1
    s_add_u32 s{sKW}, s{sKW}, {4*KV_SEG}
    s_add_u32 s{sQW}, s{sQW}, {4*QS_SEG}
    s_add_u32 s{sMH}, s{sMH}, {4*MH_STRIDE}
    s_add_u32 s{sO}, s{sO}, {4<<18}
    s_add_u32 s{sIT}, s{sIT}, 1
    s_waitcnt vmcnt(0)
    s_mov_b64 exec, 1
    buffer_store_dword v{TAGV}, v5, {srd}, s{sOF} offen sc1
    s_mov_b64 exec, -1
    s_add_u32 s{sOF}, s{sOF}, {4<<13}
    s_cmp_lt_u32 s{sIT}, 16
    s_cbranch_scc1 A_loop
    ''')
    pstamp(a, prof, 2)
```

```python
from common import *
import layouts as L

LDS_SC  = 0
LDS_OB  = 5120
LDS_GATE = 0
LDS_MEM = 7168
LDS_DUMMY = 5120
LDS_WO  = 16384

L16, PBST, SEL2, SEL2b, MW, MR, OW, WOA, IDX, ORD, T0, T1 = range(12)
SEL, PUB, TAGV, FLG = 12, 16, 18, 19
Q0, K0, Q1, K1, VA0, VA1 = 20, 24, 28, 32, 36, 40
KX, VX = 44, 52
def AQ(i): return 60 + 4*i
def AF(c): return AQ(c % 5)

def wreg(tile, c):
    idx = tile*9 + c
    if idx < 32: return f'a[{8*idx}:{8*idx+7}]'
    b = 80 + 8*(idx-32)
    return f'v[{b}:{b+7}]'
ACC = [Q0, K0, Q1, K1, VA0, VA1]

sW, sH, sSTEP, sTMP, sTMP2, sTO = 12, 13, 14, 15, 16, 17
sMBRD, sMBWR, sMBNX = 18, 19, 20
sPBR = 22
sKV, sMH = 23, 25
sRED = 26
sMLO, sMHI = 28, 30
sMG = 32
sMG2 = 30
sC = 34
sRT = 37
sMW = 38
sMB4, sMB8 = 39, 21
sPROF = 44
sPBW = 52

def smf(acc, a, b): return f'v_smfmac_f32_16x16x64_bf16 {vr(acc)}, {vr(a)}, {b}, v{IDX}'
mfma = mfma16

def consts(a):
    C, G, G1, X, Y, Z = AF(0), AF(0)+1, AF(0)+2, AF(0)+3, AF(1), AF(1)+1
    a(f'''
    v_and_b32 v{X}, 63, v0
    v_lshlrev_b32 v{L16}, 4, v{X}
    v_and_b32 v{C}, 15, v{X}              ; c
    v_lshrrev_b32 v{G}, 4, v{X}           ; g
    v_and_b32 v{G1}, 1, v{G}              ; g&1
    v_lshrrev_b32 v{PBST}, 1, v{G}
    v_lshlrev_b32 v{PBST}, 12, v{PBST}
    v_lshl_add_u32 v{PBST}, v{G1}, 3, v{PBST}
    v_lshl_add_u32 v{PBST}, v{C}, 4, v{PBST}
    v_mov_b32 v{Y}, {OOB}
    v_cmp_gt_u32 vcc, 8, v{C}
    v_cndmask_b32 v{PBST}, v{Y}, v{PBST}, vcc
    v_and_b32 v{Z}, 7, v{C}
    v_lshlrev_b32 v{Z}, 4, v{Z}
    v_lshrrev_b32 v{T0}, 3, v{C}           ; hb
    v_lshl_add_u32 v{MR}, v{T0}, 3, v{Z}       ; (c&7)*16 + hb*8
    v_lshl_add_u32 v{ORD}, v{G}, 7, v{Z}
    v_add_u32 v{ORD}, {LDS_OB}, v{ORD}
    v_lshl_add_u32 v{OW}, v{G}, 7, v{MR}
    s_lshl_b32 s{sTMP}, s{sW}, 9
    s_add_u32 s{sTMP}, s{sTMP}, {LDS_OB}
    v_add_u32 v{OW}, s{sTMP}, v{OW}
    v_lshl_add_u32 v{MR}, v{G1}, 7, v{MR}
    v_add_u32 v{MR}, 1024, v{MR}
    s_mul_i32 s{sTMP}, s{sW}, 1280
    s_mov_b32 s{sSCW}, s{sTMP}
    v_lshlrev_b32 v{MW}, 7, v{G1}
    v_lshl_add_u32 v{MW}, v{C}, 4, v{MW}
    v_add_u32 v{MW}, s{sTMP}, v{MW}
    v_add_u32 v{MW}, 1024, v{MW}
    s_mul_i32 s{sTMP}, s{sW}, 36864
    s_add_u32 s{sTMP}, s{sTMP}, {LDS_WO}
    v_add_u32 v{WOA}, s{sTMP}, v{L16}
    s_mov_b32 s{sMG2}, -1
    s_mov_b32 s{sMG2+1}, 0
    s_mov_b32 s66, 0
    s_mov_b32 s67, 0x00ff00ff
    s_mov_b32 s{sC}, 0x3e0293ee            ; 128^-0.5 * log2(e) = 0.12751743
    s_mov_b32 s{sC+1}, 0x3e0293ee
    ''')
    a(f'''
    v_and_b32 v{SEL}, 7, v{C}
    v_lshlrev_b32 v{SEL+1}, 2, v{G1}
    v_sub_u32 v{SEL}, v{SEL}, v{SEL+1}
    v_lshrrev_b32 v{SEL+1}, 3, v{C}
    v_lshlrev_b32 v{SEL+1}, 2, v{SEL+1}
    v_cmp_gt_u32 vcc, 4, v{SEL}
    v_add_u32 v{SEL}, v{SEL}, v{SEL+1}
    v_cndmask_b32 v{T1}, 15, v{SEL}, vcc
    ''')
    def onehot(base, ereg, n=4):
        for i in range(n):
            a(f'''
            v_mov_b32 v{base+i}, 0
            v_mov_b32 v{Y}, 0x3f80
            v_cmp_eq_u32 vcc, {2*i}, v{ereg}
            v_cndmask_b32 v{base+i}, v{base+i}, v{Y}, vcc
            v_mov_b32 v{Y}, 0x3f800000
            v_cmp_eq_u32 vcc, {2*i+1}, v{ereg}
            v_cndmask_b32 v{base+i}, v{base+i}, v{Y}, vcc
            ''')
    onehot(SEL, T1)
    a(f'v_and_b32 v{T1}, 3, v{C}')
    onehot(SEL2, T1, 2)
    a(f'''
    v_mov_b32 v{IDX}, 0x4444
    v_mov_b32 v{Y}, 0xeeee
    v_cmp_gt_u32 vcc, 8, v{C}
    v_cndmask_b32 v{IDX}, v{Y}, v{IDX}, vcc
    ''')

OPT = dict(pfm=(0,1,2,3), p0=0, lz=6, fdelay=0, dir=0, bp=3, lg=1, fg=1, z0=0, z1=3, z2=0, ld=2, l0=0, e2=1, sb=1, ts=0, fs=0, pf=1, noqkv=0, qorder=(0,1,2), kv0=0, nofl=0, f3gap=3, l2pos=0, rsh=2, elate=0, NQ1=72, q2gap=2, noattn=0, nofft=0, es=0, nopub=0, gate=1, g1=1, g2=0, ez=6, qz=12, qgap=0, ers=5, qs=0, NM=48, egap=2, mgap=4, lgap=1, nocheck=0)
sVW = 19
sOOB = 68
sKIND, sPBO, sMBO = 27, 36, 65
sPBX = sPBW + 9
sXA = 19
sKVF, sFM = 69, 2
sSCW = 64
sM1, sM2, sM8 = 18, 39, 21
sX = 40
sMW2, sMW3 = 42, 43
sMBW = 24
def gen_step(a, ST, LD, prof, tag):
    srd = SRD_WS
    P = Stamps(a, prof)
    ool = []
    LOOP = f'{tag}_loop'; DONE = f'{tag}_done'
    A4 = AQ(4)
    def cnt(i): return f's_add_u32 s{sPROF+i}, s{sPROF+i}, 1\n' if prof else ''
    def tmo(ok): return f's_add_u32 s{sRT}, s{sRT}, 1\ns_cmp_gt_u32 s{sRT}, 0x100000\ns_cbranch_scc1 {ok}\n'
    def br(lbl): return f's_cbranch_vccnz {lbl}' if not OPT['nocheck'] else 's_nop 0'
    def ld(so): return f'buffer_load_dwordx4 {vr(A4)}, v{L16}, {srd}, s{so} offen {LD}'
    def cmpu(r): return f'v_cmp_u_f32 vcc, v{r}, v{r+2}'
    AD3 = T0
    lda = (f'buffer_load_dwordx4 {vr(VX)}, v{L16}, {srd}, s{sM1} offen {LD}\n'
           f'buffer_load_dwordx4 {vr(VX+4)}, v{L16}, {srd}, s{sM1} offen offset:1024 {LD}')
    book = (f'v_cmp_eq_u32 s[{sFM}:{sFM+1}], v{TAGV}, v{FLG}\n'
            f's_add_u32 s{sTMP}, s{sKV}, {0 if OPT["kv0"] else KV_SEG}\ns_add_u32 s{sSTEP}, s{sSTEP}, 1')
    a(f'{LOOP}:')
    P('top')
    a(lda)
    a(f'v_add_u32 v{T1}, s{sMW}, v{L16}')
    for r in range(Q0, VA1+4, 2): a(f'v_mov_b64 {vr(r,2)}, 0')
    for c in range(2, 10): a(f's_xor_b32 s{sPBW+c}, s{sPBW+c}, {PB_STRIDE}')
    a(f'{tag}_la:')
    a(lda)
    a('s_waitcnt vmcnt(3)')
    a(f'v_cmp_u_f32 s[{sX}:{sX+1}], v{VX}, v{VX+2}')
    a(f'ds_write_b128 v{T1}, {vr(VX)}')
    a('s_waitcnt vmcnt(2)')
    a(cmpu(VX+4))
    a(f'ds_write_b128 v{T1}, {vr(VX+4)} offset:1024')
    a(f's_or_b64 vcc, vcc, s[{sX}:{sX+1}]')
    a(br(f'{tag}_rt0'))
    ool.append(f'{tag}_rt0:\n' + cnt(0) + tmo(f'{tag}_ok0') + f's_branch {tag}_la')
    a(f'{tag}_ok0:')
    P('mem0')
    a(book)
    a(f'v_add_u32 v{T1}, s{sMW3}, v{L16}')
    a('s_waitcnt lgkmcnt(0)')
    a('s_barrier')
    def rd(c): return f'ds_read_b128 {vr(AF(c))}, v{L16} offset:{LDS_MEM + 1024*c}'
    def M(c, n): return [smf(ACC[t], AF(c), wreg(t, c)) for t in range(n)]
    def dl(c): return f'buffer_load_dwordx4 {vr(AF(c))}, v{L16}, {srd}, s{sM2} offen offset:{(c-4)*1024} {LD}'
    ldb = f's_mov_b32 exec_hi, 0xffff\nbuffer_load_dwordx4 {vr(VX)}, v{L16}, {srd}, s{sM8} offen {LD}\ns_mov_b32 exec_hi, -1'
    chkb = f's_mov_b32 exec_hi, 0xffff\n{cmpu(VX)}\nds_write_b128 v{T1}, {vr(VX)}\ns_mov_b32 exec_hi, -1'
    for c in range(4): a(rd(c))
    P('barA')
    bp = OPT['bp']
    seq = []
    for c in range(4):
        seq.append(f's_waitcnt lgkmcnt({3-c})')
        for x in M(c, 6): seq.append(x)
    if not OPT['dir']:
        k = 0
        orx = f's_or_b64 vcc, vcc, s[{sX}:{sX+1}]'
        for x in seq:
            a(x)
            if x.startswith('v_smfmac'):
                if k == bp: a(dl(4))
                if k == bp+1: a(ldb)
                if k == max(bp+2, 6): a(dl(5))
                if k == 21: a('s_waitcnt vmcnt(2)'); a(cmpu(AF(4)))
                if OPT['qs'] and k in (5, 11, 17): P(f'c{k//6}')
                k += 1
        a(br(f'{tag}_rt2'))
        ool.append(f'{tag}_rt2:\n' + cnt(3) + tmo(f'{tag}_ok2') + dl(4) + '\n' + ldb + '\n' + dl(5) + '\ns_waitcnt vmcnt(2)\n' + cmpu(AF(4)) + '\n' + br(f'{tag}_rt2') + f'\ns_branch {tag}_ok2')
        a(f'{tag}_ok2:')
        if OPT['qs']: P('c3')
        m = M(4, 4)
        a(m[0]); a('s_waitcnt vmcnt(1)'); a(chkb); a(m[1]); a('s_waitcnt vmcnt(0)'); a(f'v_cmp_u_f32 s[{sX}:{sX+1}], v{AF(5)}, v{AF(5)+2}'); a(m[2])
        a(m[3]); a(orx); a(br(f'{tag}_rt1'))
        ool.append(f'{tag}_rt1:\n' + cnt(2) + tmo(f'{tag}_ok1') + ldb + '\n' + dl(5) + '\ns_waitcnt vmcnt(0)\n' + chkb + f'\nv_cmp_u_f32 s[{sX}:{sX+1}], v{AF(5)}, v{AF(5)+2}\ns_nop 1\n'
                   + orx + '\n' + br(f'{tag}_rt1') + f'\ns_branch {tag}_ok1')
        a(f'{tag}_ok1:')
        a(f's_bitcmp1_b64 s[{sFM}:{sFM+1}], s{sSTEP}')
        a('s_waitcnt lgkmcnt(0)')
        a('s_barrier')
        if OPT['qs']: P('barB')
        a(rd(6)); a(rd(7)); a(rd(8))
    else:
        def dd(c): return f'buffer_load_dwordx4 {vr(AF(c))}, v{L16}, {srd}, s{sM2 if c < 8 else sM8} offen offset:{((c-4)%4)*1024} {LD}'
        k = 0
        when = {bp: 4, max(bp+1, 6): 5, 12: 6, 18: 7}
        for x in seq:
            a(x)
            if x.startswith('v_smfmac'):
                if k in when: a(dd(when[k]))
                if k == 21: a('s_waitcnt vmcnt(3)'); a(cmpu(AF(4)))
                if OPT['qs'] and k in (5, 11, 17): P(f'c{k//6}')
                k += 1
        def rt(n, hi):
            ool.append(f'{tag}_d{n}:\n' + cnt(2) + tmo(f'{tag}_dk{n}') + '\n'.join(dd(x) for x in range(n, hi+1)) + f'\ns_waitcnt vmcnt({hi-n})\n' + cmpu(AF(n)) + '\n' + br(f'{tag}_d{n}') + f'\ns_branch {tag}_dk{n}')
        a(br(f'{tag}_d4')); rt(4, 7); a(f'{tag}_dk4:')
        if OPT['qs']: P('c3')
        for c in range(4, 8):
            m = M(c, 4)
            a(m[0])
            if c == 4: a(dd(8))
            a(m[1]); a(f's_waitcnt vmcnt({8-c-1})'); a(cmpu(AF(c+1))); a(m[2]); a(m[3]); a(br(f'{tag}_d{c+1}')); rt(c+1, 8); a(f'{tag}_dk{c+1}:')
            if OPT['qs'] and c in (4, 5): P('x')
        a(f's_bitcmp1_b64 s[{sFM}:{sFM+1}], s{sSTEP}')
    a(f's_cbranch_scc0 {tag}_fl')
    a(f'{tag}_flok:')
    if OPT['ts']:
        a(f's_lshl_b32 s{sTO}, s{sH}, 2\ns_add_u32 s{sTO}, s{sTO}, s{sW}\ns_lshl_b32 s{sTO}, s{sTO}, 6\ns_add_u32 s{sTO}, s{sTO}, s{sSTEP}\ns_lshl_b32 s{sTO}, s{sTO}, 2\ns_add_u32 s{sTO}, s{sTO}, {WS_PROF+0x30000}')
        a(f'v_mov_b32 v{T0}, s{P.base+4}\ns_mov_b64 exec, 1\nbuffer_store_dword v{T0}, v{L16}, {srd}, s{sTO} offen\ns_mov_b64 exec, -1')
    ool.append(f'{tag}_fl:\n' + tmo(f'{tag}_flok') + f'v_lshrrev_b32 v{T0}, 2, v{L16}\nbuffer_load_dword v{FLG}, v{T0}, {srd}, s{sKVF} offen sc1\ns_waitcnt vmcnt(0)\n'
               f'v_cmp_eq_u32 s[{sFM}:{sFM+1}], v{TAGV}, v{FLG}\ns_nop 1\ns_bitcmp1_b64 s[{sFM}:{sFM+1}], s{sSTEP}\ns_cbranch_scc0 {tag}_fl\ns_branch {tag}_flok')
    assert not OPT['dir']
    late = []
    rops = [
        f'v_mov_b64 {vr(T0,2)}, -1\ns_mov_b32 exec_hi, 0\nbuffer_store_dwordx4 {vr(PUB)}, v{ORD}, {srd}, s{sOOB if OPT["nopub"] else sMH} offen sc1',
        f'buffer_store_dwordx2 {vr(T0,2)}, v{PBST}, {srd}, s{sMBO} offen {ST}\ns_mov_b32 exec_hi, -1\nv_lshlrev_b32 v{T1}, {OPT["rsh"]}, v{L16}',
        f'buffer_store_dword v{T0}, v{T1}, {srd}, s{sPBO} offen {ST}',
        f'buffer_store_dword v{T0}, v{T1}, {srd}, s{sPBO} offen offset:8 {ST}',
    ]
    m = M(5, 4)
    a(f's_cmp_eq_u64 s[{sFM}:{sFM+1}], -1')
    a(m[0])
    a(f's_cbranch_scc0 {tag}_fa')
    a(f'{tag}_fad:')
    ool.append(f'{tag}_fa:\nv_lshrrev_b32 v{T1}, 2, v{L16}\nbuffer_load_dword v{FLG}, v{T1}, {srd}, s{sKVF} offen sc1\ns_branch {tag}_fad')
    a(m[1]); a(f'buffer_load_dwordx4 {vr(VX)}, v{L16}, {srd}, s{sKV} offen offset:2048 sc1')
    a(m[2]); a(m[3]); a(f'buffer_load_dwordx4 {vr(VX+4)}, v{L16}, {srd}, s{sKV} offen offset:3072 sc1')
    if OPT['qs']: P('c5')
    m = M(6, 4)
    a('s_waitcnt lgkmcnt(2)')
    for k in range(4):
        a(m[k])
        a(rops[k])
    for c in range(7, 9):
        m = M(c, 4)
        a(f's_waitcnt lgkmcnt({8-c})')
        for k, x in enumerate(m):
            if c == 8 and k == 3: a(cvt(Q0, Q0, Q0+1))
            a(x)
    P('qk')
    vq = [(t, c) for c in (5, 6, 7, 4, 8) for t in (4, 5)]
    def vm(n=1):
        for _ in range(n):
            t, c = vq.pop(0); a(smf(ACC[t], AF(c), wreg(t, c)))
    a(cvt(Q0+1, Q0+2, Q0+3)); a(cvt(Q0+2, K0, K0+1)); a(cvt(Q0+3, K0+2, K0+3))
    a(cvt(Q1, Q1, Q1+1)); a(cvt(Q1+1, Q1+2, Q1+3))
    a(mfma(K0, Q0, SEL))
    a(cvt(Q1+2, K1, K1+1)); a(cvt(Q1+3, K1+2, K1+3))
    a(mfma(K1, Q1, SEL))
    U = Q0
    a(cvt(U, K0, K0+1)); a(cvt(U+1, K0+2, K0+3))
    vm(1)
    a(cvt(U+2, K1, K1+1)); a(cvt(U+3, K1+2, K1+3))
    TX0, TX1, TM = K0, Q1, K1
    a(f'v_add_u32 v{T0}, s{sSCW}, v{L16}')
    a(mfma(TX0, KX, U)); a(mfma(TX1, KX+4, U)); a(mfma(TM, U, U))
    if not OPT['qs']: P('S')
    for r in range(4):
        a(f'v_mov_b32_dpp v{TX0+r}, v{TX1+r} row_ror:8 row_mask:0xf bank_mask:0xc')
    a(f'ds_write_b128 v{T0}, {vr(TX0)} offset:{LDS_SC}')
    a(f's_mov_b64 exec, s[66:67]')
    a(f'ds_write_b128 v{MW}, {vr(TM)} offset:{LDS_SC}')
    a(f's_mov_b64 exec, -1')
    vm(1)
    a(f'buffer_load_dwordx4 {vr(KX)}, v{L16}, {srd}, s{sTMP} offen sc1')
    vm(1)
    a(f'buffer_load_dwordx4 {vr(KX+4)}, v{L16}, {srd}, s{sTMP} offen offset:1024 sc1')
    for _ in range(3):
        vm(1)
        for x in late[:2]: a(x)
        late = late[2:]
    assert not late
    if not OPT['qs']: P('wr')
    a(f's_waitcnt lgkmcnt(0)')
    a('s_barrier')
    P('bar1')
    RD = AQ(0)
    a(f'ds_read_b128 {vr(RD)}, v{L16} offset:{LDS_SC}')
    a(f'ds_read_b128 {vr(RD+4)}, v{L16} offset:{LDS_SC+1280}')
    vm(1)
    a(f'ds_read_b128 {vr(RD+8)}, v{L16} offset:{LDS_SC+2560}')
    a(f'ds_read_b128 {vr(TX0)}, v{L16} offset:{LDS_SC+3840}')
    vm(1)
    MRD = Q1
    for w in range(4):
        a(f'ds_read_b64 {vr(MRD+2*w,2)}, v{MR} offset:{LDS_SC+1280*w}')
        if w == 1: vm(1)
    vm(1)
    assert not vq
    a('s_waitcnt lgkmcnt(6)')
    a(pkadd(RD, RD, RD+4)); a(pkadd(RD+2, RD+2, RD+6))
    a('s_waitcnt lgkmcnt(4)')
    a(pkadd(TX0, TX0, RD+8)); a(pkadd(TX0+2, TX0+2, RD+10))
    a('s_waitcnt lgkmcnt(0)')
    a(pkadd(MRD, MRD, MRD+2)); a(pkadd(MRD+4, MRD+4, MRD+6))
    SX = RD; SM = MRD
    a(pkadd(SX, SX, TX0)); a(pkadd(SX+2, SX+2, TX0+2)); a(pkadd(SM, SM, MRD+4))
    MX = T0
    a(f'v_max3_f32 v{MX}, v{SX}, v{SX+1}, v{SX+2}')
    a(f'v_max3_f32 v{MX}, v{MX}, v{SX+3}, v{SM}')
    a(f'v_max_f32 v{MX}, v{MX}, v{SM+1}')
    if OPT['es']: P.k += 1; P.names.append('adds')
    elif not OPT['qs']: P('adds')
    def woread(i, buf): a(f'ds_read_b128 {vr(buf)}, v{WOA} offset:{i*1024}')
    WB = [K1, AQ(1), AQ(2), VX, VX+4, VA0, VA1]
    woread(1, WB[1]); woread(2, WB[2])
    a(f'v_max_f32_dpp v{MX}, v{MX}, v{MX} row_ror:8 row_mask:0xf bank_mask:0xf')
    a(f'v_mov_b32 v{T1}, v{MX}')
    VM = U
    a(cvt(VM, VA0, VA0+1)); a(cvt(VM+1, VA0+2, VA0+3))
    a(f'v_permlane16_swap_b32 v{MX}, v{T1}')
    a(f'v_max_f32 v{MX}, v{MX}, v{T1}')
    a(f'v_mov_b32 v{T1}, v{MX}')
    a(cvt(VM+2, VA1+2, VA1+3)); a(cvt(VM+3, VA1, VA1+1))
    a(f'v_permlane32_swap_b32 v{MX}, v{T1}')
    a(f'v_max_f32 v{MX}, v{MX}, v{T1}')
    a(f'v_mul_f32 v{MX}, s{sC}, v{MX}')
    for r in (SX, SX+2, SM):
        a(f'v_pk_fma_f32 {vr(r,2)}, {vr(r,2)}, s[{sC}:{sC+1}], {vr(MX,2)} op_sel_hi:[1,1,0] neg_lo:[0,0,1] neg_hi:[0,0,1]')
    for r in [SX, SX+1, SX+2, SX+3, SM, SM+1]: a(f'v_exp_f32 v{r}, v{r}')
    a('s_waitcnt vmcnt(6)')
    a(f'v_swap_b32 v{VX+4}, v{VX+6}')
    PR = TX0; PM = K1; VM = U
    a(cvt(PR, SX, SX+1)); a(cvt(PR+1, SX+2, SX+3)); a(cvt(PM, SM, SM+1))
    a(f'v_mov_b32_dpp v{PR+2}, v{PR} row_ror:8 row_mask:0xf bank_mask:0xf')
    a(f'v_mov_b32_dpp v{PR+3}, v{PR+1} row_ror:8 row_mask:0xf bank_mask:0xf')
    a(f'v_mov_b32_dpp v{PM+1}, v{PM} row_ror:8 row_mask:0xf bank_mask:0xf')
    a(f'v_swap_b32 v{VX+5}, v{VX+7}')
    if OPT['es']: P.k += 1; P.names.append('smax')
    elif not OPT['qs']: P('smax')
    PD = [AQ(3), AQ(4)]
    SUM = T0
    a(mfma(PD[0], VX, PR))
    a(f'v_add_f32 v{T1}, v{SM}, v{SM+1}')
    a(pkadd(SX, SX, SX+2))
    a(mfma(PD[1], VX+4, PR))
    a(f'v_cndmask_b32 v{T1}, 0, v{T1}, s[{sMG2}:{sMG2+1}]')
    a(f'v_add_f32 v{SUM}, v{SX}, v{SX+1}')
    a(f'v_mfma_f32_16x16x16_bf16 {vr(PD[0])}, {vr(VM,2)}, {vr(PM,2)}, {vr(PD[0])}')
    a(f'v_add_f32 v{SUM}, v{SUM}, v{T1}')
    a(f'v_mfma_f32_16x16x16_bf16 {vr(PD[1])}, {vr(VM+2,2)}, {vr(PM,2)}, {vr(PD[1])}')
    woread(0, WB[0]); woread(3, WB[3])
    a(f'v_add_f32_dpp v{SUM}, v{SUM}, v{SUM} row_ror:8 row_mask:0xf bank_mask:0xf')
    a(f'v_mov_b32 v{T1}, v{SUM}')
    for r in range(2): a(f'v_mov_b32_dpp v{PD[0]+r}, v{PD[1]+r} quad_perm:[0,1,2,3] row_mask:0xf bank_mask:0xc')
    a(f'v_permlane16_swap_b32 v{SUM}, v{T1}')
    a(f'v_add_f32 v{SUM}, v{SUM}, v{T1}')
    a(f'v_mov_b32 v{T1}, v{SUM}')
    for r in range(2,4): a(f'v_mov_b32_dpp v{PD[0]+r}, v{PD[1]+r} quad_perm:[0,1,2,3] row_mask:0xf bank_mask:0xc')
    a(f'v_permlane32_swap_b32 v{SUM}, v{T1}')
    a(f'v_add_f32 v{SUM}, v{SUM}, v{T1}')
    a(f'v_rcp_f32 v{SUM}, v{SUM}')
    O = PD[0]
    a('s_nop 0')
    for r in (0, 2): a(f'v_pk_mul_f32 {vr(O+r,2)}, {vr(O+r,2)}, {vr(SUM,2)} op_sel_hi:[1,0]')
    a(cvt(O, O, O+1)); a(cvt(O+1, O+2, O+3))
    a(f'ds_write_b64 v{OW}, {vr(O,2)}')
    if OPT['es']: P.k += 1; P.names.append('pv')
    else: P('pv')
    for i in range(4, 7): woread(i, WB[i])
    wrap = 0xfffcffff
    a(f"""
    s_add_u32 s{sM1}, s{sM1}, {MB_STRIDE}
    s_and_b32 s{sM1}, s{sM1}, {wrap}
    s_add_u32 s{sM8}, s{sM8}, {MB_STRIDE}
    s_and_b32 s{sM8}, s{sM8}, {wrap}
    s_add_u32 s{sM2}, s{sM2}, {MB_STRIDE}
    s_and_b32 s{sM2}, s{sM2}, {wrap}
    s_add_u32 s{sMBO}, s{sMBO}, {MB_STRIDE}
    s_and_b32 s{sMBO}, s{sMBO}, {wrap}
    """)
    a('s_waitcnt lgkmcnt(3)')
    a('s_barrier')
    if not OPT['qs']: P('bar2')
    if prof:
        a(f's_cmp_lg_u32 s{sSTEP}, 40\ns_cbranch_scc1 {tag}_nd')
        a(f's_lshl_b32 s{sTO}, s{sH}, 2\ns_add_u32 s{sTO}, s{sTO}, s{sW}\ns_lshl_b32 s{sTO}, s{sTO}, 7\ns_add_u32 s{sTO}, s{sTO}, {WS_PROF+0x20000}\ns_waitcnt lgkmcnt(0)\ns_mov_b64 exec, 1')
        for k in range(14): a(f'v_mov_b32 v{T0}, s{P.base+2*k}\nbuffer_store_dword v{T0}, v{L16}, {srd}, s{sTO} offen offset:{4*k}')
        a(f's_mov_b64 exec, -1\n{tag}_nd:')
    OA = [AQ(3), AQ(4), Q1, AQ(0)]
    for u in range(4): a(f'ds_read_b128 {vr(OA[u])}, v{ORD} offset:{u*512}')
    a(f"""
    s_add_u32 s{sMBW}, s{sMBW}, {MB_STRIDE}
    s_and_b32 s{sMBW}, s{sMBW}, {wrap}
    s_add_u32 s{sKV}, s{sKV}, {0 if OPT['kv0'] else KV_SEG}
    s_add_u32 s{sMH}, s{sMH}, {MH_STRIDE}
    s_xor_b32 s{sPBO}, s{sPBO}, {PB_STRIDE}
    s_cmp_eq_u32 s{sW}, 0
    """)
    a(f'v_add_u32 v{T0}, s{sXA}, v{L16}')
    NB = 7
    DD = [U, TX0]
    S2 = OA[0]; RDa = OA[3]
    own = lambda c: (WOA, c*4096, sPBW+c)
    X1 = (T0, 0, sPBX); X2 = (T1, 0, sPBX+1)
    T_W0 = [own(c) for c in range(6)]
    T_10 = [own(c) for c in range(7)] + [X1, own(7), own(8)]
    T_11 = T_10
    class St: pass
    st = St(); st.issued = NB; st.q = [4, 5, 6, 'o0', 'o1', 'o2', 'o3']
    def fork():
        n = St(); n.issued = st.issued; n.q = list(st.q); return n
    def need(S, ids):
        idx = max([S.q.index(x) for x in ids if x in S.q], default=-1)
        if idx >= 0:
            a(f's_waitcnt lgkmcnt({min(len(S.q)-1-idx, 15)})')
            del S.q[:idx+1]
    def post(T, c, k):
        d = DD[c % 2]
        if k == 0: a(cvt(d, d, d+1))
        if k == 1: a(cvt(d+1, d+2, d+3))
        if k == 2: a(f'buffer_store_dwordx2 {vr(d,2)}, v{PBST}, {srd}, s{T[c][2]} offen {ST}')
    def wread(S, T):
        i = S.issued; adr, imm, _ = T[i // 4]
        a(f'ds_read_b128 {vr(WB[i % NB])}, v{adr} offset:{imm + (i % 4)*1024}'); S.q.append(i); S.issued += 1
    s2b = {0: f'v_mov_b64 {vr(S2,2)}, 0\nv_mov_b64 {vr(S2+2,2)}, 0',
           1: f'v_mov_b32_dpp v{S2}, v{SEL2} quad_perm:[0,1,2,3] row_mask:0xf bank_mask:0x1',
           2: f'v_mov_b32_dpp v{S2+1}, v{SEL2+1} quad_perm:[0,1,2,3] row_mask:0xf bank_mask:0x1',
           3: f'v_mov_b32_dpp v{S2+2}, v{SEL2} quad_perm:[0,1,2,3] row_mask:0xf bank_mask:0x2\nv_mov_b32_dpp v{S2+3}, v{SEL2+1} quad_perm:[0,1,2,3] row_mask:0xf bank_mask:0x2'}
    def rload(R, i): return f'buffer_load_dwordx4 {vr(R[i])}, v{L16}, {srd}, s{sPBR} offen offset:{i*1024} {LD}'
    def slots(S, T, i0, i1, extra=None, red=False):
        N = 4*len(T)
        for i in range(i0, i1):
            c, u = divmod(i, 4)
            d = DD[c % 2]
            if c == 0: need(S, [f'o{u}'])
            elif u % 2 == 0: need(S, [i, i+1])
            a(mfma(d, WB[i % NB], OA[u], None if u == 0 else d))
            if S.issued < N and (c > 0 or not OPT['p0']): wread(S, T)
            if extra and i in extra: a(extra[i])
            if c >= (2 if OPT['p0'] else 1) and u >= 1: post(T, c-1, u-1)
            if red and c == len(T)-1: a(s2b[u])
        if i1 == N:
            for c in range(2): a(f's_xor_b32 s{sPBW+c}, s{sPBW+c}, {PB_STRIDE}')
            a(f's_cmp_eq_u32 s{sKIND}, 0')
            for k in range(3): post(T, len(T)-1, k)
    def zacc(o=None, lo=0, hi=12):
        for r in list(range(Q0, VA1+4, 2))[lo:hi]: a(f'v_mov_b64 {vr(r,2)}, 0')
    def xors(o=None):
        for c in range(2, 10): a(f's_xor_b32 s{sPBW+c}, s{sPBW+c}, {PB_STRIDE}')
    gwr = f'v_mov_b32 v{T0}, s{sSTEP}\nds_write_b32 v{L16}, v{T0} offset:{LDS_GATE}'
    def reduce(R, young, lbl, fail, gw=False):
        for i in range(4):
            a(f's_waitcnt vmcnt({young[i]})')
            a(mfma(RDa, S2, R[i], None if i == 0 else RDa))
        a('s_nop 6')
        a(f'{lbl}_c:')
        a(f'v_cmp_u_f32 vcc, v{RDa}, v{RDa}')
        for r in range(4): a(f'v_add_f32_dpp v{RDa+r}, v{RDa+r}, v{RDa+r} row_ror:8 row_mask:0xf bank_mask:0xf')
        a(cvt(PUB, RDa, RDa+1)); a(cvt(PUB+1, RDa+2, RDa+3))
        a(br(fail))
        a(f'{lbl}_ok:')
        a('s_mov_b32 exec_hi, 0')
        a(f'buffer_store_dwordx2 {vr(PUB,2)}, v{PBST}, {srd}, s{sMBW} offen {ST}')
        a('s_mov_b64 exec, -1')
        if gw: a(gwr)
        a(f's_xor_b32 s{sPBR}, s{sPBR}, {PB_STRIDE}')
        a(f's_cmp_eq_u32 s{sSTEP}, 63')
        a(f's_cbranch_scc1 {DONE}')
    def rl4(R): return '\n'.join(rload(R, i) for i in range(4))
    def plain_retry(R, lbl, okl, cl, site):
        ool.append(f'{lbl}:\n' + cnt(site) + tmo(okl) + rl4(R) + '\n' +
                   '\n'.join(f's_waitcnt vmcnt({3-i})\n' + mfma(RDa, S2, R[i], None if i == 0 else RDa) for i in range(4)) + f'\ns_nop 7\ns_branch {cl}')
    def gate(lbl):
        a(f'{lbl}:')
        a(f'ds_read_b32 v{T0}, v{L16} offset:{LDS_GATE}')
        a(tmo(f'{lbl}d'))
        a('s_waitcnt lgkmcnt(0)')
        a(f'v_cmp_ne_u32 vcc, s{sSTEP}, v{T0}')
        a(f's_cbranch_vccnz {lbl}')
        a(f'{lbl}d:')
    def PS(k):
        if prof: a(f's_memtime s[{P.base+2*k}:{P.base+2*k+1}]')
    def nops(n, why):
        n *= 8
        while n > 0:
            k = min(n, 16); a(f's_nop {k-1}   ; {why}'); n -= k
    kwo = P.k + (0 if OPT['qs'] else 1)
    R0 = [AQ(1), AQ(2), VX, VX+4]
    slots(st, T_11, 0, 4)
    if OPT['p0']:
        for _ in range(4): wread(st, T_11)
        for k in range(3): post(T_11, 0, k)
    if not OPT['qs']: P('wo0')
    slots(st, T_11, 4, 16)
    S0 = fork()
    a(f's_cbranch_scc1 {tag}_w0')
    slots(st, T_11, 16, 29)
    S3e = fork()
    a(f's_cmp_eq_u32 s{sKIND}, 1')
    a(f's_cbranch_scc1 {tag}_w3e')
    slots(st, T_11, 29, 40, red=True)
    PS(kwo)
    a(f's_cbranch_scc1 {tag}_k2')
    if not OPT['lz']: zacc()
    xors()
    if OPT['lg']: gate(f'{tag}_lgate')
    if OPT['lz']: zacc(lo=0, hi=OPT['lz'])
    for i in range(OPT['l0']): a('s_nop 7')
    a(rl4(R0))
    if OPT['lz']: zacc(lo=OPT['lz'])
    if OPT['ld']:
        if not OPT['lz']: a('s_sleep 1')
        a(f'{tag}_l2:')
        a(rl4(R0))
        reduce(R0, [7, 6, 5, 4], f'{tag}_rl', f'{tag}_lf')
        ool.append(f'{tag}_lf:\n' + cnt(5) + tmo(f'{tag}_rl_ok') + f's_branch {tag}_l2')
    else:
        reduce(R0, [3, 2, 1, 0], f'{tag}_rl', f'{tag}_lf')
        plain_retry(R0, f'{tag}_lf', f'{tag}_rl_ok', f'{tag}_rl_c', 5)
    PS(kwo+1); PS(0)
    a('s_waitcnt vmcnt(1)')
    a(f's_branch {tag}_ok0')
    a(f'{tag}_w0:')
    a('s_nop 1')
    slots(S0, T_W0, 16, 24, red=True)
    P('wo')
    nops(OPT['z0'], 'let the last partial stores land before the first poll')
    a(rl4(R0))
    nops(OPT['z1'], 'spacing between two overlapped poll rounds')
    a(f'{tag}_e2:')
    a(rl4(R0))
    reduce(R0, [7, 6, 5, 4], f'{tag}_re', f'{tag}_ef', gw=True)
    ool.append(f'{tag}_ef:\n' + cnt(1) + tmo(f'{tag}_re_ok') + f's_branch {tag}_e2')
    nops(OPT['z2'], 'let the publish stores land before the first poll')
    P('red')
    a(f's_branch {LOOP}')
    a(f'{tag}_k2:')
    a(f's_cmp_eq_u32 s{sSTEP}, 63')
    a(f's_cbranch_scc1 {tag}_end')
    a(f's_cmp_eq_u32 s{sW}, 3')
    a(f's_cbranch_scc1 {tag}_w3z')
    if OPT['fg']: gate(f'{tag}_gate')
    for i in range(OPT['g2']): a('s_nop 7')
    PS(kwo+1)
    a(f's_branch {LOOP}')
    a(f'{tag}_w3e:')
    R3 = [WB[i % NB] for i in range(33, 37)]
    slots(S3e, T_10, 29, 40, extra={33+i: rload(R3, i) for i in range(4)}, red=True)
    PS(kwo)
    reduce(R3, [6, 5, 4, 2], f'{tag}_r3', f'{tag}_3f')
    plain_retry(R3, f'{tag}_3f', f'{tag}_r3_ok', f'{tag}_r3_c', 4)
    a(f'{tag}_w3z:')
    zacc(); xors()
    PS(kwo+1); PS(0)
    a(f's_branch {tag}_ok0')
    for o in ool: a(o)
    a(f'{DONE}:')

def init_sgprs(a):
    srd = f's[{sWS}:{sWS+3}]'
    a(f'''
    s_mov_b32 s{sSTEP}, 0
    s_mov_b32 s{sRT}, 0
    s_mov_b32 s{sOOB}, 0x7f000000
    s_lshl_b32 s{sM1}, s{sW}, 10
    s_add_u32 s{sMW}, s{sM1}, {LDS_MEM}
    s_add_u32 s{sM1}, s{sM1}, {WS_MB+1024}
    s_mov_b32 s{sM2}, {WS_MB+1024+4096}
    s_mul_i32 s{sM8}, s{sW}, 768
    s_add_u32 s{sMW3}, s{sM8}, {LDS_MEM+6144}
    s_add_u32 s{sM8}, s{sM8}, {WS_MB+1024+6144}
    {'s_mov_b32 s%d, %d' % (sM8, WS_MB+1024+8192) if OPT['dir'] else ''}
    s_lshl_b32 s{sTMP}, s{sH}, 7
    s_lshl_b32 s{sTMP2}, s{sW}, 13
    s_add_u32 s{sPBW}, s{sTMP}, s{sTMP2}
    s_add_u32 s{sPBW}, s{sPBW}, {WS_PB}
    ''')
    for c in range(1, 9): a(f's_add_u32 s{sPBW+c}, s{sPBW}, {c*32768}')
    a(f'''
    s_lshl_b32 s{sTMP}, s{sH}, 2
    s_add_u32 s{sTMP}, s{sTMP}, s{sW}
    s_lshl_b32 s{sKV}, s{sTMP}, 12
    s_add_u32 s{sKV}, s{sKV}, {WS_KV}
    s_lshl_b32 s{sKVF}, s{sTMP}, 8
    s_add_u32 s{sKVF}, s{sKVF}, {WS_KVF}
    s_add_u32 s{sTMP}, s{sW}, 5
    s_lshl_b32 s{sXA}, s{sTMP}, 12
    s_add_u32 s{sXA}, s{sXA}, {LDS_WO}
    s_add_u32 s{sXA+1}, s{sXA}, {3*4096}
    s_lshl_b32 s{sPBX}, s{sTMP}, 15
    s_lshl_b32 s{sTMP2}, s{sH}, 7
    s_add_u32 s{sPBX}, s{sPBX}, s{sTMP2}
    s_add_u32 s{sPBX}, s{sPBX}, {WS_PB}
    s_add_u32 s{sPBX+1}, s{sPBX}, {3*32768}
    s_mov_b32 s{sKIND}, 0
    s_mov_b32 s{sTMP}, 72
    s_cmp_eq_u32 s{sW}, 0
    s_cselect_b32 s{sKIND}, 2, s{sKIND}
    s_cselect_b32 s{sTMP}, s{sH}, s{sTMP}
    s_add_u32 s{sTMP2}, s{sH}, 40
    s_cmp_eq_u32 s{sW}, 1
    s_cselect_b32 s{sKIND}, 2, s{sKIND}
    s_cselect_b32 s{sTMP}, s{sTMP2}, s{sTMP}
    s_add_u32 s{sTMP2}, s{sH}, 32
    s_cmp_eq_u32 s{sW}, 3
    s_cselect_b32 s{sTO}, s{sTMP2}, 99
    s_cmp_lt_u32 s{sTO}, 40
    s_cselect_b32 s{sKIND}, 1, s{sKIND}
    s_cselect_b32 s{sTMP}, s{sTO}, s{sTMP}
    s_lshl_b32 s{sPBR}, s{sTMP}, 12
    s_add_u32 s{sPBR}, s{sPBR}, {WS_PB}
    s_lshl_b32 s{sRED}, s{sTMP}, 7
    s_add_u32 s{sRED}, s{sRED}, 1024
    s_cmp_eq_u32 s{sKIND}, 0
    s_cselect_b32 s{sRED}, 0x7f000000, s{sRED}
    s_lshl_b32 s{sMH}, s{sTMP}, 8
    s_cmp_eq_u32 s{sKIND}, 0
    s_cselect_b32 s{sMH}, 0x7f000000, s{sMH}
    s_add_u32 s{sMH}, s{sMH}, {WS_MH - LDS_OB}
    s_add_u32 s{sMBO}, s{sRED}, {WS_MB+2*MB_STRIDE}
    s_add_u32 s{sMBW}, s{sRED}, {WS_MB}
    s_xor_b32 s{sPBO}, s{sPBR}, {PB_STRIDE}
    s_cmp_eq_u32 s{sKIND}, 0
    s_cselect_b32 s{sPBO}, 0x7f000000, s{sPBO}
    ''')

def gen_chain(a, prof=False):
    srd = SRD_WS
    sA, sB, sC3, sD = 72, 76, 80, 84
    sM0 = 88
    from qkv import pstamp
    a('R_chain:')
    pstamp(a, prof, 0, 76)
    make_srd(a, sA, KA_WQ, 576*8192); make_srd(a, sB, KA_WK, 576*8192); make_srd(a, sC3, KA_WV, 576*8192)
    make_srd(a, sD, KA_WO, 4096*1152); make_srd(a, sM0, KA_MEM0, 9216)
    a(f's_load_dwordx2 s[92:93], s[0:1], {KA_DBG}')
    TA = 44; TMPB = 20; WOV = 26
    a(f'''
    s_mov_b32 s{sW}, s{sWAVE}
    s_mov_b32 s{sH}, s{sRANK}
    s_mul_i32 s{sTMP2}, s{sW}, 36864
    s_add_u32 s94, s{sTMP2}, {LDS_WO}
    s_lshl_b32 s95, s{sH}, 8
    s_lshl_b32 s{sTMP}, s{sW}, 17
    s_add_u32 s95, s95, s{sTMP}             ; h*256 + w*16*8192
    s_mul_i32 s97, s{sH}, {128*1152}
    s_lshl_b32 s{sTMP}, s{sW}, 5
    s_add_u32 s97, s97, s{sTMP}             ; h*128*1152 + w*32
    v_and_b32 v28, 63, v0
    s_waitcnt lgkmcnt(0)
    ''')
    def after_issue():
        a(f's_waitcnt vmcnt(36)\nv_add_u32 v{TAGV}, 1, v4')
        a(f'''
        v_lshrrev_b32 v29, 4, v28               ; g'
        v_bfe_u32 v30, v28, 2, 2                ; r4
        v_and_b32 v31, 3, v28                   ; c4
        v_and_b32 v32, 1, v30                   ; r4&1
        v_lshrrev_b32 v33, 1, v30               ; r4>>1
        v_and_b32 v34, 1, v29                   ; g'&1
        v_lshl_add_u32 v35, v33, 3, v32
        v_lshl_add_u32 v35, v34, 2, v35         ; row16
        v_lshl_add_u32 v36, v34, 1, v32
        v_lshl_add_u32 v36, v33, 2, v36         ; swz
        s_lshl_b32 s{sTMP}, s{sW}, 1
        v_xor_b32 v36, s{sTMP}, v36
        v_lshlrev_b32 v35, 8, v35
        v_lshl_add_u32 v35, v36, 5, v35
        v_lshl_add_u32 v35, v31, 3, v35
        v_lshrrev_b32 v37, 1, v29
        v_mul_u32_u24 v37, 36864, v37
        v_add_u32 v35, v35, v37
        v_add_u32 v{TA}, {LDS_WO}, v35
        v_xor_b32 v{TA+1}, 32, v{TA}
        v_add_u32 v{TA+2}, {2*36864}, v{TA}
        v_add_u32 v{TA+3}, {2*36864}, v{TA+1}
        v_lshrrev_b32 v{WOV}, 1, v28
        v_mul_u32_u24 v{WOV}, 1152, v{WOV}
        v_and_b32 v38, 1, v28
        v_lshl_add_u32 v{WOV}, v38, 4, v{WOV}
        v_lshrrev_b32 v39, 2, v28
        v_lshlrev_b32 v39, 5, v39
        v_lshl_add_u32 v39, v31, 3, v39
        v_add_u32 v39, s94, v39
        v_and_b32 v70, 7, v28
        v_mul_u32_u24 v70, 1152, v70
        v_lshl_add_u32 v70, v34, 3, v70
        ''')
        consts(a)
        init_sgprs(a)
        a(f'''
        v_mov_b64 v[72:73], -1
        v_mov_b64 v[74:75], -1
        s_sub_u32 s{sTMP}, s{sRED}, 1024
        s_lshr_b32 s{sTMP}, s{sTMP}, 3
        buffer_load_dwordx2 {vr(PUB,2)}, v70, s[{sM0}:{sM0+3}], s{sTMP} offen
        ''')
        a(f'v_lshlrev_b32 v71, 2, v{L16}')
        a(f'buffer_store_dwordx4 v[72:75], v71, {srd}, s{sPBO} offen')
        a(f's_xor_b32 s{sTMP}, s{sPBO}, {PB_STRIDE}')
        a(f'buffer_store_dwordx4 v[72:75], v71, {srd}, s{sTMP} offen')
        a('s_mov_b32 exec_hi, 0')
        for k in range(1, 4):
            a(f's_add_u32 s{sTMP}, s{sRED}, {WS_MB + k*MB_STRIDE}')
            a(f'buffer_store_dwordx2 v[72:73], v{PBST}, {srd}, s{sTMP} offen')
        a('s_mov_b32 exec_hi, -1')
        return 6
    def reads(m, c):
        out = []
        for t in range(2):
            tile = [0, 1, 4][m] + ([0, 2][t] if m < 2 else t)
            w = wreg(tile, c)
            k, lo = w[0], int(w[2:w.index(':')])
            for hb2 in range(2):
                for rh in range(2):
                    r = lo + 4*hb2 + 2*rh
                    out.append(f'ds_read_b64_tr_b16 {k}[{r}:{r+1}], v{TA+2*hb2+t} offset:{c*4096 + rh*512}')
        return out
    def wo_dma(c):
        if DBG.get('nowo'): return []
        return [f's_add_u32 s96, s97, {c*128 + j*32*1152}\ns_add_u32 m0, s94, {c*4096 + j*1024}\n'
                f'buffer_load_dwordx4 v{WOV}, s[{sD}:{sD+3}], s96 offen lds' for j in range(4)]
    pstamp(a, prof, 1, 76)
    def pr(m, c):
        n = 0
        if c == 8 and prof and not DBG.get('nops'): pstamp(a, prof, 2+m, 76); n += 1
        if (m, c) == (1, 0) and not DBG.get('noinit'):
            a(f's_add_u32 s{sTMP}, s{sRED}, {WS_MB}')
            a(f's_mov_b32 exec_hi, 0\nbuffer_store_dwordx2 {vr(PUB,2)}, v{PBST}, {srd}, s{sTMP} offen')
            for k in range(0, 4):
                a(f's_add_u32 s{sTMP}, s{sRED}, {WS_MB + k*MB_STRIDE}')
                a(f'buffer_load_dwordx2 v[72:73], v{PBST}, {srd}, s{sTMP} offen sc1')
            a('s_mov_b32 exec_hi, -1')
            a(f'buffer_load_dword v72, v71, {srd}, s{sPBO} offen sc1')
            a(f's_xor_b32 s{sTMP}, s{sPBO}, {PB_STRIDE}')
            a(f'buffer_load_dword v72, v71, {srd}, s{sTMP} offen sc1')
            n += 7
        if (m, c) == (2, 2):
            a(f'''
            s_cmp_lg_u32 s{sW}, 0
            s_cbranch_scc1 C_noat
            s_mov_b64 exec, 1
            v_mov_b32 v70, 64
            v_mov_b32 v73, 1
            global_atomic_add v70, v73, s[92:93]
            s_mov_b64 exec, -1
C_noat:
            ''')
        return n
    cnt = stage_weights(a, 'C', [f's[{x}:{x+3}]' for x in (sA, sB, sC3)], reads, 'chain', LDS_WO, TMPB, [95, 96, 94],
                        extra_dma=wo_dma, after_issue=after_issue, post_read=pr)
    a(f'''
    v_mov_b32 v{T0}, 64
    v_lshrrev_b32 v{T1}, 2, v{L16}
    global_load_dword v76, v{T0}, s[92:93] sc1
    buffer_load_dword v{FLG}, v{T1}, {srd}, s{sKVF} offen sc1
    ''')
    cnt[-1] += 2
    for c in range(9):
        a(f's_waitcnt vmcnt({sum(cnt[27+c+1:]) + (2 if c == 8 else 0)})')
        b = 40 + 16*(c % 2)
        for u in range(4):
            for rh in range(2):
                a(f'ds_read_b64_tr_b16 v[{b+4*u+2*rh}:{b+4*u+2*rh+1}], v39 offset:{c*4096 + u*1024 + rh*512}')
        a('s_waitcnt lgkmcnt(0)')
        for u in range(4):
            a(f'ds_write_b128 v{WOA}, {vr(b+4*u)} offset:{(4*c+u)*1024}')
    if OPT['noqkv']:
        a('s_waitcnt vmcnt(0)'); pstamp(a, prof, 5, 76); a('s_endpgm')
    a(f'''
    s_waitcnt vmcnt(0)
    s_branch C_wi2
C_wi:
    global_load_dword v76, v{T0}, s[92:93] sc1
    buffer_load_dword v{FLG}, v{T1}, {srd}, s{sKVF} offen sc1
    s_waitcnt vmcnt(0)
C_wi2:
    v_readfirstlane_b32 s{sTMP}, v76
    v_cmp_eq_u32 s[{sFM}:{sFM+1}], v{TAGV}, v{FLG}
    s_add_u32 s{sRT}, s{sRT}, 1
    s_cmp_gt_u32 s{sRT}, 0x100000
    s_cbranch_scc1 C_wfd
    s_cmp_lt_u32 s{sTMP}, 32
    s_cbranch_scc1 C_wi
    s_bitcmp1_b64 s[{sFM}:{sFM+1}], 0
    s_cbranch_scc0 C_wi
C_wfd:
    s_waitcnt lgkmcnt(0)
    buffer_load_dwordx4 {vr(KX)}, v{L16}, {srd}, s{sKV} offen sc1
    buffer_load_dwordx4 {vr(KX+4)}, v{L16}, {srd}, s{sKV} offen offset:1024 sc1
    ''')
    pstamp(a, prof, 5, 76)
    if OPT['noqkv']: a('s_endpgm')
    for r in range(Q0, VA1+4, 2): a(f'v_mov_b64 {vr(r,2)}, 0')
    if prof:
        for i in range(8): a(f's_mov_b32 s{sPROF+i}, 0')
        a('s_memrealtime s[28:29]\ns_memtime s[32:33]')
    a(f's_bitcmp1_b32 s{sW}, 0\ns_cbranch_scc1 F_ok0')
    for c in range(2, 10): a(f's_xor_b32 s{sPBW+c}, s{sPBW+c}, {PB_STRIDE}')
    gen_step(a, '', 'sc1', prof, 'F')
    a(f'''
    s_mov_b32 exec_hi, 0
    buffer_store_dwordx4 {vr(PUB)}, v{ORD}, {srd}, s{sMH} offen sc1
    s_mov_b64 exec, -1
F_end:
    ''')
    if prof:
        a(f'''
        s_memrealtime s[30:31]
        s_memtime s[74:75]
        s_waitcnt lgkmcnt(0)
        s_sub_u32 s74, s74, s32
        s_lshl_b32 s{sTMP}, s{sH}, 2
        s_add_u32 s{sTMP}, s{sTMP}, s{sW}
        s_lshl_b32 s{sTMP}, s{sTMP}, 7
        s_add_u32 s{sTMP}, s{sTMP}, {WS_PROF}
        v_mov_b32 v1, 0
        ''')
        regs = [sPROF+i for i in range(8)] + [sPROF]*4 + [70, 28, 30, sRT] + [74+2*i for i in range(14)]
        for i, r in enumerate(regs):
            a(f'v_mov_b32 v2, s{r}\nbuffer_store_dword v2, v1, {srd}, s{sTMP} offen offset:{4*i}')
    a('s_endpgm')
```

```python
import sys
from common import *
import chain, qkv, fft, oproj
NAME = 'concat_heads__spectral_gfnet__memory_aug_recurrent_mem_tr__prompt_kernel'
def gen(prof=False, name=NAME):
    a = Asm()
    a('; @launch grid=(256,1,1) block=(256,1,1) lds=163840')
    a('.amdgcn_target "amdgcn-amd-amdhsa--gfx950"\n.text')
    a(kernel_header(name))
    a(f'''
    s_load_dwordx2 s[12:13], s[0:1], {KA_DBG}
    s_load_dwordx2 s[{sWS}:{sWS+1}], s[0:1], {KA_WS}
    s_getreg_b32 s{sXCC}, hwreg(HW_REG_XCC_ID)
    s_mov_b32 s{sWS+2}, {WS_SIZE}
    s_mov_b32 s{sWS+3}, 0x00020000
    ''')
    if prof: a('s_memrealtime s[70:71]')
    a(f'''
    s_and_b32 s{sXCC}, s{sXCC}, 7
    v_lshrrev_b32 v2, 6, v0
    v_mov_b32 v5, {WS_EPOCH}
    s_waitcnt lgkmcnt(0)
    v_readfirstlane_b32 s{sWAVE}, v2
    v_cmp_eq_u32 vcc, 0, v0
    s_and_saveexec_b64 s[14:15], vcc
    s_cbranch_execz L_skip
    s_lshl_b32 s16, s{sXCC}, 2
    s_cmp_eq_u32 s{sXCC}, 0
    s_cselect_b32 s16, 192, s16
    v_mov_b32 v1, s16
    v_mov_b32 v2, 1
    global_atomic_add v3, v1, v2, s[12:13] sc0
    v_mov_b32 v1, 0
    s_waitcnt vmcnt(0)
    ds_write_b32 v1, v3
    s_waitcnt lgkmcnt(0)
L_skip:
    s_mov_b64 exec, s[14:15]
    buffer_load_dword v4, v5, {SRD_WS}, 0 offen sc1
    s_barrier
    v_mov_b32 v1, 0
    ds_read_b32 v3, v1
    s_waitcnt lgkmcnt(0)
    v_readfirstlane_b32 s{sRANK}, v3
    s_barrier
    s_cmp_ge_u32 s{sRANK}, 32
    s_cbranch_scc1 L_exit
    s_getpc_b64 s[16:17]
L_pc:
    s_lshl_b32 s18, s{sRANK}, 12
    v_lshlrev_b32 v1, 4, v0
    v_add_u32 v1, s18, v1
    v_cmp_gt_u32 vcc, L_code_end - L_pc - 16, v1
    s_and_saveexec_b64 s[14:15], vcc
    s_cbranch_execz L_nopf
    global_load_dwordx4 v[60:63], v1, s[16:17]
L_nopf:
    s_mov_b64 exec, s[14:15]
    s_cmp_eq_u32 s{sXCC}, 0
    s_cbranch_scc1 R_chain
    s_waitcnt vmcnt(0)
    v_readfirstlane_b32 s{sTAG}, v4
    s_add_u32 s{sTAG}, s{sTAG}, 1
    ''')
    if chain.OPT['pf'] == 2:
        for i, k in enumerate((KA_WQ, KA_WK, KA_WV, KA_WO)): make_srd(a, 44+4*i, k, 576*8192)
        a(f'''
        s_sub_u32 s16, s{sXCC}, 1
        s_lshl_b32 s16, s16, 5
        s_add_u32 s16, s16, s{sRANK}
        s_lshl_b32 s16, s16, 2
        s_add_u32 s16, s16, s{sWAVE}
        s_mul_i32 s16, s16, 5376
        s_add_u32 s17, s16, 4096
        v_and_b32 v1, 63, v0
        v_lshlrev_b32 v1, 4, v1
        s_waitcnt lgkmcnt(0)
        ''')
        for i in chain.OPT['pfm']:
            for j in range(6):
                if j == 5: a('s_mov_b64 exec, 0xffff')
                a(f'buffer_load_dwordx4 v[60:63], v1, s[{44+4*i}:{47+4*i}], s{16 + j//4} offen offset:{(j%4)*1024}')
            a('s_mov_b64 exec, -1')
    a(f'''
    s_cmp_le_u32 s{sXCC}, 4
    s_cbranch_scc1 {'L_exit' if chain.OPT['noqkv'] else 'R_qkv'}
    s_branch {'L_exit' if chain.OPT['nofft'] else 'R_fft'}
L_exit:
    s_endpgm
    ''')
    qkv.gen_qkv(a, 'L_exit', prof)
    chain.gen_chain(a, prof)
    fft.gen_fft(a, prof)
    oproj.gen_oproj(a, prof)
    a('L_code_end:')
    a('.section .rodata,"a"')
    txt = a.render() + kernel_desc(name)
    for p in a.branch_check(): print('HAZ', p)
    return txt
if __name__ == '__main__':
    def out(n, prof, **kw):
        DBG.clear(); DBG.update(kw)
        old = dict(chain.OPT); chain.OPT.update(kw)
        open(f'mb/{n}.s', 'w').write(gen(prof, 'full_kernel')); chain.OPT.update(old)
    out('full', False); out('full_prof', True)
    hdr = ''.join(l for l in open('cdna_kernels/' + NAME[:-7] + '.s.ref') if l.startswith(';') and '@launch' not in l)
    open('cdna_kernels/' + NAME[:-7] + '.s', 'w').write(hdr + gen(False))
    for a in sys.argv[1:]:
        n, kw = a.split(':', 1); out(n, True, **eval(f'dict({kw})'))
```

```python
from common import *
import layouts as L

LDS_SC  = 0
LDS_OB  = 5120
LDS_GATE = 0
LDS_MEM = 7168
LDS_DUMMY = 5120
LDS_WO  = 16384

L16, PBST, SEL2, SEL2b, MW, MR, OW, WOA, IDX, ORD, T0, T1 = range(12)
SEL, PUB, TAGV, FLG = 12, 16, 18, 19
Q0, K0, Q1, K1, VA0, VA1 = 20, 24, 28, 32, 36, 40
KX, VX = 44, 52
def AQ(i): return 60 + 4*i
def AF(c): return AQ(c % 5)

def wreg(tile, c):
    idx = tile*9 + c
    if idx < 32: return f'a[{8*idx}:{8*idx+7}]'
    b = 80 + 8*(idx-32)
    return f'v[{b}:{b+7}]'
ACC = [Q0, K0, Q1, K1, VA0, VA1]

sW, sH, sSTEP, sTMP, sTMP2, sTO = 12, 13, 14, 15, 16, 17
sMBRD, sMBWR, sMBNX = 18, 19, 20
sPBR = 22
sKV, sMH = 23, 25
sRED = 26
sMLO, sMHI = 28, 30
sMG = 32
sMG2 = 30
sC = 34
sRT = 37
sMW = 38
sMB4, sMB8 = 39, 21
sPROF = 44
sPBW = 52

def smf(acc, a, b): return f'v_smfmac_f32_16x16x64_bf16 {vr(acc)}, {vr(a)}, {b}, v{IDX}'
mfma = mfma16

def consts(a):
    C, G, G1, X, Y, Z = AF(0), AF(0)+1, AF(0)+2, AF(0)+3, AF(1), AF(1)+1
    a(f'''
    v_and_b32 v{X}, 63, v0
    v_lshlrev_b32 v{L16}, 4, v{X}
    v_and_b32 v{C}, 15, v{X}              ; c
    v_lshrrev_b32 v{G}, 4, v{X}           ; g
    v_and_b32 v{G1}, 1, v{G}              ; g&1
    v_lshrrev_b32 v{PBST}, 1, v{G}
    v_lshlrev_b32 v{PBST}, 12, v{PBST}
    v_lshl_add_u32 v{PBST}, v{G1}, 3, v{PBST}
    v_lshl_add_u32 v{PBST}, v{C}, 4, v{PBST}
    v_mov_b32 v{Y}, {OOB}
    v_cmp_gt_u32 vcc, 8, v{C}
    v_cndmask_b32 v{PBST}, v{Y}, v{PBST}, vcc
    v_and_b32 v{Z}, 7, v{C}
    v_lshlrev_b32 v{Z}, 4, v{Z}
    v_lshrrev_b32 v{T0}, 3, v{C}           ; hb
    v_lshl_add_u32 v{MR}, v{T0}, 3, v{Z}       ; (c&7)*16 + hb*8
    v_lshl_add_u32 v{ORD}, v{G}, 7, v{Z}
    v_add_u32 v{ORD}, {LDS_OB}, v{ORD}
    v_lshl_add_u32 v{OW}, v{G}, 7, v{MR}
    s_lshl_b32 s{sTMP}, s{sW}, 9
    s_add_u32 s{sTMP}, s{sTMP}, {LDS_OB}
    v_add_u32 v{OW}, s{sTMP}, v{OW}
    v_lshl_add_u32 v{MR}, v{G1}, 7, v{MR}
    v_add_u32 v{MR}, 1024, v{MR}
    s_mul_i32 s{sTMP}, s{sW}, 1280
    s_mov_b32 s{sSCW}, s{sTMP}
    v_lshlrev_b32 v{MW}, 7, v{G1}
    v_lshl_add_u32 v{MW}, v{C}, 4, v{MW}
    v_add_u32 v{MW}, s{sTMP}, v{MW}
    v_add_u32 v{MW}, 1024, v{MW}
    s_mul_i32 s{sTMP}, s{sW}, 36864
    s_add_u32 s{sTMP}, s{sTMP}, {LDS_WO}
    v_add_u32 v{WOA}, s{sTMP}, v{L16}
    s_mov_b32 s{sMG2}, -1
    s_mov_b32 s{sMG2+1}, 0
    s_mov_b32 s66, 0
    s_mov_b32 s67, 0x00ff00ff
    s_mov_b32 s{sC}, 0x3e0293ee            ; 128^-0.5 * log2(e) = 0.12751743
    s_mov_b32 s{sC+1}, 0x3e0293ee
    ''')
    a(f'''
    v_and_b32 v{SEL}, 7, v{C}
    v_lshlrev_b32 v{SEL+1}, 2, v{G1}
    v_sub_u32 v{SEL}, v{SEL}, v{SEL+1}
    v_lshrrev_b32 v{SEL+1}, 3, v{C}
    v_lshlrev_b32 v{SEL+1}, 2, v{SEL+1}
    v_cmp_gt_u32 vcc, 4, v{SEL}
    v_add_u32 v{SEL}, v{SEL}, v{SEL+1}
    v_cndmask_b32 v{T1}, 15, v{SEL}, vcc
    ''')
    def onehot(base, ereg, n=4):
        for i in range(n):
            a(f'''
            v_mov_b32 v{base+i}, 0
            v_mov_b32 v{Y}, 0x3f80
            v_cmp_eq_u32 vcc, {2*i}, v{ereg}
            v_cndmask_b32 v{base+i}, v{base+i}, v{Y}, vcc
            v_mov_b32 v{Y}, 0x3f800000
            v_cmp_eq_u32 vcc, {2*i+1}, v{ereg}
            v_cndmask_b32 v{base+i}, v{base+i}, v{Y}, vcc
            ''')
    onehot(SEL, T1)
    a(f'v_and_b32 v{T1}, 3, v{C}')
    onehot(SEL2, T1, 2)
    a(f'''
    v_mov_b32 v{IDX}, 0x4444
    v_mov_b32 v{Y}, 0xeeee
    v_cmp_gt_u32 vcc, 8, v{C}
    v_cndmask_b32 v{IDX}, v{Y}, v{IDX}, vcc
    ''')

OPT = dict(pfm=(0,1,2,3), p0=0, lz=6, fdelay=0, dir=0, bp=3, lg=1, fg=1, z0=0, z1=3, z2=0, ld=2, l0=0, e2=1, sb=1, ts=0, fs=0, pf=1, noqkv=0, qorder=(0,1,2), kv0=0, nofl=0, f3gap=3, l2pos=0, rsh=2, elate=0, NQ1=72, q2gap=2, noattn=0, nofft=0, es=0, nopub=0, gate=1, g1=1, g2=0, ez=6, qz=12, qgap=0, ers=5, qs=0, NM=48, egap=2, mgap=4, lgap=1, nocheck=0)
sVW = 19
sOOB = 68
sKIND, sPBO, sMBO = 27, 36, 65
sPBX = sPBW + 9
sXA = 19
sKVF, sFM = 69, 2
sSCW = 64
sM1, sM2, sM8 = 18, 39, 21
sX = 40
sMW2, sMW3 = 42, 43
sMBW = 24
def gen_step(a, ST, LD, prof, tag):
    srd = SRD_WS
    P = Stamps(a, prof)
    ool = []
    LOOP = f'{tag}_loop'; DONE = f'{tag}_done'
    A4 = AQ(4)
    def cnt(i): return f's_add_u32 s{sPROF+i}, s{sPROF+i}, 1\n' if prof else ''
    def tmo(ok): return f's_add_u32 s{sRT}, s{sRT}, 1\ns_cmp_gt_u32 s{sRT}, 0x100000\ns_cbranch_scc1 {ok}\n'
    def br(lbl): return f's_cbranch_vccnz {lbl}' if not OPT['nocheck'] else 's_nop 0'
    def ld(so): return f'buffer_load_dwordx4 {vr(A4)}, v{L16}, {srd}, s{so} offen {LD}'
    def cmpu(r): return f'v_cmp_u_f32 vcc, v{r}, v{r+2}'
    AD3 = T0
    lda = (f'buffer_load_dwordx4 {vr(VX)}, v{L16}, {srd}, s{sM1} offen {LD}\n'
           f'buffer_load_dwordx4 {vr(VX+4)}, v{L16}, {srd}, s{sM1} offen offset:1024 {LD}')
    book = (f'v_cmp_eq_u32 s[{sFM}:{sFM+1}], v{TAGV}, v{FLG}\n'
            f's_add_u32 s{sTMP}, s{sKV}, {0 if OPT["kv0"] else KV_SEG}\ns_add_u32 s{sSTEP}, s{sSTEP}, 1')
    a(f'{LOOP}:')
    P('top')
    a(lda)
    a(f'v_add_u32 v{T1}, s{sMW}, v{L16}')
    for r in range(Q0, VA1+4, 2): a(f'v_mov_b64 {vr(r,2)}, 0')
    for c in range(2, 10): a(f's_xor_b32 s{sPBW+c}, s{sPBW+c}, {PB_STRIDE}')
    a(f'{tag}_la:')
    a(lda)
    a('s_waitcnt vmcnt(3)')
    a(f'v_cmp_u_f32 s[{sX}:{sX+1}], v{VX}, v{VX+2}')
    a(f'ds_write_b128 v{T1}, {vr(VX)}')
    a('s_waitcnt vmcnt(2)')
    a(cmpu(VX+4))
    a(f'ds_write_b128 v{T1}, {vr(VX+4)} offset:1024')
    a(f's_or_b64 vcc, vcc, s[{sX}:{sX+1}]')
    a(br(f'{tag}_rt0'))
    ool.append(f'{tag}_rt0:\n' + cnt(0) + tmo(f'{tag}_ok0') + f's_branch {tag}_la')
    a(f'{tag}_ok0:')
    P('mem0')
    a(book)
    a(f'v_add_u32 v{T1}, s{sMW3}, v{L16}')
    a('s_waitcnt lgkmcnt(0)')
    a('s_barrier')
    def rd(c): return f'ds_read_b128 {vr(AF(c))}, v{L16} offset:{LDS_MEM + 1024*c}'
    def M(c, n): return [smf(ACC[t], AF(c), wreg(t, c)) for t in range(n)]
    def dl(c): return f'buffer_load_dwordx4 {vr(AF(c))}, v{L16}, {srd}, s{sM2} offen offset:{(c-4)*1024} {LD}'
    ldb = f's_mov_b32 exec_hi, 0xffff\nbuffer_load_dwordx4 {vr(VX)}, v{L16}, {srd}, s{sM8} offen {LD}\ns_mov_b32 exec_hi, -1'
    chkb = f's_mov_b32 exec_hi, 0xffff\n{cmpu(VX)}\nds_write_b128 v{T1}, {vr(VX)}\ns_mov_b32 exec_hi, -1'
    for c in range(4): a(rd(c))
    P('barA')
    bp = OPT['bp']
    seq = []
    for c in range(4):
        seq.append(f's_waitcnt lgkmcnt({3-c})')
        for x in M(c, 6): seq.append(x)
    if not OPT['dir']:
        k = 0
        orx = f's_or_b64 vcc, vcc, s[{sX}:{sX+1}]'
        for x in seq:
            a(x)
            if x.startswith('v_smfmac'):
                if k == bp: a(dl(4))
                if k == bp+1: a(ldb)
                if k == max(bp+2, 6): a(dl(5))
                if k == 21: a('s_waitcnt vmcnt(2)'); a(cmpu(AF(4)))
                if OPT['qs'] and k in (5, 11, 17): P(f'c{k//6}')
                k += 1
        a(br(f'{tag}_rt2'))
        ool.append(f'{tag}_rt2:\n' + cnt(3) + tmo(f'{tag}_ok2') + dl(4) + '\n' + ldb + '\n' + dl(5) + '\ns_waitcnt vmcnt(2)\n' + cmpu(AF(4)) + '\n' + br(f'{tag}_rt2') + f'\ns_branch {tag}_ok2')
        a(f'{tag}_ok2:')
        if OPT['qs']: P('c3')
        m = M(4, 4)
        a(m[0]); a('s_waitcnt vmcnt(1)'); a(chkb); a(m[1]); a('s_waitcnt vmcnt(0)'); a(f'v_cmp_u_f32 s[{sX}:{sX+1}], v{AF(5)}, v{AF(5)+2}'); a(m[2])
        a(m[3]); a(orx); a(br(f'{tag}_rt1'))
        ool.append(f'{tag}_rt1:\n' + cnt(2) + tmo(f'{tag}_ok1') + ldb + '\n' + dl(5) + '\ns_waitcnt vmcnt(0)\n' + chkb + f'\nv_cmp_u_f32 s[{sX}:{sX+1}], v{AF(5)}, v{AF(5)+2}\ns_nop 1\n'
                   + orx + '\n' + br(f'{tag}_rt1') + f'\ns_branch {tag}_ok1')
        a(f'{tag}_ok1:')
        a(f's_bitcmp1_b64 s[{sFM}:{sFM+1}], s{sSTEP}')
        a('s_waitcnt lgkmcnt(0)')
        a('s_barrier')
        if OPT['qs']: P('barB')
        a(rd(6)); a(rd(7)); a(rd(8))
    else:
        def dd(c): return f'buffer_load_dwordx4 {vr(AF(c))}, v{L16}, {srd}, s{sM2 if c < 8 else sM8} offen offset:{((c-4)%4)*1024} {LD}'
        k = 0
        when = {bp: 4, max(bp+1, 6): 5, 12: 6, 18: 7}
        for x in seq:
            a(x)
            if x.startswith('v_smfmac'):
                if k in when: a(dd(when[k]))
                if k == 21: a('s_waitcnt vmcnt(3)'); a(cmpu(AF(4)))
                if OPT['qs'] and k in (5, 11, 17): P(f'c{k//6}')
                k += 1
        def rt(n, hi):
            ool.append(f'{tag}_d{n}:\n' + cnt(2) + tmo(f'{tag}_dk{n}') + '\n'.join(dd(x) for x in range(n, hi+1)) + f'\ns_waitcnt vmcnt({hi-n})\n' + cmpu(AF(n)) + '\n' + br(f'{tag}_d{n}') + f'\ns_branch {tag}_dk{n}')
        a(br(f'{tag}_d4')); rt(4, 7); a(f'{tag}_dk4:')
        if OPT['qs']: P('c3')
        for c in range(4, 8):
            m = M(c, 4)
            a(m[0])
            if c == 4: a(dd(8))
            a(m[1]); a(f's_waitcnt vmcnt({8-c-1})'); a(cmpu(AF(c+1))); a(m[2]); a(m[3]); a(br(f'{tag}_d{c+1}')); rt(c+1, 8); a(f'{tag}_dk{c+1}:')
            if OPT['qs'] and c in (4, 5): P('x')
        a(f's_bitcmp1_b64 s[{sFM}:{sFM+1}], s{sSTEP}')
    a(f's_cbranch_scc0 {tag}_fl')
    a(f'{tag}_flok:')
    if OPT['ts']:
        a(f's_lshl_b32 s{sTO}, s{sH}, 2\ns_add_u32 s{sTO}, s{sTO}, s{sW}\ns_lshl_b32 s{sTO}, s{sTO}, 6\ns_add_u32 s{sTO}, s{sTO}, s{sSTEP}\ns_lshl_b32 s{sTO}, s{sTO}, 2\ns_add_u32 s{sTO}, s{sTO}, {WS_PROF+0x30000}')
        a(f'v_mov_b32 v{T0}, s{P.base+4}\ns_mov_b64 exec, 1\nbuffer_store_dword v{T0}, v{L16}, {srd}, s{sTO} offen\ns_mov_b64 exec, -1')
    ool.append(f'{tag}_fl:\n' + tmo(f'{tag}_flok') + f'v_lshrrev_b32 v{T0}, 2, v{L16}\nbuffer_load_dword v{FLG}, v{T0}, {srd}, s{sKVF} offen sc1\ns_waitcnt vmcnt(0)\n'
               f'v_cmp_eq_u32 s[{sFM}:{sFM+1}], v{TAGV}, v{FLG}\ns_nop 1\ns_bitcmp1_b64 s[{sFM}:{sFM+1}], s{sSTEP}\ns_cbranch_scc0 {tag}_fl\ns_branch {tag}_flok')
    assert not OPT['dir']
    late = []
    rops = [
        f'v_mov_b64 {vr(T0,2)}, -1\ns_mov_b32 exec_hi, 0\nbuffer_store_dwordx4 {vr(PUB)}, v{ORD}, {srd}, s{sOOB if OPT["nopub"] else sMH} offen sc1',
        f'buffer_store_dwordx2 {vr(T0,2)}, v{PBST}, {srd}, s{sMBO} offen {ST}\ns_mov_b32 exec_hi, -1\nv_lshlrev_b32 v{T1}, {OPT["rsh"]}, v{L16}',
        f'buffer_store_dword v{T0}, v{T1}, {srd}, s{sPBO} offen {ST}',
        f'buffer_store_dword v{T0}, v{T1}, {srd}, s{sPBO} offen offset:8 {ST}',
    ]
    m = M(5, 4)
    a(f's_cmp_eq_u64 s[{sFM}:{sFM+1}], -1')
    a(m[0])
    a(f's_cbranch_scc0 {tag}_fa')
    a(f'{tag}_fad:')
    ool.append(f'{tag}_fa:\nv_lshrrev_b32 v{T1}, 2, v{L16}\nbuffer_load_dword v{FLG}, v{T1}, {srd}, s{sKVF} offen sc1\ns_branch {tag}_fad')
    a(m[1]); a(f'buffer_load_dwordx4 {vr(VX)}, v{L16}, {srd}, s{sKV} offen offset:2048 sc1')
    a(m[2]); a(m[3]); a(f'buffer_load_dwordx4 {vr(VX+4)}, v{L16}, {srd}, s{sKV} offen offset:3072 sc1')
    if OPT['qs']: P('c5')
    m = M(6, 4)
    a('s_waitcnt lgkmcnt(2)')
    for k in range(4):
        a(m[k])
        a(rops[k])
    for c in range(7, 9):
        m = M(c, 4)
        a(f's_waitcnt lgkmcnt({8-c})')
        for k, x in enumerate(m):
            if c == 8 and k == 3: a(cvt(Q0, Q0, Q0+1))
            a(x)
    P('qk')
    vq = [(t, c) for c in (5, 6, 7, 4, 8) for t in (4, 5)]
    def vm(n=1):
        for _ in range(n):
            t, c = vq.pop(0); a(smf(ACC[t], AF(c), wreg(t, c)))
    a(cvt(Q0+1, Q0+2, Q0+3)); a(cvt(Q0+2, K0, K0+1)); a(cvt(Q0+3, K0+2, K0+3))
    a(cvt(Q1, Q1, Q1+1)); a(cvt(Q1+1, Q1+2, Q1+3))
    a(mfma(K0, Q0, SEL))
    a(cvt(Q1+2, K1, K1+1)); a(cvt(Q1+3, K1+2, K1+3))
    a(mfma(K1, Q1, SEL))
    U = Q0
    a(cvt(U, K0, K0+1)); a(cvt(U+1, K0+2, K0+3))
    vm(1)
    a(cvt(U+2, K1, K1+1)); a(cvt(U+3, K1+2, K1+3))
    TX0, TX1, TM = K0, Q1, K1
    a(f'v_add_u32 v{T0}, s{sSCW}, v{L16}')
    a(mfma(TX0, KX, U)); a(mfma(TX1, KX+4, U)); a(mfma(TM, U, U))
    if not OPT['qs']: P('S')
    for r in range(4):
        a(f'v_mov_b32_dpp v{TX0+r}, v{TX1+r} row_ror:8 row_mask:0xf bank_mask:0xc')
    a(f'ds_write_b128 v{T0}, {vr(TX0)} offset:{LDS_SC}')
    a(f's_mov_b64 exec, s[66:67]')
    a(f'ds_write_b128 v{MW}, {vr(TM)} offset:{LDS_SC}')
    a(f's_mov_b64 exec, -1')
    vm(1)
    a(f'buffer_load_dwordx4 {vr(KX)}, v{L16}, {srd}, s{sTMP} offen sc1')
    vm(1)
    a(f'buffer_load_dwordx4 {vr(KX+4)}, v{L16}, {srd}, s{sTMP} offen offset:1024 sc1')
    for _ in range(3):
        vm(1)
        for x in late[:2]: a(x)
        late = late[2:]
    assert not late
    if not OPT['qs']: P('wr')
    a(f's_waitcnt lgkmcnt(0)')
    a('s_barrier')
    P('bar1')
    RD = AQ(0)
    a(f'ds_read_b128 {vr(RD)}, v{L16} offset:{LDS_SC}')
    a(f'ds_read_b128 {vr(RD+4)}, v{L16} offset:{LDS_SC+1280}')
    vm(1)
    a(f'ds_read_b128 {vr(RD+8)}, v{L16} offset:{LDS_SC+2560}')
    a(f'ds_read_b128 {vr(TX0)}, v{L16} offset:{LDS_SC+3840}')
    vm(1)
    MRD = Q1
    for w in range(4):
        a(f'ds_read_b64 {vr(MRD+2*w,2)}, v{MR} offset:{LDS_SC+1280*w}')
        if w == 1: vm(1)
    vm(1)
    assert not vq
    a('s_waitcnt lgkmcnt(6)')
    a(pkadd(RD, RD, RD+4)); a(pkadd(RD+2, RD+2, RD+6))
    a('s_waitcnt lgkmcnt(4)')
    a(pkadd(TX0, TX0, RD+8)); a(pkadd(TX0+2, TX0+2, RD+10))
    a('s_waitcnt lgkmcnt(0)')
    a(pkadd(MRD, MRD, MRD+2)); a(pkadd(MRD+4, MRD+4, MRD+6))
    SX = RD; SM = MRD
    a(pkadd(SX, SX, TX0)); a(pkadd(SX+2, SX+2, TX0+2)); a(pkadd(SM, SM, MRD+4))
    MX = T0
    a(f'v_max3_f32 v{MX}, v{SX}, v{SX+1}, v{SX+2}')
    a(f'v_max3_f32 v{MX}, v{MX}, v{SX+3}, v{SM}')
    a(f'v_max_f32 v{MX}, v{MX}, v{SM+1}')
    if OPT['es']: P.k += 1; P.names.append('adds')
    elif not OPT['qs']: P('adds')
    def woread(i, buf): a(f'ds_read_b128 {vr(buf)}, v{WOA} offset:{i*1024}')
    WB = [K1, AQ(1), AQ(2), VX, VX+4, VA0, VA1]
    woread(1, WB[1]); woread(2, WB[2])
    a(f'v_max_f32_dpp v{MX}, v{MX}, v{MX} row_ror:8 row_mask:0xf bank_mask:0xf')
    a(f'v_mov_b32 v{T1}, v{MX}')
    VM = U
    a(cvt(VM, VA0, VA0+1)); a(cvt(VM+1, VA0+2, VA0+3))
    a(f'v_permlane16_swap_b32 v{MX}, v{T1}')
    a(f'v_max_f32 v{MX}, v{MX}, v{T1}')
    a(f'v_mov_b32 v{T1}, v{MX}')
    a(cvt(VM+2, VA1+2, VA1+3)); a(cvt(VM+3, VA1, VA1+1))
    a(f'v_permlane32_swap_b32 v{MX}, v{T1}')
    a(f'v_max_f32 v{MX}, v{MX}, v{T1}')
    a(f'v_mul_f32 v{MX}, s{sC}, v{MX}')
    for r in (SX, SX+2, SM):
        a(f'v_pk_fma_f32 {vr(r,2)}, {vr(r,2)}, s[{sC}:{sC+1}], {vr(MX,2)} op_sel_hi:[1,1,0] neg_lo:[0,0,1] neg_hi:[0,0,1]')
    for r in [SX, SX+1, SX+2, SX+3, SM, SM+1]: a(f'v_exp_f32 v{r}, v{r}')
    a('s_waitcnt vmcnt(6)')
    a(f'v_swap_b32 v{VX+4}, v{VX+6}')
    PR = TX0; PM = K1; VM = U
    a(cvt(PR, SX, SX+1)); a(cvt(PR+1, SX+2, SX+3)); a(cvt(PM, SM, SM+1))
    a(f'v_mov_b32_dpp v{PR+2}, v{PR} row_ror:8 row_mask:0xf bank_mask:0xf')
    a(f'v_mov_b32_dpp v{PR+3}, v{PR+1} row_ror:8 row_mask:0xf bank_mask:0xf')
    a(f'v_mov_b32_dpp v{PM+1}, v{PM} row_ror:8 row_mask:0xf bank_mask:0xf')
    a(f'v_swap_b32 v{VX+5}, v{VX+7}')
    if OPT['es']: P.k += 1; P.names.append('smax')
    elif not OPT['qs']: P('smax')
    PD = [AQ(3), AQ(4)]
    SUM = T0
    a(mfma(PD[0], VX, PR))
    a(f'v_add_f32 v{T1}, v{SM}, v{SM+1}')
    a(pkadd(SX, SX, SX+2))
    a(mfma(PD[1], VX+4, PR))
    a(f'v_cndmask_b32 v{T1}, 0, v{T1}, s[{sMG2}:{sMG2+1}]')
    a(f'v_add_f32 v{SUM}, v{SX}, v{SX+1}')
    a(f'v_mfma_f32_16x16x16_bf16 {vr(PD[0])}, {vr(VM,2)}, {vr(PM,2)}, {vr(PD[0])}')
    a(f'v_add_f32 v{SUM}, v{SUM}, v{T1}')
    a(f'v_mfma_f32_16x16x16_bf16 {vr(PD[1])}, {vr(VM+2,2)}, {vr(PM,2)}, {vr(PD[1])}')
    woread(0, WB[0]); woread(3, WB[3])
    a(f'v_add_f32_dpp v{SUM}, v{SUM}, v{SUM} row_ror:8 row_mask:0xf bank_mask:0xf')
    a(f'v_mov_b32 v{T1}, v{SUM}')
    for r in range(2): a(f'v_mov_b32_dpp v{PD[0]+r}, v{PD[1]+r} quad_perm:[0,1,2,3] row_mask:0xf bank_mask:0xc')
    a(f'v_permlane16_swap_b32 v{SUM}, v{T1}')
    a(f'v_add_f32 v{SUM}, v{SUM}, v{T1}')
    a(f'v_mov_b32 v{T1}, v{SUM}')
    for r in range(2,4): a(f'v_mov_b32_dpp v{PD[0]+r}, v{PD[1]+r} quad_perm:[0,1,2,3] row_mask:0xf bank_mask:0xc')
    a(f'v_permlane32_swap_b32 v{SUM}, v{T1}')
    a(f'v_add_f32 v{SUM}, v{SUM}, v{T1}')
    a(f'v_rcp_f32 v{SUM}, v{SUM}')
    O = PD[0]
    a('s_nop 0')
    for r in (0, 2): a(f'v_pk_mul_f32 {vr(O+r,2)}, {vr(O+r,2)}, {vr(SUM,2)} op_sel_hi:[1,0]')
    a(cvt(O, O, O+1)); a(cvt(O+1, O+2, O+3))
    a(f'ds_write_b64 v{OW}, {vr(O,2)}')
    if OPT['es']: P.k += 1; P.names.append('pv')
    else: P('pv')
    for i in range(4, 7): woread(i, WB[i])
    wrap = 0xfffcffff
    a(f"""
    s_add_u32 s{sM1}, s{sM1}, {MB_STRIDE}
    s_and_b32 s{sM1}, s{sM1}, {wrap}
    s_add_u32 s{sM8}, s{sM8}, {MB_STRIDE}
    s_and_b32 s{sM8}, s{sM8}, {wrap}
    s_add_u32 s{sM2}, s{sM2}, {MB_STRIDE}
    s_and_b32 s{sM2}, s{sM2}, {wrap}
    s_add_u32 s{sMBO}, s{sMBO}, {MB_STRIDE}
    s_and_b32 s{sMBO}, s{sMBO}, {wrap}
    """)
    a('s_waitcnt lgkmcnt(3)')
    a('s_barrier')
    if not OPT['qs']: P('bar2')
    if prof:
        a(f's_cmp_lg_u32 s{sSTEP}, 40\ns_cbranch_scc1 {tag}_nd')
        a(f's_lshl_b32 s{sTO}, s{sH}, 2\ns_add_u32 s{sTO}, s{sTO}, s{sW}\ns_lshl_b32 s{sTO}, s{sTO}, 7\ns_add_u32 s{sTO}, s{sTO}, {WS_PROF+0x20000}\ns_waitcnt lgkmcnt(0)\ns_mov_b64 exec, 1')
        for k in range(14): a(f'v_mov_b32 v{T0}, s{P.base+2*k}\nbuffer_store_dword v{T0}, v{L16}, {srd}, s{sTO} offen offset:{4*k}')
        a(f's_mov_b64 exec, -1\n{tag}_nd:')
    OA = [AQ(3), AQ(4), Q1, AQ(0)]
    for u in range(4): a(f'ds_read_b128 {vr(OA[u])}, v{ORD} offset:{u*512}')
    a(f"""
    s_add_u32 s{sMBW}, s{sMBW}, {MB_STRIDE}
    s_and_b32 s{sMBW}, s{sMBW}, {wrap}
    s_add_u32 s{sKV}, s{sKV}, {0 if OPT['kv0'] else KV_SEG}
    s_add_u32 s{sMH}, s{sMH}, {MH_STRIDE}
    s_xor_b32 s{sPBO}, s{sPBO}, {PB_STRIDE}
    s_cmp_eq_u32 s{sW}, 0
    """)
    a(f'v_add_u32 v{T0}, s{sXA}, v{L16}')
    NB = 7
    DD = [U, TX0]
    S2 = OA[0]; RDa = OA[3]
    own = lambda c: (WOA, c*4096, sPBW+c)
    X1 = (T0, 0, sPBX); X2 = (T1, 0, sPBX+1)
    T_W0 = [own(c) for c in range(6)]
    T_10 = [own(c) for c in range(7)] + [X1, own(7), own(8)]
    T_11 = T_10
    class St: pass
    st = St(); st.issued = NB; st.q = [4, 5, 6, 'o0', 'o1', 'o2', 'o3']
    def fork():
        n = St(); n.issued = st.issued; n.q = list(st.q); return n
    def need(S, ids):
        idx = max([S.q.index(x) for x in ids if x in S.q], default=-1)
        if idx >= 0:
            a(f's_waitcnt lgkmcnt({min(len(S.q)-1-idx, 15)})')
            del S.q[:idx+1]
    def post(T, c, k):
        d = DD[c % 2]
        if k == 0: a(cvt(d, d, d+1))
        if k == 1: a(cvt(d+1, d+2, d+3))
        if k == 2: a(f'buffer_store_dwordx2 {vr(d,2)}, v{PBST}, {srd}, s{T[c][2]} offen {ST}')
    def wread(S, T):
        i = S.issued; adr, imm, _ = T[i // 4]
        a(f'ds_read_b128 {vr(WB[i % NB])}, v{adr} offset:{imm + (i % 4)*1024}'); S.q.append(i); S.issued += 1
    s2b = {0: f'v_mov_b64 {vr(S2,2)}, 0\nv_mov_b64 {vr(S2+2,2)}, 0',
           1: f'v_mov_b32_dpp v{S2}, v{SEL2} quad_perm:[0,1,2,3] row_mask:0xf bank_mask:0x1',
           2: f'v_mov_b32_dpp v{S2+1}, v{SEL2+1} quad_perm:[0,1,2,3] row_mask:0xf bank_mask:0x1',
           3: f'v_mov_b32_dpp v{S2+2}, v{SEL2} quad_perm:[0,1,2,3] row_mask:0xf bank_mask:0x2\nv_mov_b32_dpp v{S2+3}, v{SEL2+1} quad_perm:[0,1,2,3] row_mask:0xf bank_mask:0x2'}
    def rload(R, i): return f'buffer_load_dwordx4 {vr(R[i])}, v{L16}, {srd}, s{sPBR} offen offset:{i*1024} {LD}'
    def slots(S, T, i0, i1, extra=None, red=False):
        N = 4*len(T)
        for i in range(i0, i1):
            c, u = divmod(i, 4)
            d = DD[c % 2]
            if c == 0: need(S, [f'o{u}'])
            elif u % 2 == 0: need(S, [i, i+1])
            a(mfma(d, WB[i % NB], OA[u], None if u == 0 else d))
            if S.issued < N and (c > 0 or not OPT['p0']): wread(S, T)
            if extra and i in extra: a(extra[i])
            if c >= (2 if OPT['p0'] else 1) and u >= 1: post(T, c-1, u-1)
            if red and c == len(T)-1: a(s2b[u])
        if i1 == N:
            for c in range(2): a(f's_xor_b32 s{sPBW+c}, s{sPBW+c}, {PB_STRIDE}')
            a(f's_cmp_eq_u32 s{sKIND}, 0')
            for k in range(3): post(T, len(T)-1, k)
    def zacc(o=None, lo=0, hi=12):
        for r in list(range(Q0, VA1+4, 2))[lo:hi]: a(f'v_mov_b64 {vr(r,2)}, 0')
    def xors(o=None):
        for c in range(2, 10): a(f's_xor_b32 s{sPBW+c}, s{sPBW+c}, {PB_STRIDE}')
    gwr = f'v_mov_b32 v{T0}, s{sSTEP}\nds_write_b32 v{L16}, v{T0} offset:{LDS_GATE}'
    def reduce(R, young, lbl, fail, gw=False):
        for i in range(4):
            a(f's_waitcnt vmcnt({young[i]})')
            a(mfma(RDa, S2, R[i], None if i == 0 else RDa))
        a('s_nop 6')
        a(f'{lbl}_c:')
        a(f'v_cmp_u_f32 vcc, v{RDa}, v{RDa}')
        for r in range(4): a(f'v_add_f32_dpp v{RDa+r}, v{RDa+r}, v{RDa+r} row_ror:8 row_mask:0xf bank_mask:0xf')
        a(cvt(PUB, RDa, RDa+1)); a(cvt(PUB+1, RDa+2, RDa+3))
        a(br(fail))
        a(f'{lbl}_ok:')
        a('s_mov_b32 exec_hi, 0')
        a(f'buffer_store_dwordx2 {vr(PUB,2)}, v{PBST}, {srd}, s{sMBW} offen {ST}')
        a('s_mov_b64 exec, -1')
        if gw: a(gwr)
        a(f's_xor_b32 s{sPBR}, s{sPBR}, {PB_STRIDE}')
        a(f's_cmp_eq_u32 s{sSTEP}, 63')
        a(f's_cbranch_scc1 {DONE}')
    def rl4(R): return '\n'.join(rload(R, i) for i in range(4))
    def plain_retry(R, lbl, okl, cl, site):
        ool.append(f'{lbl}:\n' + cnt(site) + tmo(okl) + rl4(R) + '\n' +
                   '\n'.join(f's_waitcnt vmcnt({3-i})\n' + mfma(RDa, S2, R[i], None if i == 0 else RDa) for i in range(4)) + f'\ns_nop 7\ns_branch {cl}')
    def gate(lbl):
        a(f'{lbl}:')
        a(f'ds_read_b32 v{T0}, v{L16} offset:{LDS_GATE}')
        a(tmo(f'{lbl}d'))
        a('s_waitcnt lgkmcnt(0)')
        a(f'v_cmp_ne_u32 vcc, s{sSTEP}, v{T0}')
        a(f's_cbranch_vccnz {lbl}')
        a(f'{lbl}d:')
    def PS(k):
        if prof: a(f's_memtime s[{P.base+2*k}:{P.base+2*k+1}]')
    def nops(n, why):
        n *= 8
        while n > 0:
            k = min(n, 16); a(f's_nop {k-1}   ; {why}'); n -= k
    kwo = P.k + (0 if OPT['qs'] else 1)
    R0 = [AQ(1), AQ(2), VX, VX+4]
    slots(st, T_11, 0, 4)
    if OPT['p0']:
        for _ in range(4): wread(st, T_11)
        for k in range(3): post(T_11, 0, k)
    if not OPT['qs']: P('wo0')
    slots(st, T_11, 4, 16)
    S0 = fork()
    a(f's_cbranch_scc1 {tag}_w0')
    slots(st, T_11, 16, 29)
    S3e = fork()
    a(f's_cmp_eq_u32 s{sKIND}, 1')
    a(f's_cbranch_scc1 {tag}_w3e')
    slots(st, T_11, 29, 40, red=True)
    PS(kwo)
    a(f's_cbranch_scc1 {tag}_k2')
    if not OPT['lz']: zacc()
    xors()
    if OPT['lg']: gate(f'{tag}_lgate')
    if OPT['lz']: zacc(lo=0, hi=OPT['lz'])
    for i in range(OPT['l0']): a('s_nop 7')
    a(rl4(R0))
    if OPT['lz']: zacc(lo=OPT['lz'])
    if OPT['ld']:
        if not OPT['lz']: a('s_sleep 1')
        a(f'{tag}_l2:')
        a(rl4(R0))
        reduce(R0, [7, 6, 5, 4], f'{tag}_rl', f'{tag}_lf')
        ool.append(f'{tag}_lf:\n' + cnt(5) + tmo(f'{tag}_rl_ok') + f's_branch {tag}_l2')
    else:
        reduce(R0, [3, 2, 1, 0], f'{tag}_rl', f'{tag}_lf')
        plain_retry(R0, f'{tag}_lf', f'{tag}_rl_ok', f'{tag}_rl_c', 5)
    PS(kwo+1); PS(0)
    a('s_waitcnt vmcnt(1)')
    a(f's_branch {tag}_ok0')
    a(f'{tag}_w0:')
    a('s_nop 1')
    slots(S0, T_W0, 16, 24, red=True)
    P('wo')
    nops(OPT['z0'], 'let the last partial stores land before the first poll')
    a(rl4(R0))
    nops(OPT['z1'], 'spacing between two overlapped poll rounds')
    a(f'{tag}_e2:')
    a(rl4(R0))
    reduce(R0, [7, 6, 5, 4], f'{tag}_re', f'{tag}_ef', gw=True)
    ool.append(f'{tag}_ef:\n' + cnt(1) + tmo(f'{tag}_re_ok') + f's_branch {tag}_e2')
    nops(OPT['z2'], 'let the publish stores land before the first poll')
    P('red')
    a(f's_branch {LOOP}')
    a(f'{tag}_k2:')
    a(f's_cmp_eq_u32 s{sSTEP}, 63')
    a(f's_cbranch_scc1 {tag}_end')
    a(f's_cmp_eq_u32 s{sW}, 3')
    a(f's_cbranch_scc1 {tag}_w3z')
    if OPT['fg']: gate(f'{tag}_gate')
    for i in range(OPT['g2']): a('s_nop 7')
    PS(kwo+1)
    a(f's_branch {LOOP}')
    a(f'{tag}_w3e:')
    R3 = [WB[i % NB] for i in range(33, 37)]
    slots(S3e, T_10, 29, 40, extra={33+i: rload(R3, i) for i in range(4)}, red=True)
    PS(kwo)
    reduce(R3, [6, 5, 4, 2], f'{tag}_r3', f'{tag}_3f')
    plain_retry(R3, f'{tag}_3f', f'{tag}_r3_ok', f'{tag}_r3_c', 4)
    a(f'{tag}_w3z:')
    zacc(); xors()
    PS(kwo+1); PS(0)
    a(f's_branch {tag}_ok0')
    for o in ool: a(o)
    a(f'{DONE}:')

def init_sgprs(a):
    srd = f's[{sWS}:{sWS+3}]'
    a(f'''
    s_mov_b32 s{sSTEP}, 0
    s_mov_b32 s{sRT}, 0
    s_mov_b32 s{sOOB}, 0x7f000000
    s_lshl_b32 s{sM1}, s{sW}, 10
    s_add_u32 s{sMW}, s{sM1}, {LDS_MEM}
    s_add_u32 s{sM1}, s{sM1}, {WS_MB+1024}
    s_mov_b32 s{sM2}, {WS_MB+1024+4096}
    s_mul_i32 s{sM8}, s{sW}, 768
    s_add_u32 s{sMW3}, s{sM8}, {LDS_MEM+6144}
    s_add_u32 s{sM8}, s{sM8}, {WS_MB+1024+6144}
    {'s_mov_b32 s%d, %d' % (sM8, WS_MB+1024+8192) if OPT['dir'] else ''}
    s_lshl_b32 s{sTMP}, s{sH}, 7
    s_lshl_b32 s{sTMP2}, s{sW}, 13
    s_add_u32 s{sPBW}, s{sTMP}, s{sTMP2}
    s_add_u32 s{sPBW}, s{sPBW}, {WS_PB}
    ''')
    for c in range(1, 9): a(f's_add_u32 s{sPBW+c}, s{sPBW}, {c*32768}')
    a(f'''
    s_lshl_b32 s{sTMP}, s{sH}, 2
    s_add_u32 s{sTMP}, s{sTMP}, s{sW}
    s_lshl_b32 s{sKV}, s{sTMP}, 12
    s_add_u32 s{sKV}, s{sKV}, {WS_KV}
    s_lshl_b32 s{sKVF}, s{sTMP}, 8
    s_add_u32 s{sKVF}, s{sKVF}, {WS_KVF}
    s_add_u32 s{sTMP}, s{sW}, 5
    s_lshl_b32 s{sXA}, s{sTMP}, 12
    s_add_u32 s{sXA}, s{sXA}, {LDS_WO}
    s_add_u32 s{sXA+1}, s{sXA}, {3*4096}
    s_lshl_b32 s{sPBX}, s{sTMP}, 15
    s_lshl_b32 s{sTMP2}, s{sH}, 7
    s_add_u32 s{sPBX}, s{sPBX}, s{sTMP2}
    s_add_u32 s{sPBX}, s{sPBX}, {WS_PB}
    s_add_u32 s{sPBX+1}, s{sPBX}, {3*32768}
    s_mov_b32 s{sKIND}, 0
    s_mov_b32 s{sTMP}, 72
    s_cmp_eq_u32 s{sW}, 0
    s_cselect_b32 s{sKIND}, 2, s{sKIND}
    s_cselect_b32 s{sTMP}, s{sH}, s{sTMP}
    s_add_u32 s{sTMP2}, s{sH}, 40
    s_cmp_eq_u32 s{sW}, 1
    s_cselect_b32 s{sKIND}, 2, s{sKIND}
    s_cselect_b32 s{sTMP}, s{sTMP2}, s{sTMP}
    s_add_u32 s{sTMP2}, s{sH}, 32
    s_cmp_eq_u32 s{sW}, 3
    s_cselect_b32 s{sTO}, s{sTMP2}, 99
    s_cmp_lt_u32 s{sTO}, 40
    s_cselect_b32 s{sKIND}, 1, s{sKIND}
    s_cselect_b32 s{sTMP}, s{sTO}, s{sTMP}
    s_lshl_b32 s{sPBR}, s{sTMP}, 12
    s_add_u32 s{sPBR}, s{sPBR}, {WS_PB}
    s_lshl_b32 s{sRED}, s{sTMP}, 7
    s_add_u32 s{sRED}, s{sRED}, 1024
    s_cmp_eq_u32 s{sKIND}, 0
    s_cselect_b32 s{sRED}, 0x7f000000, s{sRED}
    s_lshl_b32 s{sMH}, s{sTMP}, 8
    s_cmp_eq_u32 s{sKIND}, 0
    s_cselect_b32 s{sMH}, 0x7f000000, s{sMH}
    s_add_u32 s{sMH}, s{sMH}, {WS_MH - LDS_OB}
    s_add_u32 s{sMBO}, s{sRED}, {WS_MB+2*MB_STRIDE}
    s_add_u32 s{sMBW}, s{sRED}, {WS_MB}
    s_xor_b32 s{sPBO}, s{sPBR}, {PB_STRIDE}
    s_cmp_eq_u32 s{sKIND}, 0
    s_cselect_b32 s{sPBO}, 0x7f000000, s{sPBO}
    ''')

def gen_chain(a, prof=False):
    srd = SRD_WS
    sA, sB, sC3, sD = 72, 76, 80, 84
    sM0 = 88
    from qkv import pstamp
    a('R_chain:')
    pstamp(a, prof, 0, 76)
    make_srd(a, sA, KA_WQ, 576*8192); make_srd(a, sB, KA_WK, 576*8192); make_srd(a, sC3, KA_WV, 576*8192)
    make_srd(a, sD, KA_WO, 4096*1152); make_srd(a, sM0, KA_MEM0, 9216)
    a(f's_load_dwordx2 s[92:93], s[0:1], {KA_DBG}')
    TA = 44; TMPB = 20; WOV = 26
    a(f'''
    s_mov_b32 s{sW}, s{sWAVE}
    s_mov_b32 s{sH}, s{sRANK}
    s_mul_i32 s{sTMP2}, s{sW}, 36864
    s_add_u32 s94, s{sTMP2}, {LDS_WO}
    s_lshl_b32 s95, s{sH}, 8
    s_lshl_b32 s{sTMP}, s{sW}, 17
    s_add_u32 s95, s95, s{sTMP}             ; h*256 + w*16*8192
    s_mul_i32 s97, s{sH}, {128*1152}
    s_lshl_b32 s{sTMP}, s{sW}, 5
    s_add_u32 s97, s97, s{sTMP}             ; h*128*1152 + w*32
    v_and_b32 v28, 63, v0
    s_waitcnt lgkmcnt(0)
    ''')
    def after_issue():
        a(f'''
        s_waitcnt vmcnt(36)
        s_cmp_lg_u32 s3, 0
        s_cbranch_scc1 C_claimed
        v_add_u32 v{TAGV}, 1, v4
        v_lshrrev_b32 v3, s{sRANK}, v3
        v_and_b32 v3, 1, v3
        v_mov_b32 v1, 0
        s_cmp_lg_u32 s{sW}, 0
        s_cbranch_scc1 C_nw
        s_mov_b64 exec, 1
        ds_write_b32 v1, v3
        s_mov_b64 exec, -1
        s_waitcnt lgkmcnt(0)
C_nw:
        s_barrier
        ds_read_b32 v3, v1
        s_waitcnt lgkmcnt(0)
        v_readfirstlane_b32 s{sTMP}, v3
        s_cmp_eq_u32 s{sTMP}, 0
        s_cbranch_scc1 C_claimed
        s_barrier
        s_cmp_lg_u32 s{sW}, 0
        s_cbranch_scc1 C_lw
        s_mov_b64 exec, 1
        v_mov_b32 v1, 196
        v_mov_b32 v2, 1
        global_atomic_add v3, v1, v2, s[92:93] sc0
        v_mov_b32 v1, 192
        s_mov_b32 s{sTO}, 0
        s_waitcnt vmcnt(0)
        v_readfirstlane_b32 s{sTMP}, v3
C_ls:
        global_load_dwordx2 v[2:3], v1, s[92:93] sc1
        s_waitcnt vmcnt(0)
        v_readfirstlane_b32 s{sTMP2}, v2
        v_readfirstlane_b32 s96, v3
        s_bcnt1_i32_b32 s97, s{sTMP2}
        s_add_u32 s97, s97, s96
        s_add_u32 s{sTO}, s{sTO}, 1
        s_cmp_gt_u32 s{sTO}, 0x40000
        s_cbranch_scc1 C_lp
        s_cmp_lt_u32 s97, 32
        s_cbranch_scc1 C_ls
C_lp:
        s_ff0_i32_b32 s96, s{sTMP2}
        s_cmp_eq_u32 s{sTMP}, 0
        s_cbranch_scc1 C_lf
        s_bitset1_b32 s{sTMP2}, s96
        s_sub_u32 s{sTMP}, s{sTMP}, 1
        s_branch C_lp
C_lf:
        s_and_b32 s96, s96, 31
        v_mov_b32 v3, s96
        v_mov_b32 v1, 0
        ds_write_b32 v1, v3
        s_mov_b64 exec, -1
C_lw:
        s_waitcnt vmcnt(0) lgkmcnt(0)
        s_barrier
        v_mov_b32 v1, 0
        ds_read_b32 v3, v1
        s_waitcnt lgkmcnt(0)
        v_readfirstlane_b32 s{sRANK}, v3
        s_mov_b32 s3, 1
        s_branch R_chain
C_claimed:
        ''')
        a(f'''
        v_lshrrev_b32 v29, 4, v28               ; g'
        v_bfe_u32 v30, v28, 2, 2                ; r4
        v_and_b32 v31, 3, v28                   ; c4
        v_and_b32 v32, 1, v30                   ; r4&1
        v_lshrrev_b32 v33, 1, v30               ; r4>>1
        v_and_b32 v34, 1, v29                   ; g'&1
        v_lshl_add_u32 v35, v33, 3, v32
        v_lshl_add_u32 v35, v34, 2, v35         ; row16
        v_lshl_add_u32 v36, v34, 1, v32
        v_lshl_add_u32 v36, v33, 2, v36         ; swz
        s_lshl_b32 s{sTMP}, s{sW}, 1
        v_xor_b32 v36, s{sTMP}, v36
        v_lshlrev_b32 v35, 8, v35
        v_lshl_add_u32 v35, v36, 5, v35
        v_lshl_add_u32 v35, v31, 3, v35
        v_lshrrev_b32 v37, 1, v29
        v_mul_u32_u24 v37, 36864, v37
        v_add_u32 v35, v35, v37
        v_add_u32 v{TA}, {LDS_WO}, v35
        v_xor_b32 v{TA+1}, 32, v{TA}
        v_add_u32 v{TA+2}, {2*36864}, v{TA}
        v_add_u32 v{TA+3}, {2*36864}, v{TA+1}
        v_lshrrev_b32 v{WOV}, 1, v28
        v_mul_u32_u24 v{WOV}, 1152, v{WOV}
        v_and_b32 v38, 1, v28
        v_lshl_add_u32 v{WOV}, v38, 4, v{WOV}
        v_lshrrev_b32 v39, 2, v28
        v_lshlrev_b32 v39, 5, v39
        v_lshl_add_u32 v39, v31, 3, v39
        v_add_u32 v39, s94, v39
        v_and_b32 v70, 7, v28
        v_mul_u32_u24 v70, 1152, v70
        v_lshl_add_u32 v70, v34, 3, v70
        ''')
        consts(a)
        init_sgprs(a)
        a(f'''
        v_mov_b64 v[72:73], -1
        v_mov_b64 v[74:75], -1
        s_sub_u32 s{sTMP}, s{sRED}, 1024
        s_lshr_b32 s{sTMP}, s{sTMP}, 3
        buffer_load_dwordx2 {vr(PUB,2)}, v70, s[{sM0}:{sM0+3}], s{sTMP} offen
        ''')
        a(f'v_lshlrev_b32 v71, 2, v{L16}')
        a(f'buffer_store_dwordx4 v[72:75], v71, {srd}, s{sPBO} offen')
        a(f's_xor_b32 s{sTMP}, s{sPBO}, {PB_STRIDE}')
        a(f'buffer_store_dwordx4 v[72:75], v71, {srd}, s{sTMP} offen')
        a('s_mov_b32 exec_hi, 0')
        for k in range(1, 4):
            a(f's_add_u32 s{sTMP}, s{sRED}, {WS_MB + k*MB_STRIDE}')
            a(f'buffer_store_dwordx2 v[72:73], v{PBST}, {srd}, s{sTMP} offen')
        a('s_mov_b32 exec_hi, -1')
        return 6
    def reads(m, c):
        out = []
        for t in range(2):
            tile = [0, 1, 4][m] + ([0, 2][t] if m < 2 else t)
            w = wreg(tile, c)
            k, lo = w[0], int(w[2:w.index(':')])
            for hb2 in range(2):
                for rh in range(2):
                    r = lo + 4*hb2 + 2*rh
                    out.append(f'ds_read_b64_tr_b16 {k}[{r}:{r+1}], v{TA+2*hb2+t} offset:{c*4096 + rh*512}')
        return out
    def wo_dma(c):
        if DBG.get('nowo'): return []
        return [f's_add_u32 s96, s97, {c*128 + j*32*1152}\ns_add_u32 m0, s94, {c*4096 + j*1024}\n'
                f'buffer_load_dwordx4 v{WOV}, s[{sD}:{sD+3}], s96 offen lds' for j in range(4)]
    pstamp(a, prof, 1, 76)
    def pr(m, c):
        n = 0
        if c == 8 and prof and not DBG.get('nops'): pstamp(a, prof, 2+m, 76); n += 1
        if (m, c) == (1, 0) and not DBG.get('noinit'):
            a(f's_add_u32 s{sTMP}, s{sRED}, {WS_MB}')
            a(f's_mov_b32 exec_hi, 0\nbuffer_store_dwordx2 {vr(PUB,2)}, v{PBST}, {srd}, s{sTMP} offen')
            for k in range(0, 4):
                a(f's_add_u32 s{sTMP}, s{sRED}, {WS_MB + k*MB_STRIDE}')
                a(f'buffer_load_dwordx2 v[72:73], v{PBST}, {srd}, s{sTMP} offen sc1')
            a('s_mov_b32 exec_hi, -1')
            a(f'buffer_load_dword v72, v71, {srd}, s{sPBO} offen sc1')
            a(f's_xor_b32 s{sTMP}, s{sPBO}, {PB_STRIDE}')
            a(f'buffer_load_dword v72, v71, {srd}, s{sTMP} offen sc1')
            n += 7
        if (m, c) == (2, 2):
            a(f'''
            s_cmp_lg_u32 s{sW}, 0
            s_cbranch_scc1 C_noat
            s_mov_b64 exec, 1
            v_mov_b32 v70, 64
            v_mov_b32 v73, 1
            global_atomic_add v70, v73, s[92:93]
            s_mov_b64 exec, -1
C_noat:
            ''')
        return n
    cnt = stage_weights(a, 'C', [f's[{x}:{x+3}]' for x in (sA, sB, sC3)], reads, 'chain', LDS_WO, TMPB, [95, 96, 94],
                        extra_dma=wo_dma, after_issue=after_issue, post_read=pr)
    a(f'''
    v_mov_b32 v{T0}, 64
    v_lshrrev_b32 v{T1}, 2, v{L16}
    global_load_dword v76, v{T0}, s[92:93] sc1
    buffer_load_dword v{FLG}, v{T1}, {srd}, s{sKVF} offen sc1
    ''')
    cnt[-1] += 2
    for c in range(9):
        a(f's_waitcnt vmcnt({sum(cnt[27+c+1:]) + (2 if c == 8 else 0)})')
        b = 40 + 16*(c % 2)
        for u in range(4):
            for rh in range(2):
                a(f'ds_read_b64_tr_b16 v[{b+4*u+2*rh}:{b+4*u+2*rh+1}], v39 offset:{c*4096 + u*1024 + rh*512}')
        a('s_waitcnt lgkmcnt(0)')
        for u in range(4):
            a(f'ds_write_b128 v{WOA}, {vr(b+4*u)} offset:{(4*c+u)*1024}')
    if OPT['noqkv']:
        a('s_waitcnt vmcnt(0)'); pstamp(a, prof, 5, 76); a('s_endpgm')
    a(f'''
    s_waitcnt vmcnt(0)
    s_branch C_wi2
C_wi:
    global_load_dword v76, v{T0}, s[92:93] sc1
    buffer_load_dword v{FLG}, v{T1}, {srd}, s{sKVF} offen sc1
    s_waitcnt vmcnt(0)
C_wi2:
    v_readfirstlane_b32 s{sTMP}, v76
    v_cmp_eq_u32 s[{sFM}:{sFM+1}], v{TAGV}, v{FLG}
    s_add_u32 s{sRT}, s{sRT}, 1
    s_cmp_gt_u32 s{sRT}, 0x100000
    s_cbranch_scc1 C_wfd
    s_cmp_lt_u32 s{sTMP}, 32
    s_cbranch_scc1 C_wi
    s_bitcmp1_b64 s[{sFM}:{sFM+1}], 0
    s_cbranch_scc0 C_wi
C_wfd:
    s_waitcnt lgkmcnt(0)
    buffer_load_dwordx4 {vr(KX)}, v{L16}, {srd}, s{sKV} offen sc1
    buffer_load_dwordx4 {vr(KX+4)}, v{L16}, {srd}, s{sKV} offen offset:1024 sc1
    ''')
    pstamp(a, prof, 5, 76)
    if OPT['noqkv']: a('s_endpgm')
    for r in range(Q0, VA1+4, 2): a(f'v_mov_b64 {vr(r,2)}, 0')
    if prof:
        for i in range(8): a(f's_mov_b32 s{sPROF+i}, 0')
        a('s_memrealtime s[28:29]\ns_memtime s[32:33]')
    a(f's_bitcmp1_b32 s{sW}, 0\ns_cbranch_scc1 F_ok0')
    for c in range(2, 10): a(f's_xor_b32 s{sPBW+c}, s{sPBW+c}, {PB_STRIDE}')
    gen_step(a, '', 'sc1', prof, 'F')
    a(f'''
    s_mov_b32 exec_hi, 0
    buffer_store_dwordx4 {vr(PUB)}, v{ORD}, {srd}, s{sMH} offen sc1
    s_mov_b64 exec, -1
F_end:
    ''')
    if prof:
        a(f'''
        s_memrealtime s[30:31]
        s_memtime s[74:75]
        s_waitcnt lgkmcnt(0)
        s_sub_u32 s74, s74, s32
        s_lshl_b32 s{sTMP}, s{sH}, 2
        s_add_u32 s{sTMP}, s{sTMP}, s{sW}
        s_lshl_b32 s{sTMP}, s{sTMP}, 7
        s_add_u32 s{sTMP}, s{sTMP}, {WS_PROF}
        v_mov_b32 v1, 0
        ''')
        regs = [sPROF+i for i in range(8)] + [sPROF]*4 + [70, 28, 30, sRT] + [74+2*i for i in range(14)]
        for i, r in enumerate(regs):
            a(f'v_mov_b32 v2, s{r}\nbuffer_store_dword v2, v1, {srd}, s{sTMP} offen offset:{4*i}')
    a('s_endpgm')
```

```python
import sys
from common import *
import chain, qkv, fft, oproj
NAME = 'concat_heads__spectral_gfnet__memory_aug_recurrent_mem_tr__prompt_kernel'
def gen(prof=False, name=NAME):
    a = Asm()
    a('; @launch grid=(256,1,1) block=(256,1,1) lds=163840')
    a('.amdgcn_target "amdgcn-amd-amdhsa--gfx950"\n.text')
    a(kernel_header(name))
    a(f'''
    s_load_dwordx2 s[12:13], s[0:1], {KA_DBG}
    s_load_dwordx2 s[{sWS}:{sWS+1}], s[0:1], {KA_WS}
    s_getreg_b32 s{sXCC}, hwreg(HW_REG_XCC_ID)
    s_mov_b32 s{sWS+2}, {WS_SIZE}
    s_mov_b32 s{sWS+3}, 0x00020000
    ''')
    if prof: a('s_memrealtime s[70:71]')
    a(f'''
    s_and_b32 s{sXCC}, s{sXCC}, 7
    v_lshrrev_b32 v2, 6, v0
    v_mov_b32 v5, {WS_EPOCH}
    s_waitcnt lgkmcnt(0)
    v_readfirstlane_b32 s{sWAVE}, v2
    s_cmp_eq_u32 s{sXCC}, 0
    s_cbranch_scc1 L_spec
    v_cmp_eq_u32 vcc, 0, v0
    s_and_saveexec_b64 s[14:15], vcc
    s_cbranch_execz L_skip
    s_lshl_b32 s16, s{sXCC}, 2
    v_mov_b32 v1, s16
    v_mov_b32 v2, 1
    global_atomic_add v3, v1, v2, s[12:13] sc0
    v_mov_b32 v1, 0
    s_waitcnt vmcnt(0)
    ds_write_b32 v1, v3
    s_waitcnt lgkmcnt(0)
L_skip:
    s_mov_b64 exec, s[14:15]
    buffer_load_dword v4, v5, {SRD_WS}, 0 offen sc1
    s_barrier
    v_mov_b32 v1, 0
    ds_read_b32 v3, v1
    s_waitcnt lgkmcnt(0)
    v_readfirstlane_b32 s{sRANK}, v3
    s_barrier
    s_cmp_ge_u32 s{sRANK}, 32
    s_cbranch_scc1 L_exit
    s_branch L_haverank
L_spec:
    s_cmp_ge_u32 s2, 256
    s_cbranch_scc1 L_exit
    s_lshr_b32 s{sRANK}, s2, 3
    s_mov_b32 s3, 0
    s_lshl_b32 s16, 1, s{sRANK}
    v_mov_b32 v1, 192
    v_mov_b32 v2, s16
    v_mov_b32 v3, 0
    v_cmp_eq_u32 vcc, 0, v0
    s_and_saveexec_b64 s[14:15], vcc
    s_cbranch_execz L_skip2
    global_atomic_or v3, v1, v2, s[12:13] sc0
L_skip2:
    s_mov_b64 exec, s[14:15]
    buffer_load_dword v4, v5, {SRD_WS}, 0 offen sc1
L_haverank:
    s_getpc_b64 s[16:17]
L_pc:
    s_lshl_b32 s18, s{sRANK}, 12
    v_lshlrev_b32 v1, 4, v0
    v_add_u32 v1, s18, v1
    v_cmp_gt_u32 vcc, L_code_end - L_pc - 16, v1
    s_and_saveexec_b64 s[14:15], vcc
    s_cbranch_execz L_nopf
    global_load_dwordx4 v[60:63], v1, s[16:17]
L_nopf:
    s_mov_b64 exec, s[14:15]
    s_cmp_eq_u32 s{sXCC}, 0
    s_cbranch_scc1 R_chain
    s_waitcnt vmcnt(0)
    v_readfirstlane_b32 s{sTAG}, v4
    s_add_u32 s{sTAG}, s{sTAG}, 1
    ''')
    if chain.OPT['pf'] == 2:
        for i, k in enumerate((KA_WQ, KA_WK, KA_WV, KA_WO)): make_srd(a, 44+4*i, k, 576*8192)
        a(f'''
        s_sub_u32 s16, s{sXCC}, 1
        s_lshl_b32 s16, s16, 5
        s_add_u32 s16, s16, s{sRANK}
        s_lshl_b32 s16, s16, 2
        s_add_u32 s16, s16, s{sWAVE}
        s_mul_i32 s16, s16, 5376
        s_add_u32 s17, s16, 4096
        v_and_b32 v1, 63, v0
        v_lshlrev_b32 v1, 4, v1
        s_waitcnt lgkmcnt(0)
        ''')
        for i in chain.OPT['pfm']:
            for j in range(6):
                if j == 5: a('s_mov_b64 exec, 0xffff')
                a(f'buffer_load_dwordx4 v[60:63], v1, s[{44+4*i}:{47+4*i}], s{16 + j//4} offen offset:{(j%4)*1024}')
            a('s_mov_b64 exec, -1')
    a(f'''
    s_cmp_le_u32 s{sXCC}, 4
    s_cbranch_scc1 {'L_exit' if chain.OPT['noqkv'] else 'R_qkv'}
    s_branch {'L_exit' if chain.OPT['nofft'] else 'R_fft'}
L_exit:
    s_endpgm
    ''')
    qkv.gen_qkv(a, 'L_exit', prof)
    chain.gen_chain(a, prof)
    fft.gen_fft(a, prof)
    oproj.gen_oproj(a, prof)
    a('L_code_end:')
    a('.section .rodata,"a"')
    txt = a.render() + kernel_desc(name)
    for p in a.branch_check(): print('HAZ', p)
    return txt
if __name__ == '__main__':
    def out(n, prof, **kw):
        DBG.clear(); DBG.update(kw)
        old = dict(chain.OPT); chain.OPT.update(kw)
        open(f'mb/{n}.s', 'w').write(gen(prof, 'full_kernel')); chain.OPT.update(old)
    out('full', False); out('full_prof', True)
    hdr = ''.join(l for l in open('cdna_kernels/' + NAME[:-7] + '.s.ref') if l.startswith(';') and '@launch' not in l)
    open('cdna_kernels/' + NAME[:-7] + '.s', 'w').write(hdr + gen(False))
    for a in sys.argv[1:]:
        n, kw = a.split(':', 1); out(n, True, **eval(f'dict({kw})'))
```

```python
from common import *
import layouts as L

LDS_SC  = 0
LDS_OB  = 5120
LDS_GATE = 0
LDS_MEM = 7168
LDS_DUMMY = 5120
LDS_WO  = 16384

L16, PBST, SEL2, SEL2b, MW, MR, OW, WOA, IDX, ORD, T0, T1 = range(12)
SEL, PUB, TAGV, FLG = 12, 16, 18, 19
Q0, K0, Q1, K1, VA0, VA1 = 20, 24, 28, 32, 36, 40
KX, VX = 44, 52
def AQ(i): return 60 + 4*i
def AF(c): return AQ(c % 5)

def wreg(tile, c):
    idx = tile*9 + c
    if idx < 32: return f'a[{8*idx}:{8*idx+7}]'
    b = 80 + 8*(idx-32)
    return f'v[{b}:{b+7}]'
ACC = [Q0, K0, Q1, K1, VA0, VA1]

sW, sH, sSTEP, sTMP, sTMP2, sTO = 12, 13, 14, 15, 16, 17
sMBRD, sMBWR, sMBNX = 18, 19, 20
sPBR = 22
sKV, sMH = 23, 25
sRED = 26
sMLO, sMHI = 28, 30
sMG = 32
sMG2 = 30
sC = 34
sRT = 37
sMW = 38
sMB4, sMB8 = 39, 21
sPROF = 44
sPBW = 52

def smf(acc, a, b): return f'v_smfmac_f32_16x16x64_bf16 {vr(acc)}, {vr(a)}, {b}, v{IDX}'
mfma = mfma16

def consts(a):
    C, G, G1, X, Y, Z = AF(0), AF(0)+1, AF(0)+2, AF(0)+3, AF(1), AF(1)+1
    a(f'''
    v_and_b32 v{X}, 63, v0
    v_lshlrev_b32 v{L16}, 4, v{X}
    v_and_b32 v{C}, 15, v{X}              ; c
    v_lshrrev_b32 v{G}, 4, v{X}           ; g
    v_and_b32 v{G1}, 1, v{G}              ; g&1
    v_lshrrev_b32 v{PBST}, 1, v{G}
    v_lshlrev_b32 v{PBST}, 12, v{PBST}
    v_lshl_add_u32 v{PBST}, v{G1}, 3, v{PBST}
    v_lshl_add_u32 v{PBST}, v{C}, 4, v{PBST}
    v_mov_b32 v{Y}, {OOB}
    v_cmp_gt_u32 vcc, 8, v{C}
    v_cndmask_b32 v{PBST}, v{Y}, v{PBST}, vcc
    v_and_b32 v{Z}, 7, v{C}
    v_lshlrev_b32 v{Z}, 4, v{Z}
    v_lshrrev_b32 v{T0}, 3, v{C}           ; hb
    v_lshl_add_u32 v{MR}, v{T0}, 3, v{Z}       ; (c&7)*16 + hb*8
    v_lshl_add_u32 v{ORD}, v{G}, 7, v{Z}
    v_add_u32 v{ORD}, {LDS_OB}, v{ORD}
    v_lshl_add_u32 v{OW}, v{G}, 7, v{MR}
    s_lshl_b32 s{sTMP}, s{sW}, 9
    s_add_u32 s{sTMP}, s{sTMP}, {LDS_OB}
    v_add_u32 v{OW}, s{sTMP}, v{OW}
    v_lshl_add_u32 v{MR}, v{G1}, 7, v{MR}
    v_add_u32 v{MR}, 1024, v{MR}
    s_mul_i32 s{sTMP}, s{sW}, 1280
    s_mov_b32 s{sSCW}, s{sTMP}
    v_lshlrev_b32 v{MW}, 7, v{G1}
    v_lshl_add_u32 v{MW}, v{C}, 4, v{MW}
    v_add_u32 v{MW}, s{sTMP}, v{MW}
    v_add_u32 v{MW}, 1024, v{MW}
    s_mul_i32 s{sTMP}, s{sW}, 36864
    s_add_u32 s{sTMP}, s{sTMP}, {LDS_WO}
    v_add_u32 v{WOA}, s{sTMP}, v{L16}
    s_mov_b32 s{sMG2}, -1
    s_mov_b32 s{sMG2+1}, 0
    s_mov_b32 s66, 0
    s_mov_b32 s67, 0x00ff00ff
    s_mov_b32 s{sC}, 0x3e0293ee            ; 128^-0.5 * log2(e) = 0.12751743
    s_mov_b32 s{sC+1}, 0x3e0293ee
    ''')
    a(f'''
    v_and_b32 v{SEL}, 7, v{C}
    v_lshlrev_b32 v{SEL+1}, 2, v{G1}
    v_sub_u32 v{SEL}, v{SEL}, v{SEL+1}
    v_lshrrev_b32 v{SEL+1}, 3, v{C}
    v_lshlrev_b32 v{SEL+1}, 2, v{SEL+1}
    v_cmp_gt_u32 vcc, 4, v{SEL}
    v_add_u32 v{SEL}, v{SEL}, v{SEL+1}
    v_cndmask_b32 v{T1}, 15, v{SEL}, vcc
    ''')
    def onehot(base, ereg, n=4):
        for i in range(n):
            a(f'''
            v_mov_b32 v{base+i}, 0
            v_mov_b32 v{Y}, 0x3f80
            v_cmp_eq_u32 vcc, {2*i}, v{ereg}
            v_cndmask_b32 v{base+i}, v{base+i}, v{Y}, vcc
            v_mov_b32 v{Y}, 0x3f800000
            v_cmp_eq_u32 vcc, {2*i+1}, v{ereg}
            v_cndmask_b32 v{base+i}, v{base+i}, v{Y}, vcc
            ''')
    onehot(SEL, T1)
    a(f'v_and_b32 v{T1}, 3, v{C}')
    onehot(SEL2, T1, 2)
    a(f'''
    v_mov_b32 v{IDX}, 0x4444
    v_mov_b32 v{Y}, 0xeeee
    v_cmp_gt_u32 vcc, 8, v{C}
    v_cndmask_b32 v{IDX}, v{Y}, v{IDX}, vcc
    ''')

OPT = dict(f4=0, pfm=(0,1,2,3), p0=0, lz=6, fdelay=0, dir=0, bp=3, lg=1, fg=1, z0=0, z1=3, z2=0, ld=2, l0=0, e2=1, sb=1, ts=0, fs=0, pf=1, noqkv=0, qorder=(0,1,2), kv0=0, nofl=0, f3gap=3, l2pos=0, rsh=2, elate=0, NQ1=72, q2gap=2, noattn=0, nofft=0, es=0, nopub=0, gate=1, g1=1, g2=0, ez=6, qz=12, qgap=0, ers=5, qs=0, NM=48, egap=2, mgap=4, lgap=1, nocheck=0)
sVW = 19
sOOB = 68
sKIND, sPBO, sMBO = 27, 36, 65
sPBX = sPBW + 9
sXA = 19
sKVF, sFM = 69, 2
sSCW = 64
sM1, sM2, sM8 = 18, 39, 21
sX = 40
sMW2, sMW3 = 42, 43
sMBW = 24
def gen_step(a, ST, LD, prof, tag):
    srd = SRD_WS
    P = Stamps(a, prof)
    ool = []
    LOOP = f'{tag}_loop'; DONE = f'{tag}_done'
    A4 = AQ(4)
    def cnt(i): return f's_add_u32 s{sPROF+i}, s{sPROF+i}, 1\n' if prof else ''
    def tmo(ok): return f's_add_u32 s{sRT}, s{sRT}, 1\ns_cmp_gt_u32 s{sRT}, 0x100000\ns_cbranch_scc1 {ok}\n'
    def br(lbl): return f's_cbranch_vccnz {lbl}' if not OPT['nocheck'] else 's_nop 0'
    def ld(so): return f'buffer_load_dwordx4 {vr(A4)}, v{L16}, {srd}, s{so} offen {LD}'
    def cmpu(r): return f'v_cmp_u_f32 vcc, v{r}, v{r+2}'
    AD3 = T0
    F4 = OPT['f4']
    LQ = [VX, VX+4, A4, AQ(3)] if F4 else [VX, VX+4]
    lda = '\n'.join(f'buffer_load_dwordx4 {vr(q)}, v{L16}, {srd}, s{sM1} offen offset:{1024*i} {LD}' for i, q in enumerate(LQ))
    book = (f'v_cmp_eq_u32 s[{sFM}:{sFM+1}], v{TAGV}, v{FLG}\n'
            f's_add_u32 s{sTMP}, s{sKV}, {0 if OPT["kv0"] else KV_SEG}\ns_add_u32 s{sSTEP}, s{sSTEP}, 1')
    a(f'{LOOP}:')
    P('top')
    a(lda)
    a(f'v_add_u32 v{T1}, s{sMW}, v{L16}')
    for r in range(Q0, VA1+4, 2): a(f'v_mov_b64 {vr(r,2)}, 0')
    for c in range(2, 10): a(f's_xor_b32 s{sPBW+c}, s{sPBW+c}, {PB_STRIDE}')
    a(f'{tag}_la:')
    a(lda)
    n = len(LQ)
    for i, q in enumerate(LQ):
        a(f's_waitcnt vmcnt({2*n-1-i})')
        if i == 0: a(f'v_cmp_u_f32 s[{sX}:{sX+1}], v{q}, v{q+2}')
        else: a(cmpu(q))
        a(f'ds_write_b128 v{T1}, {vr(q)} offset:{1024*i}')
        if i > 0: a(f's_or_b64 ' + ('vcc' if i == n-1 else f's[{sX}:{sX+1}]') + f', vcc, s[{sX}:{sX+1}]')
    a(br(f'{tag}_rt0'))
    ool.append(f'{tag}_rt0:\n' + cnt(0) + tmo(f'{tag}_ok0') + f's_branch {tag}_la')
    a(f'{tag}_ok0:')
    P('mem0')
    a(book)
    a(f'v_add_u32 v{T1}, s{sMW3}, v{L16}')
    a('s_waitcnt lgkmcnt(0)')
    a('s_barrier')
    def rd(c): return f'ds_read_b128 {vr(AF(c))}, v{L16} offset:{LDS_MEM + 1024*c}'
    def M(c, n): return [smf(ACC[t], AF(c), wreg(t, c)) for t in range(n)]
    def dl(c): return f'buffer_load_dwordx4 {vr(AF(c))}, v{L16}, {srd}, s{sM2} offen offset:{(c-4)*1024} {LD}'
    ldb = f's_mov_b32 exec_hi, 0xffff\nbuffer_load_dwordx4 {vr(VX)}, v{L16}, {srd}, s{sM8} offen {LD}\ns_mov_b32 exec_hi, -1'
    chkb = f's_mov_b32 exec_hi, 0xffff\n{cmpu(VX)}\nds_write_b128 v{T1}, {vr(VX)}\ns_mov_b32 exec_hi, -1'
    for c in range(3 if F4 else 4): a(rd(c))
    P('barA')
    bp = OPT['bp']
    seq = []
    for c in range(4):
        seq.append(f's_waitcnt lgkmcnt({2 if (F4 and c == 0) else 3-c})')
        for x in M(c, 6): seq.append(x)
    if not OPT['dir']:
        k = 0
        orx = f's_or_b64 vcc, vcc, s[{sX}:{sX+1}]'
        for x in seq:
            a(x)
            if x.startswith('v_smfmac'):
                if F4 and k == 2: a('s_waitcnt vmcnt(0)'); a(rd(3))
                if k == bp: a(dl(4))
                if k == bp+1: a(ldb)
                if k == max(bp+2, 6): a(dl(5))
                if k == 21: a('s_waitcnt vmcnt(2)'); a(cmpu(AF(4)))
                if OPT['qs'] and k in (5, 11, 17): P(f'c{k//6}')
                k += 1
        a(br(f'{tag}_rt2'))
        ool.append(f'{tag}_rt2:\n' + cnt(3) + tmo(f'{tag}_ok2') + dl(4) + '\n' + ldb + '\n' + dl(5) + '\ns_waitcnt vmcnt(2)\n' + cmpu(AF(4)) + '\n' + br(f'{tag}_rt2') + f'\ns_branch {tag}_ok2')
        a(f'{tag}_ok2:')
        if OPT['qs']: P('c3')
        m = M(4, 4)
        a(m[0]); a('s_waitcnt vmcnt(1)'); a(chkb); a(m[1]); a('s_waitcnt vmcnt(0)'); a(f'v_cmp_u_f32 s[{sX}:{sX+1}], v{AF(5)}, v{AF(5)+2}'); a(m[2])
        a(m[3]); a(orx); a(br(f'{tag}_rt1'))
        ool.append(f'{tag}_rt1:\n' + cnt(2) + tmo(f'{tag}_ok1') + ldb + '\n' + dl(5) + '\ns_waitcnt vmcnt(0)\n' + chkb + f'\nv_cmp_u_f32 s[{sX}:{sX+1}], v{AF(5)}, v{AF(5)+2}\ns_nop 1\n'
                   + orx + '\n' + br(f'{tag}_rt1') + f'\ns_branch {tag}_ok1')
        a(f'{tag}_ok1:')
        a(f's_bitcmp1_b64 s[{sFM}:{sFM+1}], s{sSTEP}')
        a('s_waitcnt lgkmcnt(0)')
        a('s_barrier')
        if OPT['qs']: P('barB')
        a(rd(6)); a(rd(7)); a(rd(8))
    else:
        def dd(c): return f'buffer_load_dwordx4 {vr(AF(c))}, v{L16}, {srd}, s{sM2 if c < 8 else sM8} offen offset:{((c-4)%4)*1024} {LD}'
        k = 0
        when = {bp: 4, max(bp+1, 6): 5, 12: 6, 18: 7}
        for x in seq:
            a(x)
            if x.startswith('v_smfmac'):
                if k in when: a(dd(when[k]))
                if k == 21: a('s_waitcnt vmcnt(3)'); a(cmpu(AF(4)))
                if OPT['qs'] and k in (5, 11, 17): P(f'c{k//6}')
                k += 1
        def rt(n, hi):
            ool.append(f'{tag}_d{n}:\n' + cnt(2) + tmo(f'{tag}_dk{n}') + '\n'.join(dd(x) for x in range(n, hi+1)) + f'\ns_waitcnt vmcnt({hi-n})\n' + cmpu(AF(n)) + '\n' + br(f'{tag}_d{n}') + f'\ns_branch {tag}_dk{n}')
        a(br(f'{tag}_d4')); rt(4, 7); a(f'{tag}_dk4:')
        if OPT['qs']: P('c3')
        for c in range(4, 8):
            m = M(c, 4)
            a(m[0])
            if c == 4: a(dd(8))
            a(m[1]); a(f's_waitcnt vmcnt({8-c-1})'); a(cmpu(AF(c+1))); a(m[2]); a(m[3]); a(br(f'{tag}_d{c+1}')); rt(c+1, 8); a(f'{tag}_dk{c+1}:')
            if OPT['qs'] and c in (4, 5): P('x')
        a(f's_bitcmp1_b64 s[{sFM}:{sFM+1}], s{sSTEP}')
    a(f's_cbranch_scc0 {tag}_fl')
    a(f'{tag}_flok:')
    if OPT['ts']:
        a(f's_lshl_b32 s{sTO}, s{sH}, 2\ns_add_u32 s{sTO}, s{sTO}, s{sW}\ns_lshl_b32 s{sTO}, s{sTO}, 6\ns_add_u32 s{sTO}, s{sTO}, s{sSTEP}\ns_lshl_b32 s{sTO}, s{sTO}, 2\ns_add_u32 s{sTO}, s{sTO}, {WS_PROF+0x30000}')
        a(f'v_mov_b32 v{T0}, s{P.base+4}\ns_mov_b64 exec, 1\nbuffer_store_dword v{T0}, v{L16}, {srd}, s{sTO} offen\ns_mov_b64 exec, -1')
    ool.append(f'{tag}_fl:\n' + tmo(f'{tag}_flok') + f'v_lshrrev_b32 v{T0}, 2, v{L16}\nbuffer_load_dword v{FLG}, v{T0}, {srd}, s{sKVF} offen sc1\ns_waitcnt vmcnt(0)\n'
               f'v_cmp_eq_u32 s[{sFM}:{sFM+1}], v{TAGV}, v{FLG}\ns_nop 1\ns_bitcmp1_b64 s[{sFM}:{sFM+1}], s{sSTEP}\ns_cbranch_scc0 {tag}_fl\ns_branch {tag}_flok')
    assert not OPT['dir']
    late = []
    rops = [
        f'v_mov_b64 {vr(T0,2)}, -1\ns_mov_b32 exec_hi, 0\nbuffer_store_dwordx4 {vr(PUB)}, v{ORD}, {srd}, s{sOOB if OPT["nopub"] else sMH} offen sc1',
        f'buffer_store_dwordx2 {vr(T0,2)}, v{PBST}, {srd}, s{sMBO} offen {ST}\ns_mov_b32 exec_hi, -1\nv_lshlrev_b32 v{T1}, {OPT["rsh"]}, v{L16}',
        f'buffer_store_dword v{T0}, v{T1}, {srd}, s{sPBO} offen {ST}',
        f'buffer_store_dword v{T0}, v{T1}, {srd}, s{sPBO} offen offset:8 {ST}',
    ]
    m = M(5, 4)
    a(f's_cmp_eq_u64 s[{sFM}:{sFM+1}], -1')
    a(m[0])
    a(f's_cbranch_scc0 {tag}_fa')
    a(f'{tag}_fad:')
    ool.append(f'{tag}_fa:\nv_lshrrev_b32 v{T1}, 2, v{L16}\nbuffer_load_dword v{FLG}, v{T1}, {srd}, s{sKVF} offen sc1\ns_branch {tag}_fad')
    a(m[1]); a(f'buffer_load_dwordx4 {vr(VX)}, v{L16}, {srd}, s{sKV} offen offset:2048 sc1')
    a(m[2]); a(m[3]); a(f'buffer_load_dwordx4 {vr(VX+4)}, v{L16}, {srd}, s{sKV} offen offset:3072 sc1')
    if OPT['qs']: P('c5')
    m = M(6, 4)
    a('s_waitcnt lgkmcnt(2)')
    for k in range(4):
        a(m[k])
        a(rops[k])
    for c in range(7, 9):
        m = M(c, 4)
        a(f's_waitcnt lgkmcnt({8-c})')
        for k, x in enumerate(m):
            if c == 8 and k == 3: a(cvt(Q0, Q0, Q0+1))
            a(x)
    P('qk')
    vq = [(t, c) for c in (5, 6, 7, 4, 8) for t in (4, 5)]
    def vm(n=1):
        for _ in range(n):
            t, c = vq.pop(0); a(smf(ACC[t], AF(c), wreg(t, c)))
    a(cvt(Q0+1, Q0+2, Q0+3)); a(cvt(Q0+2, K0, K0+1)); a(cvt(Q0+3, K0+2, K0+3))
    a(cvt(Q1, Q1, Q1+1)); a(cvt(Q1+1, Q1+2, Q1+3))
    a(mfma(K0, Q0, SEL))
    a(cvt(Q1+2, K1, K1+1)); a(cvt(Q1+3, K1+2, K1+3))
    a(mfma(K1, Q1, SEL))
    U = Q0
    a(cvt(U, K0, K0+1)); a(cvt(U+1, K0+2, K0+3))
    vm(1)
    a(cvt(U+2, K1, K1+1)); a(cvt(U+3, K1+2, K1+3))
    TX0, TX1, TM = K0, Q1, K1
    a(f'v_add_u32 v{T0}, s{sSCW}, v{L16}')
    a(mfma(TX0, KX, U)); a(mfma(TX1, KX+4, U)); a(mfma(TM, U, U))
    if not OPT['qs']: P('S')
    for r in range(4):
        a(f'v_mov_b32_dpp v{TX0+r}, v{TX1+r} row_ror:8 row_mask:0xf bank_mask:0xc')
    a(f'ds_write_b128 v{T0}, {vr(TX0)} offset:{LDS_SC}')
    a(f's_mov_b64 exec, s[66:67]')
    a(f'ds_write_b128 v{MW}, {vr(TM)} offset:{LDS_SC}')
    a(f's_mov_b64 exec, -1')
    vm(1)
    a(f'buffer_load_dwordx4 {vr(KX)}, v{L16}, {srd}, s{sTMP} offen sc1')
    vm(1)
    a(f'buffer_load_dwordx4 {vr(KX+4)}, v{L16}, {srd}, s{sTMP} offen offset:1024 sc1')
    for _ in range(3):
        vm(1)
        for x in late[:2]: a(x)
        late = late[2:]
    assert not late
    if not OPT['qs']: P('wr')
    a(f's_waitcnt lgkmcnt(0)')
    a('s_barrier')
    P('bar1')
    RD = AQ(0)
    a(f'ds_read_b128 {vr(RD)}, v{L16} offset:{LDS_SC}')
    a(f'ds_read_b128 {vr(RD+4)}, v{L16} offset:{LDS_SC+1280}')
    vm(1)
    a(f'ds_read_b128 {vr(RD+8)}, v{L16} offset:{LDS_SC+2560}')
    a(f'ds_read_b128 {vr(TX0)}, v{L16} offset:{LDS_SC+3840}')
    vm(1)
    MRD = Q1
    for w in range(4):
        a(f'ds_read_b64 {vr(MRD+2*w,2)}, v{MR} offset:{LDS_SC+1280*w}')
        if w == 1: vm(1)
    vm(1)
    assert not vq
    a('s_waitcnt lgkmcnt(6)')
    a(pkadd(RD, RD, RD+4)); a(pkadd(RD+2, RD+2, RD+6))
    a('s_waitcnt lgkmcnt(4)')
    a(pkadd(TX0, TX0, RD+8)); a(pkadd(TX0+2, TX0+2, RD+10))
    a('s_waitcnt lgkmcnt(0)')
    a(pkadd(MRD, MRD, MRD+2)); a(pkadd(MRD+4, MRD+4, MRD+6))
    SX = RD; SM = MRD
    a(pkadd(SX, SX, TX0)); a(pkadd(SX+2, SX+2, TX0+2)); a(pkadd(SM, SM, MRD+4))
    MX = T0
    a(f'v_max3_f32 v{MX}, v{SX}, v{SX+1}, v{SX+2}')
    a(f'v_max3_f32 v{MX}, v{MX}, v{SX+3}, v{SM}')
    a(f'v_max_f32 v{MX}, v{MX}, v{SM+1}')
    if OPT['es']: P.k += 1; P.names.append('adds')
    elif not OPT['qs']: P('adds')
    def woread(i, buf): a(f'ds_read_b128 {vr(buf)}, v{WOA} offset:{i*1024}')
    WB = [K1, AQ(1), AQ(2), VX, VX+4, VA0, VA1]
    woread(1, WB[1]); woread(2, WB[2])
    a(f'v_max_f32_dpp v{MX}, v{MX}, v{MX} row_ror:8 row_mask:0xf bank_mask:0xf')
    a(f'v_mov_b32 v{T1}, v{MX}')
    VM = U
    a(cvt(VM, VA0, VA0+1)); a(cvt(VM+1, VA0+2, VA0+3))
    a(f'v_permlane16_swap_b32 v{MX}, v{T1}')
    a(f'v_max_f32 v{MX}, v{MX}, v{T1}')
    a(f'v_mov_b32 v{T1}, v{MX}')
    a(cvt(VM+2, VA1+2, VA1+3)); a(cvt(VM+3, VA1, VA1+1))
    a(f'v_permlane32_swap_b32 v{MX}, v{T1}')
    a(f'v_max_f32 v{MX}, v{MX}, v{T1}')
    a(f'v_mul_f32 v{MX}, s{sC}, v{MX}')
    for r in (SX, SX+2, SM):
        a(f'v_pk_fma_f32 {vr(r,2)}, {vr(r,2)}, s[{sC}:{sC+1}], {vr(MX,2)} op_sel_hi:[1,1,0] neg_lo:[0,0,1] neg_hi:[0,0,1]')
    for r in [SX, SX+1, SX+2, SX+3, SM, SM+1]: a(f'v_exp_f32 v{r}, v{r}')
    a('s_waitcnt vmcnt(6)')
    a(f'v_swap_b32 v{VX+4}, v{VX+6}')
    PR = TX0; PM = K1; VM = U
    a(cvt(PR, SX, SX+1)); a(cvt(PR+1, SX+2, SX+3)); a(cvt(PM, SM, SM+1))
    a(f'v_mov_b32_dpp v{PR+2}, v{PR} row_ror:8 row_mask:0xf bank_mask:0xf')
    a(f'v_mov_b32_dpp v{PR+3}, v{PR+1} row_ror:8 row_mask:0xf bank_mask:0xf')
    a(f'v_mov_b32_dpp v{PM+1}, v{PM} row_ror:8 row_mask:0xf bank_mask:0xf')
    a(f'v_swap_b32 v{VX+5}, v{VX+7}')
    if OPT['es']: P.k += 1; P.names.append('smax')
    elif not OPT['qs']: P('smax')
    PD = [AQ(3), AQ(4)]
    SUM = T0
    a(mfma(PD[0], VX, PR))
    a(f'v_add_f32 v{T1}, v{SM}, v{SM+1}')
    a(pkadd(SX, SX, SX+2))
    a(mfma(PD[1], VX+4, PR))
    a(f'v_cndmask_b32 v{T1}, 0, v{T1}, s[{sMG2}:{sMG2+1}]')
    a(f'v_add_f32 v{SUM}, v{SX}, v{SX+1}')
    a(f'v_mfma_f32_16x16x16_bf16 {vr(PD[0])}, {vr(VM,2)}, {vr(PM,2)}, {vr(PD[0])}')
    a(f'v_add_f32 v{SUM}, v{SUM}, v{T1}')
    a(f'v_mfma_f32_16x16x16_bf16 {vr(PD[1])}, {vr(VM+2,2)}, {vr(PM,2)}, {vr(PD[1])}')
    woread(0, WB[0]); woread(3, WB[3])
    a(f'v_add_f32_dpp v{SUM}, v{SUM}, v{SUM} row_ror:8 row_mask:0xf bank_mask:0xf')
    a(f'v_mov_b32 v{T1}, v{SUM}')
    for r in range(2): a(f'v_mov_b32_dpp v{PD[0]+r}, v{PD[1]+r} quad_perm:[0,1,2,3] row_mask:0xf bank_mask:0xc')
    a(f'v_permlane16_swap_b32 v{SUM}, v{T1}')
    a(f'v_add_f32 v{SUM}, v{SUM}, v{T1}')
    a(f'v_mov_b32 v{T1}, v{SUM}')
    for r in range(2,4): a(f'v_mov_b32_dpp v{PD[0]+r}, v{PD[1]+r} quad_perm:[0,1,2,3] row_mask:0xf bank_mask:0xc')
    a(f'v_permlane32_swap_b32 v{SUM}, v{T1}')
    a(f'v_add_f32 v{SUM}, v{SUM}, v{T1}')
    a(f'v_rcp_f32 v{SUM}, v{SUM}')
    O = PD[0]
    a('s_nop 0')
    for r in (0, 2): a(f'v_pk_mul_f32 {vr(O+r,2)}, {vr(O+r,2)}, {vr(SUM,2)} op_sel_hi:[1,0]')
    a(cvt(O, O, O+1)); a(cvt(O+1, O+2, O+3))
    a(f'ds_write_b64 v{OW}, {vr(O,2)}')
    if OPT['es']: P.k += 1; P.names.append('pv')
    else: P('pv')
    for i in range(4, 7): woread(i, WB[i])
    wrap = 0xfffcffff
    a(f"""
    s_add_u32 s{sM1}, s{sM1}, {MB_STRIDE}
    s_and_b32 s{sM1}, s{sM1}, {wrap}
    s_add_u32 s{sM8}, s{sM8}, {MB_STRIDE}
    s_and_b32 s{sM8}, s{sM8}, {wrap}
    s_add_u32 s{sM2}, s{sM2}, {MB_STRIDE}
    s_and_b32 s{sM2}, s{sM2}, {wrap}
    s_add_u32 s{sMBO}, s{sMBO}, {MB_STRIDE}
    s_and_b32 s{sMBO}, s{sMBO}, {wrap}
    """)
    a('s_waitcnt lgkmcnt(3)')
    a('s_barrier')
    if not OPT['qs']: P('bar2')
    if prof:
        a(f's_cmp_lg_u32 s{sSTEP}, 40\ns_cbranch_scc1 {tag}_nd')
        a(f's_lshl_b32 s{sTO}, s{sH}, 2\ns_add_u32 s{sTO}, s{sTO}, s{sW}\ns_lshl_b32 s{sTO}, s{sTO}, 7\ns_add_u32 s{sTO}, s{sTO}, {WS_PROF+0x20000}\ns_waitcnt lgkmcnt(0)\ns_mov_b64 exec, 1')
        for k in range(14): a(f'v_mov_b32 v{T0}, s{P.base+2*k}\nbuffer_store_dword v{T0}, v{L16}, {srd}, s{sTO} offen offset:{4*k}')
        a(f's_mov_b64 exec, -1\n{tag}_nd:')
    OA = [AQ(3), AQ(4), Q1, AQ(0)]
    for u in range(4): a(f'ds_read_b128 {vr(OA[u])}, v{ORD} offset:{u*512}')
    a(f"""
    s_add_u32 s{sMBW}, s{sMBW}, {MB_STRIDE}
    s_and_b32 s{sMBW}, s{sMBW}, {wrap}
    s_add_u32 s{sKV}, s{sKV}, {0 if OPT['kv0'] else KV_SEG}
    s_add_u32 s{sMH}, s{sMH}, {MH_STRIDE}
    s_xor_b32 s{sPBO}, s{sPBO}, {PB_STRIDE}
    s_cmp_eq_u32 s{sW}, 0
    """)
    a(f'v_add_u32 v{T0}, s{sXA}, v{L16}')
    NB = 7
    DD = [U, TX0]
    S2 = OA[0]; RDa = OA[3]
    own = lambda c: (WOA, c*4096, sPBW+c)
    X1 = (T0, 0, sPBX); X2 = (T1, 0, sPBX+1)
    T_W0 = [own(c) for c in range(6)]
    T_10 = [own(c) for c in range(7)] + [X1, own(7), own(8)]
    T_11 = T_10
    class St: pass
    st = St(); st.issued = NB; st.q = [4, 5, 6, 'o0', 'o1', 'o2', 'o3']
    def fork():
        n = St(); n.issued = st.issued; n.q = list(st.q); return n
    def need(S, ids):
        idx = max([S.q.index(x) for x in ids if x in S.q], default=-1)
        if idx >= 0:
            a(f's_waitcnt lgkmcnt({min(len(S.q)-1-idx, 15)})')
            del S.q[:idx+1]
    def post(T, c, k):
        d = DD[c % 2]
        if k == 0: a(cvt(d, d, d+1))
        if k == 1: a(cvt(d+1, d+2, d+3))
        if k == 2: a(f'buffer_store_dwordx2 {vr(d,2)}, v{PBST}, {srd}, s{T[c][2]} offen {ST}')
    def wread(S, T):
        i = S.issued; adr, imm, _ = T[i // 4]
        a(f'ds_read_b128 {vr(WB[i % NB])}, v{adr} offset:{imm + (i % 4)*1024}'); S.q.append(i); S.issued += 1
    s2b = {0: f'v_mov_b64 {vr(S2,2)}, 0\nv_mov_b64 {vr(S2+2,2)}, 0',
           1: f'v_mov_b32_dpp v{S2}, v{SEL2} quad_perm:[0,1,2,3] row_mask:0xf bank_mask:0x1',
           2: f'v_mov_b32_dpp v{S2+1}, v{SEL2+1} quad_perm:[0,1,2,3] row_mask:0xf bank_mask:0x1',
           3: f'v_mov_b32_dpp v{S2+2}, v{SEL2} quad_perm:[0,1,2,3] row_mask:0xf bank_mask:0x2\nv_mov_b32_dpp v{S2+3}, v{SEL2+1} quad_perm:[0,1,2,3] row_mask:0xf bank_mask:0x2'}
    def rload(R, i): return f'buffer_load_dwordx4 {vr(R[i])}, v{L16}, {srd}, s{sPBR} offen offset:{i*1024} {LD}'
    def slots(S, T, i0, i1, extra=None, red=False):
        N = 4*len(T)
        for i in range(i0, i1):
            c, u = divmod(i, 4)
            d = DD[c % 2]
            if c == 0: need(S, [f'o{u}'])
            elif u % 2 == 0: need(S, [i, i+1])
            a(mfma(d, WB[i % NB], OA[u], None if u == 0 else d))
            if S.issued < N and (c > 0 or not OPT['p0']): wread(S, T)
            if extra and i in extra: a(extra[i])
            if c >= (2 if OPT['p0'] else 1) and u >= 1: post(T, c-1, u-1)
            if red and c == len(T)-1: a(s2b[u])
        if i1 == N:
            for c in range(2): a(f's_xor_b32 s{sPBW+c}, s{sPBW+c}, {PB_STRIDE}')
            a(f's_cmp_eq_u32 s{sKIND}, 0')
            for k in range(3): post(T, len(T)-1, k)
    def zacc(o=None, lo=0, hi=12):
        for r in list(range(Q0, VA1+4, 2))[lo:hi]: a(f'v_mov_b64 {vr(r,2)}, 0')
    def xors(o=None):
        for c in range(2, 10): a(f's_xor_b32 s{sPBW+c}, s{sPBW+c}, {PB_STRIDE}')
    gwr = f'v_mov_b32 v{T0}, s{sSTEP}\nds_write_b32 v{L16}, v{T0} offset:{LDS_GATE}'
    def reduce(R, young, lbl, fail, gw=False):
        for i in range(4):
            a(f's_waitcnt vmcnt({young[i]})')
            a(mfma(RDa, S2, R[i], None if i == 0 else RDa))
        a('s_nop 6')
        a(f'{lbl}_c:')
        a(f'v_cmp_u_f32 vcc, v{RDa}, v{RDa}')
        for r in range(4): a(f'v_add_f32_dpp v{RDa+r}, v{RDa+r}, v{RDa+r} row_ror:8 row_mask:0xf bank_mask:0xf')
        a(cvt(PUB, RDa, RDa+1)); a(cvt(PUB+1, RDa+2, RDa+3))
        a(br(fail))
        a(f'{lbl}_ok:')
        a('s_mov_b32 exec_hi, 0')
        a(f'buffer_store_dwordx2 {vr(PUB,2)}, v{PBST}, {srd}, s{sMBW} offen {ST}')
        a('s_mov_b64 exec, -1')
        if gw: a(gwr)
        a(f's_xor_b32 s{sPBR}, s{sPBR}, {PB_STRIDE}')
        a(f's_cmp_eq_u32 s{sSTEP}, 63')
        a(f's_cbranch_scc1 {DONE}')
    def rl4(R): return '\n'.join(rload(R, i) for i in range(4))
    def plain_retry(R, lbl, okl, cl, site):
        ool.append(f'{lbl}:\n' + cnt(site) + tmo(okl) + rl4(R) + '\n' +
                   '\n'.join(f's_waitcnt vmcnt({3-i})\n' + mfma(RDa, S2, R[i], None if i == 0 else RDa) for i in range(4)) + f'\ns_nop 7\ns_branch {cl}')
    def gate(lbl):
        a(f'{lbl}:')
        a(f'ds_read_b32 v{T0}, v{L16} offset:{LDS_GATE}')
        a(tmo(f'{lbl}d'))
        a('s_waitcnt lgkmcnt(0)')
        a(f'v_cmp_ne_u32 vcc, s{sSTEP}, v{T0}')
        a(f's_cbranch_vccnz {lbl}')
        a(f'{lbl}d:')
    def PS(k):
        if prof: a(f's_memtime s[{P.base+2*k}:{P.base+2*k+1}]')
    def nops(n, why):
        n *= 8
        while n > 0:
            k = min(n, 16); a(f's_nop {k-1}   ; {why}'); n -= k
    kwo = P.k + (0 if OPT['qs'] else 1)
    R0 = [AQ(1), AQ(2), VX, VX+4]
    slots(st, T_11, 0, 4)
    if OPT['p0']:
        for _ in range(4): wread(st, T_11)
        for k in range(3): post(T_11, 0, k)
    if not OPT['qs']: P('wo0')
    slots(st, T_11, 4, 16)
    S0 = fork()
    a(f's_cbranch_scc1 {tag}_w0')
    slots(st, T_11, 16, 29)
    S3e = fork()
    a(f's_cmp_eq_u32 s{sKIND}, 1')
    a(f's_cbranch_scc1 {tag}_w3e')
    slots(st, T_11, 29, 40, red=True)
    PS(kwo)
    a(f's_cbranch_scc1 {tag}_k2')
    if not OPT['lz']: zacc()
    xors()
    if OPT['lg']: gate(f'{tag}_lgate')
    if OPT['lz']: zacc(lo=0, hi=OPT['lz'])
    for i in range(OPT['l0']): a('s_nop 7')
    a(rl4(R0))
    if OPT['lz']: zacc(lo=OPT['lz'])
    if OPT['ld']:
        if not OPT['lz']: a('s_sleep 1')
        a(f'{tag}_l2:')
        a(rl4(R0))
        reduce(R0, [7, 6, 5, 4], f'{tag}_rl', f'{tag}_lf')
        ool.append(f'{tag}_lf:\n' + cnt(5) + tmo(f'{tag}_rl_ok') + f's_branch {tag}_l2')
    else:
        reduce(R0, [3, 2, 1, 0], f'{tag}_rl', f'{tag}_lf')
        plain_retry(R0, f'{tag}_lf', f'{tag}_rl_ok', f'{tag}_rl_c', 5)
    PS(kwo+1); PS(0)
    a('s_waitcnt vmcnt(1)')
    a(f's_branch {tag}_ok0')
    a(f'{tag}_w0:')
    a('s_nop 1')
    slots(S0, T_W0, 16, 24, red=True)
    P('wo')
    nops(OPT['z0'], 'let the last partial stores land before the first poll')
    a(rl4(R0))
    nops(OPT['z1'], 'spacing between two overlapped poll rounds')
    a(f'{tag}_e2:')
    a(rl4(R0))
    reduce(R0, [7, 6, 5, 4], f'{tag}_re', f'{tag}_ef', gw=True)
    ool.append(f'{tag}_ef:\n' + cnt(1) + tmo(f'{tag}_re_ok') + f's_branch {tag}_e2')
    nops(OPT['z2'], 'let the publish stores land before the first poll')
    P('red')
    a(f's_branch {LOOP}')
    a(f'{tag}_k2:')
    a(f's_cmp_eq_u32 s{sSTEP}, 63')
    a(f's_cbranch_scc1 {tag}_end')
    if F4: a(f's_branch {tag}_w3z')
    a(f's_cmp_eq_u32 s{sW}, 3')
    a(f's_cbranch_scc1 {tag}_w3z')
    if OPT['fg']: gate(f'{tag}_gate')
    for i in range(OPT['g2']): a('s_nop 7')
    PS(kwo+1)
    a(f's_branch {LOOP}')
    a(f'{tag}_w3e:')
    R3 = [WB[i % NB] for i in range(33, 37)]
    slots(S3e, T_10, 29, 40, extra={33+i: rload(R3, i) for i in range(4)}, red=True)
    PS(kwo)
    reduce(R3, [6, 5, 4, 2], f'{tag}_r3', f'{tag}_3f')
    plain_retry(R3, f'{tag}_3f', f'{tag}_r3_ok', f'{tag}_r3_c', 4)
    a(f'{tag}_w3z:')
    zacc(); xors()
    PS(kwo+1); PS(0)
    a(f's_branch {tag}_ok0')
    for o in ool: a(o)
    a(f'{DONE}:')

def init_sgprs(a):
    srd = f's[{sWS}:{sWS+3}]'
    a(f'''
    s_mov_b32 s{sSTEP}, 0
    s_mov_b32 s{sRT}, 0
    s_mov_b32 s{sOOB}, 0x7f000000
    s_lshl_b32 s{sM1}, s{sW}, 10
    s_add_u32 s{sMW}, s{sM1}, {LDS_MEM}
    s_add_u32 s{sM1}, s{sM1}, {WS_MB+1024}
    s_mov_b32 s{sM2}, {WS_MB+1024+4096}
    s_mul_i32 s{sM8}, s{sW}, 768
    s_add_u32 s{sMW3}, s{sM8}, {LDS_MEM+6144}
    s_add_u32 s{sM8}, s{sM8}, {WS_MB+1024+6144}
    {'s_mov_b32 s%d, %d' % (sM8, WS_MB+1024+8192) if OPT['dir'] else ''}
    s_lshl_b32 s{sTMP}, s{sH}, 7
    s_lshl_b32 s{sTMP2}, s{sW}, 13
    s_add_u32 s{sPBW}, s{sTMP}, s{sTMP2}
    s_add_u32 s{sPBW}, s{sPBW}, {WS_PB}
    ''')
    for c in range(1, 9): a(f's_add_u32 s{sPBW+c}, s{sPBW}, {c*32768}')
    a(f'''
    s_lshl_b32 s{sTMP}, s{sH}, 2
    s_add_u32 s{sTMP}, s{sTMP}, s{sW}
    s_lshl_b32 s{sKV}, s{sTMP}, 12
    s_add_u32 s{sKV}, s{sKV}, {WS_KV}
    s_lshl_b32 s{sKVF}, s{sTMP}, 8
    s_add_u32 s{sKVF}, s{sKVF}, {WS_KVF}
    s_add_u32 s{sTMP}, s{sW}, 5
    s_lshl_b32 s{sXA}, s{sTMP}, 12
    s_add_u32 s{sXA}, s{sXA}, {LDS_WO}
    s_add_u32 s{sXA+1}, s{sXA}, {3*4096}
    s_lshl_b32 s{sPBX}, s{sTMP}, 15
    s_lshl_b32 s{sTMP2}, s{sH}, 7
    s_add_u32 s{sPBX}, s{sPBX}, s{sTMP2}
    s_add_u32 s{sPBX}, s{sPBX}, {WS_PB}
    s_add_u32 s{sPBX+1}, s{sPBX}, {3*32768}
    s_mov_b32 s{sKIND}, 0
    s_mov_b32 s{sTMP}, 72
    s_cmp_eq_u32 s{sW}, 0
    s_cselect_b32 s{sKIND}, 2, s{sKIND}
    s_cselect_b32 s{sTMP}, s{sH}, s{sTMP}
    s_add_u32 s{sTMP2}, s{sH}, 40
    s_cmp_eq_u32 s{sW}, 1
    s_cselect_b32 s{sKIND}, 2, s{sKIND}
    s_cselect_b32 s{sTMP}, s{sTMP2}, s{sTMP}
    s_add_u32 s{sTMP2}, s{sH}, 32
    s_cmp_eq_u32 s{sW}, 3
    s_cselect_b32 s{sTO}, s{sTMP2}, 99
    s_cmp_lt_u32 s{sTO}, 40
    s_cselect_b32 s{sKIND}, 1, s{sKIND}
    s_cselect_b32 s{sTMP}, s{sTO}, s{sTMP}
    s_lshl_b32 s{sPBR}, s{sTMP}, 12
    s_add_u32 s{sPBR}, s{sPBR}, {WS_PB}
    s_lshl_b32 s{sRED}, s{sTMP}, 7
    s_add_u32 s{sRED}, s{sRED}, 1024
    s_cmp_eq_u32 s{sKIND}, 0
    s_cselect_b32 s{sRED}, 0x7f000000, s{sRED}
    s_lshl_b32 s{sMH}, s{sTMP}, 8
    s_cmp_eq_u32 s{sKIND}, 0
    s_cselect_b32 s{sMH}, 0x7f000000, s{sMH}
    s_add_u32 s{sMH}, s{sMH}, {WS_MH - LDS_OB}
    s_add_u32 s{sMBO}, s{sRED}, {WS_MB+2*MB_STRIDE}
    s_add_u32 s{sMBW}, s{sRED}, {WS_MB}
    s_xor_b32 s{sPBO}, s{sPBR}, {PB_STRIDE}
    s_cmp_eq_u32 s{sKIND}, 0
    s_cselect_b32 s{sPBO}, 0x7f000000, s{sPBO}
    ''')

def gen_chain(a, prof=False):
    srd = SRD_WS
    sA, sB, sC3, sD = 72, 76, 80, 84
    sM0 = 88
    from qkv import pstamp
    a('R_chain:')
    pstamp(a, prof, 0, 76)
    make_srd(a, sA, KA_WQ, 576*8192); make_srd(a, sB, KA_WK, 576*8192); make_srd(a, sC3, KA_WV, 576*8192)
    make_srd(a, sD, KA_WO, 4096*1152); make_srd(a, sM0, KA_MEM0, 9216)
    a(f's_load_dwordx2 s[92:93], s[0:1], {KA_DBG}')
    TA = 44; TMPB = 20; WOV = 26
    a(f'''
    s_mov_b32 s{sW}, s{sWAVE}
    s_mov_b32 s{sH}, s{sRANK}
    s_mul_i32 s{sTMP2}, s{sW}, 36864
    s_add_u32 s94, s{sTMP2}, {LDS_WO}
    s_lshl_b32 s95, s{sH}, 8
    s_lshl_b32 s{sTMP}, s{sW}, 17
    s_add_u32 s95, s95, s{sTMP}             ; h*256 + w*16*8192
    s_mul_i32 s97, s{sH}, {128*1152}
    s_lshl_b32 s{sTMP}, s{sW}, 5
    s_add_u32 s97, s97, s{sTMP}             ; h*128*1152 + w*32
    v_and_b32 v28, 63, v0
    s_mov_b32 s{sTMP}, s{sH}
    s_cmp_eq_u32 s{sW}, 1
    s_cselect_b32 s{sTMP2}, 40, 0
    s_add_u32 s{sTMP}, s{sTMP}, s{sTMP2}
    s_cmp_eq_u32 s{sW}, 3
    s_cselect_b32 s{sTMP2}, 32, 0
    s_add_u32 s{sTMP}, s{sTMP}, s{sTMP2}
    s_lshl_b32 s{sTMP}, s{sTMP}, 4
    v_and_b32 v70, 7, v28
    v_mul_u32_u24 v70, 1152, v70
    v_bfe_u32 v71, v28, 4, 1
    v_lshl_add_u32 v70, v71, 3, v70
    s_waitcnt lgkmcnt(0)
    buffer_load_dwordx2 {vr(PUB,2)}, v70, s[{sM0}:{sM0+3}], s{sTMP} offen
    ''')
    def after_issue():
        if DBG.get('bare'): return 0
        a(f's_waitcnt vmcnt(36)\nv_add_u32 v{TAGV}, 1, v4')
        a(f'''
        v_lshrrev_b32 v29, 4, v28               ; g'
        v_bfe_u32 v30, v28, 2, 2                ; r4
        v_and_b32 v31, 3, v28                   ; c4
        v_and_b32 v32, 1, v30                   ; r4&1
        v_lshrrev_b32 v33, 1, v30               ; r4>>1
        v_and_b32 v34, 1, v29                   ; g'&1
        v_lshl_add_u32 v35, v33, 3, v32
        v_lshl_add_u32 v35, v34, 2, v35         ; row16
        v_lshl_add_u32 v36, v34, 1, v32
        v_lshl_add_u32 v36, v33, 2, v36         ; swz
        s_lshl_b32 s{sTMP}, s{sW}, 1
        v_xor_b32 v36, s{sTMP}, v36
        v_lshlrev_b32 v35, 8, v35
        v_lshl_add_u32 v35, v36, 5, v35
        v_lshl_add_u32 v35, v31, 3, v35
        v_lshrrev_b32 v37, 1, v29
        v_mul_u32_u24 v37, 36864, v37
        v_add_u32 v35, v35, v37
        v_add_u32 v{TA}, {LDS_WO}, v35
        v_xor_b32 v{TA+1}, 32, v{TA}
        v_add_u32 v{TA+2}, {2*36864}, v{TA}
        v_add_u32 v{TA+3}, {2*36864}, v{TA+1}
        v_lshrrev_b32 v{WOV}, 1, v28
        v_mul_u32_u24 v{WOV}, 1152, v{WOV}
        v_and_b32 v38, 1, v28
        v_lshl_add_u32 v{WOV}, v38, 4, v{WOV}
        v_lshrrev_b32 v39, 2, v28
        v_lshlrev_b32 v39, 5, v39
        v_lshl_add_u32 v39, v31, 3, v39
        v_add_u32 v39, s94, v39
        ''')
        consts(a)
        init_sgprs(a)
        return 0
    def reads(m, c):
        out = []
        for t in range(2):
            tile = [0, 1, 4][m] + ([0, 2][t] if m < 2 else t)
            w = wreg(tile, c)
            k, lo = w[0], int(w[2:w.index(':')])
            for hb2 in range(2):
                for rh in range(2):
                    r = lo + 4*hb2 + 2*rh
                    out.append(f'ds_read_b64_tr_b16 {k}[{r}:{r+1}], v{TA+2*hb2+t} offset:{c*4096 + rh*512}')
        return out
    def wo_dma(c):
        if DBG.get('nowo'): return []
        return [f's_add_u32 s96, s97, {c*128 + j*32*1152}\ns_add_u32 m0, s94, {c*4096 + j*1024}\n'
                f'buffer_load_dwordx4 v{WOV}, s[{sD}:{sD+3}], s96 offen lds' for j in range(4)]
    pstamp(a, prof, 1, 76)
    def pr(m, c):
        n = 0
        if c == 8 and prof and not DBG.get('nops'): pstamp(a, prof, 2+m, 76); n += 1
        return n
    cnt = stage_weights(a, 'C', [f's[{x}:{x+3}]' for x in (sA, sB, sC3)], reads, 'chain', LDS_WO, TMPB, [95, 96, 94],
                        extra_dma=wo_dma, after_issue=after_issue, post_read=pr)
    if DBG.get('bare'):
        a('s_waitcnt vmcnt(0)'); pstamp(a, prof, 5, 76); a('s_endpgm')
        a('F_ok0:\nF_end:\ns_endpgm'); return
    a(f'''
    v_mov_b32 v{T0}, 64
    v_lshrrev_b32 v{T1}, 2, v{L16}
    global_load_dword v76, v{T0}, s[92:93] sc1
    buffer_load_dword v{FLG}, v{T1}, {srd}, s{sKVF} offen sc1
    v_lshlrev_b32 v77, 2, v{L16}
    buffer_load_dword v72, v77, {srd}, s{sPBO} offen sc1
    s_xor_b32 s{sTMP}, s{sPBO}, {PB_STRIDE}
    buffer_load_dword v72, v77, {srd}, s{sTMP} offen sc1
    s_mov_b32 exec_hi, 0
    ''')
    for k in range(1, 4):
        a(f's_add_u32 s{sTMP}, s{sRED}, {WS_MB + k*MB_STRIDE}')
        a(f'buffer_load_dwordx2 v[72:73], v{PBST}, {srd}, s{sTMP} offen sc1')
    a('s_mov_b32 exec_hi, -1')
    cnt[-1] += 7
    for c in range(9):
        a(f's_waitcnt vmcnt({sum(cnt[27+c+1:]) + (7 if c == 8 else 0)})')
        b = 40 + 16*(c % 2)
        for u in range(4):
            for rh in range(2):
                a(f'ds_read_b64_tr_b16 v[{b+4*u+2*rh}:{b+4*u+2*rh+1}], v39 offset:{c*4096 + u*1024 + rh*512}')
        a('s_waitcnt lgkmcnt(0)')
        for u in range(4):
            a(f'ds_write_b128 v{WOA}, {vr(b+4*u)} offset:{(4*c+u)*1024}')
    if OPT['noqkv']:
        a('s_waitcnt vmcnt(0)'); pstamp(a, prof, 5, 76); a('s_endpgm')
    a(f'''
    s_waitcnt vmcnt(0)
    s_branch C_wi2
C_wi:
    global_load_dword v76, v{T0}, s[92:93] sc1
    buffer_load_dword v{FLG}, v{T1}, {srd}, s{sKVF} offen sc1
    s_waitcnt vmcnt(0)
C_wi2:
    v_readfirstlane_b32 s{sTMP}, v76
    v_cmp_eq_u32 s[{sFM}:{sFM+1}], v{TAGV}, v{FLG}
    s_add_u32 s{sRT}, s{sRT}, 1
    s_cmp_gt_u32 s{sRT}, 0x100000
    s_cbranch_scc1 C_wfd
    s_cmp_lt_u32 s{sTMP}, 45
    s_cbranch_scc1 C_wi
    s_bitcmp1_b64 s[{sFM}:{sFM+1}], 0
    s_cbranch_scc0 C_wi
C_wfd:
    s_waitcnt lgkmcnt(0)
    buffer_load_dwordx4 {vr(KX)}, v{L16}, {srd}, s{sKV} offen sc1
    buffer_load_dwordx4 {vr(KX+4)}, v{L16}, {srd}, s{sKV} offen offset:1024 sc1
    ''')
    pstamp(a, prof, 5, 76)
    if OPT['noqkv']: a('s_endpgm')
    for r in range(Q0, VA1+4, 2): a(f'v_mov_b64 {vr(r,2)}, 0')
    if prof:
        for i in range(8): a(f's_mov_b32 s{sPROF+i}, 0')
        a('s_memrealtime s[28:29]\ns_memtime s[32:33]')
    a(f's_cmp_lg_u32 s{sW}, 0\ns_cbranch_scc1 F_ok0' if OPT['f4'] else f's_bitcmp1_b32 s{sW}, 0\ns_cbranch_scc1 F_ok0')
    for c in range(2, 10): a(f's_xor_b32 s{sPBW+c}, s{sPBW+c}, {PB_STRIDE}')
    gen_step(a, '', 'sc1', prof, 'F')
    a(f'''
    s_mov_b32 exec_hi, 0
    buffer_store_dwordx4 {vr(PUB)}, v{ORD}, {srd}, s{sMH} offen sc1
    s_mov_b64 exec, -1
F_end:
    ''')
    if prof:
        a(f'''
        s_memrealtime s[30:31]
        s_memtime s[74:75]
        s_waitcnt lgkmcnt(0)
        s_sub_u32 s74, s74, s32
        s_lshl_b32 s{sTMP}, s{sH}, 2
        s_add_u32 s{sTMP}, s{sTMP}, s{sW}
        s_lshl_b32 s{sTMP}, s{sTMP}, 7
        s_add_u32 s{sTMP}, s{sTMP}, {WS_PROF}
        v_mov_b32 v1, 0
        ''')
        regs = [sPROF+i for i in range(8)] + [sPROF]*4 + [70, 28, 30, sRT] + [74+2*i for i in range(14)]
        for i, r in enumerate(regs):
            a(f'v_mov_b32 v2, s{r}\nbuffer_store_dword v2, v1, {srd}, s{sTMP} offen offset:{4*i}')
    a('s_endpgm')
```

```python
import struct
from common import *
from qkv import mf32, pstamp
def fl(x): return '0x%08x' % struct.unpack('<I', struct.pack('<f', float(x)))[0]
sF, sT0, sT1, sT2, sIT, sBUF, sXO, sRT, sSO = 12, 13, 14, 15, 16, 17, 18, 19, 20
sAX, sWR, sWI, sOUT, sDBG = 24, 28, 32, 36, 40
LN, HI, N31, T0, T1, T2, T3, XR, XV, STA, CC, BB, BB2 = range(1, 14)
WF = 64
def mm(d, a, b, first): return f'v_mfma_f32_32x32x16_bf16 {vr(d,16)}, {a}, {b}, ' + ('0' if first else vr(d,16))

def trig_pair(a, dst, fn, c, k0, b0, k1, b1, agpr=False, neg_dst=None, mul=None):
    a(f'v_fmamk_f32 v{T0}, v{c}, {fl(k0)}, v{b0}')
    a(f'v_fmamk_f32 v{T1}, v{c}, {fl(k1)}, v{b1}')
    a(f'v_fract_f32 v{T0}, v{T0}'); a(f'v_fract_f32 v{T1}, v{T1}')
    a(f'v_{fn}_f32 v{T0}, v{T0}'); a(f'v_{fn}_f32 v{T1}, v{T1}')
    if mul is not None:
        a(f'v_mul_f32 v{T0}, v{mul}, v{T0}'); a(f'v_mul_f32 v{T1}, v{mul}, v{T1}')
    if agpr:
        a(cvt(T2, T0, T1)); a(f'v_accvgpr_write_b32 a{dst}, v{T2}')
        if neg_dst is not None:
            a(f'v_xor_b32 v{T2}, 0x80008000, v{T2}'); a(f'v_accvgpr_write_b32 a{neg_dst}, v{T2}')
    else:
        a(cvt(dst, T0, T1))
        if neg_dst is not None: a(f'v_xor_b32 v{neg_dst}, 0x80008000, v{dst}')

def grid_arrive(a, off):
    a(f'''
    s_waitcnt vmcnt(0)
    s_barrier
    s_cmp_lg_u32 s{sWAVE}, 0
    s_cbranch_scc1 FB_na{off}
    s_mov_b64 exec, 1
    v_mov_b32 v{T0}, {off}
    v_mov_b32 v{T1}, 1
    global_atomic_add v{T0}, v{T1}, s[{sDBG}:{sDBG+1}]
    s_mov_b64 exec, -1
FB_na{off}:
    ''')
def grid_wait(a, off, n):
    a(f'''
    v_mov_b32 v{T0}, {off}
FB_w{off}:
    s_mov_b64 exec, 1
    global_load_dword v{T1}, v{T0}, s[{sDBG}:{sDBG+1}] sc1
    s_waitcnt vmcnt(0)
    v_readfirstlane_b32 s{sT0}, v{T1}
    s_mov_b64 exec, -1
    s_add_u32 s{sRT}, s{sRT}, 1
    s_cmp_gt_u32 s{sRT}, 0x80000
    s_cbranch_scc1 FB_d{off}
    s_cmp_ge_u32 s{sT0}, {n}
    s_cbranch_scc1 FB_d{off}
    s_sleep 8
    s_branch FB_w{off}
FB_d{off}:
    ''')

def gen_fft(a, prof=False):
    srd = SRD_WS
    a('R_fft:')
    make_srd(a, sAX, KA_AX, 2048*1152); make_srd(a, sWR, KA_WR, 2048*578); make_srd(a, sWI, KA_WI, 2048*578)
    make_srd(a, sOUT, KA_OUT, 2048*2304)
    a(f's_load_dwordx2 s[{sDBG}:{sDBG+1}], s[0:1], {KA_DBG}')
    import chain
    PF = chain.OPT['pf'] == 1
    if PF:
        for i, k in enumerate((KA_WQ, KA_WK, KA_WV, KA_WO)): make_srd(a, 44+4*i, k, 576*8192)
    a(f'''
    s_sub_u32 s{sF}, s{sXCC}, 5
    s_lshl_b32 s{sF}, s{sF}, 5
    s_add_u32 s{sF}, s{sF}, s{sRANK}
    s_mov_b32 s{sRT}, 0
    v_and_b32 v{LN}, 63, v0
    v_lshrrev_b32 v{HI}, 5, v{LN}
    v_and_b32 v{N31}, 31, v{LN}
    s_waitcnt lgkmcnt(0)
    s_lshl_b32 s{sT0}, s{sF}, 2
    s_add_u32 s21, s{sT0}, s{sWAVE}            ; bin
    ''')
    make_srd(a, 60, KA_MEM0, 9216)
    a(f'''
    s_cmp_ge_u32 s{sF}, 45
    s_cbranch_scc1 F_noinit
    v_mov_b64 v[100:101], -1
    v_mov_b64 v[102:103], -1
    v_lshlrev_b32 v{T0}, 6, v{LN}
    s_cmp_ge_u32 s21, 144
    s_cbranch_scc1 F_imb
    ; PB: unit = W % 72, slot = W / 72
    s_cmp_ge_u32 s21, 72
    s_cselect_b32 s{sT1}, {PB_STRIDE - 72*4096}, 0
    s_lshl_b32 s{sT2}, s21, 12
    s_add_u32 s{sT2}, s{sT2}, s{sT1}
    s_add_u32 s{sT2}, s{sT2}, {WS_PB}
    s_branch F_ist
F_imb:
    ; MB: piece i = W - 144 : slot i / 9, chunk i % 9
    s_sub_u32 s{sT1}, s21, 144
    s_mul_i32 s{sT2}, s{sT1}, 57
    s_lshr_b32 s{sT2}, s{sT2}, 9               ; slot
    s_mul_i32 s22, s{sT2}, 9
    s_sub_u32 s22, s{sT1}, s22                 ; chunk
    s_cmp_lg_u32 s{sT2}, 0
    s_cbranch_scc1 F_imn
    v_and_b32 v{T0}, 7, v{LN}
    v_mul_u32_u24 v{T0}, 1152, v{T0}
    v_lshrrev_b32 v{T1}, 3, v{LN}
    v_lshl_add_u32 v{T0}, v{T1}, 4, v{T0}
    s_lshl_b32 s23, s22, 7
    s_waitcnt lgkmcnt(0)
    buffer_load_dwordx4 v[100:103], v{T0}, s[60:63], s23 offen
F_imn:
    v_lshlrev_b32 v{T0}, 4, v{LN}
    s_lshl_b32 s{sT2}, s{sT2}, 14
    s_lshl_b32 s22, s22, 10
    s_add_u32 s{sT2}, s{sT2}, s22
    s_add_u32 s{sT2}, s{sT2}, {WS_MB + 1024}
    s_waitcnt vmcnt(0)
F_ist:
    buffer_store_dwordx4 v[100:103], v{T0}, {srd}, s{sT2} offen sc1
    ''')
    grid_arrive(a, 64)
    a('F_noinit:')
    if PF:
        a(f's_mul_i32 s{sT1}, s21, 12288\nv_lshlrev_b32 v{T0}, 4, v{LN}')
        for i in chain.OPT['pfm']:
            for j in range(12):
                if j % 4 == 0: a(f's_add_u32 s{sT2}, s{sT1}, {j*1024}')
                a(f'buffer_load_dwordx4 v[100:103], v{T0}, s[{44+4*i}:{47+4*i}], s{sT2} offen offset:{(j%4)*1024}')
        a('s_waitcnt vmcnt(0)')
    late_arrive(a, 'FF', sDBG, T0)
    a(f'''
    s_cmp_gt_u32 s21, 288
    s_cbranch_scc1 F_now
    v_lshl_add_u32 v{T0}, v{HI}, 7, v{N31}
    v_mul_u32_u24 v{T0}, 578, v{T0}
    s_lshl_b32 s{sT1}, s21, 1
    ''')
    for sg in range(2):
        for r in range(16):
            k2 = 32*sg + 8*(r>>2) + (r&3)
            a(f's_add_u32 s{sT2}, s{sT1}, {k2*32*578}')
            a(f'buffer_load_ushort v{WF+16*sg+r}, v{T0}, s[{sWR}:{sWR+3}], s{sT2} offen')
            a(f'buffer_load_ushort v{16+16*sg+r}, v{T0}, s[{sWI}:{sWI+3}], s{sT2} offen')
            if r % 8 == 7: a('s_waitcnt vmcnt(40)')
    a('F_now:')
    BM, ACC, XF = 100, 16, 32
    a(f'''
    ; cg = F % 5, rg = F / 5
    s_mul_i32 s{sT0}, s{sF}, 205
    s_lshr_b32 s22, s{sT0}, 10                 ; rg
    s_mul_i32 s{sT0}, s22, 5
    s_sub_u32 s{sT0}, s{sF}, s{sT0}            ; cg
    s_lshl_b32 s{sT0}, s{sT0}, 2
    s_add_u32 s23, s{sT0}, s{sWAVE}            ; ct
    s_lshl_b32 s{sT0}, s23, 4
    v_lshrrev_b32 v{T0}, 1, v{N31}
    v_add_u32 v{T0}, s{sT0}, v{T0}
    v_cvt_f32_u32 v{T0}, v{T0}
    v_mul_f32 v{CC}, {fl(1.0/576)}, v{T0}
    v_and_b32 v{T0}, 1, v{N31}
    v_cvt_f32_u32 v{T0}, v{T0}
    v_mul_f32 v{BB}, 0.25, v{T0}
    v_cvt_f32_u32 v{T1}, v{HI}
    v_mul_f32 v{T1}, {fl(8.0)}, v{T1}
    v_fmac_f32 v{BB}, v{T1}, v{CC}
    v_bfe_u32 v{T0}, v{LN}, 4, 1
    v_lshlrev_b32 v{XR}, 10, v{T0}
    v_lshl_add_u32 v{XR}, v{HI}, 8, v{XR}
    v_and_b32 v{T0}, 15, v{LN}
    v_lshl_add_u32 v{XR}, v{T0}, 4, v{XR}
    v_bfe_u32 v{T0}, v{LN}, 3, 1
    v_lshlrev_b32 v{T0}, 3, v{T0}
    v_and_b32 v{T1}, 3, v{LN}
    v_add_u32 v{T0}, v{T0}, v{T1}
    v_lshlrev_b32 v{T0}, 6, v{T0}
    v_bfe_u32 v{T1}, v{LN}, 2, 1
    v_add_u32 v{T0}, v{T0}, v{T1}
    s_and_b32 s{sT0}, s{sWAVE}, 1
    s_lshl_b32 s{sT0}, s{sT0}, 1
    v_add_u32 v{T0}, s{sT0}, v{T0}
    v_mul_u32_u24 v{XV}, 1152, v{T0}
    v_lshrrev_b32 v{T0}, 4, v{LN}
    v_lshl_add_u32 v{XV}, v{T0}, 4, v{XV}
    s_lshr_b32 s{sT0}, s{sWAVE}, 1
    s_lshl_b32 s{sT0}, s{sT0}, 6
    v_add_u32 v{XV}, s{sT0}, v{XV}
    v_lshlrev_b32 v{STA}, 12, v{N31}
    v_lshl_add_u32 v{STA}, v{HI}, 4, v{STA}
    s_lshl_b32 s{sBUF}, s{sWAVE}, 10
    s_mov_b32 s{sIT}, s22                      ; rt
    s_cmp_ge_u32 s{sF}, 95
    s_cbranch_scc1 F_a1done
    ''')
    def tile_off():
        a(f'''
        s_lshr_b32 s{sT0}, s{sIT}, 5           ; o>>1
        s_lshl_b32 s{sT0}, s{sT0}, 10
        s_bfe_u32 s{sT1}, s{sIT}, 0x10004      ; o&1
        s_lshl_b32 s{sT1}, s{sT1}, 8
        s_add_u32 s{sT0}, s{sT0}, s{sT1}
        s_and_b32 s{sT1}, s{sIT}, 15
        s_lshl_b32 s{sT1}, s{sT1}, 2
        s_add_u32 s{sT0}, s{sT0}, s{sT1}
        s_mul_i32 s{sXO}, s{sT0}, 1152
        s_cmp_ge_u32 s{sIT}, 64
        s_cselect_b32 s{sXO}, {SOOB}, s{sXO}
        ''')
    def xdma():
        for i in range(9):
            a(f's_add_u32 m0, s{sBUF}, {4096*i - 128*i}')
            a(f'buffer_load_dwordx4 v{XV}, s[{sAX}:{sAX+3}], s{sXO} offen offset:{128*i} lds')
    tile_off(); xdma()
    for t in range(36):
        for i in range(4):
            trig_pair(a, BM+4*t+i, 'cos', CC, 16*t+2*i, BB, 16*t+2*i+1, BB)
    a('s_waitcnt vmcnt(0)')
    for r in range(32): a(f'v_lshl_or_b32 v{WF+r}, v{16+r}, 16, v{WF+r}')
    a('F_a1loop:')
    a(f'''
    s_barrier
    s_lshl_b32 s{sSO}, s23, 17
    s_lshr_b32 s{sT0}, s{sIT}, 4
    s_lshl_b32 s{sT0}, s{sT0}, 10
    s_add_u32 s{sSO}, s{sSO}, s{sT0}
    s_and_b32 s{sT0}, s{sIT}, 15
    s_lshl_b32 s{sT0}, s{sT0}, 6
    s_add_u32 s{sSO}, s{sSO}, s{sT0}
    s_add_u32 s{sSO}, s{sSO}, {WS_X1}
    s_cmp_ge_u32 s23, 19
    s_cselect_b32 s{sSO}, {SOOB}, s{sSO}
    s_xor_b32 s{sBUF}, s{sBUF}, 0x10000
    s_add_u32 s{sIT}, s{sIT}, 19
    ''')
    tile_off()
    def xrd(t): return f'ds_read_b128 {vr(XF+4*(t%4))}, v{XR} offset:{(t>>1)*2048 + (t&1)*512}'
    for t in range(3): a(xrd(t))
    for t in range(36):
        if t+3 < 36: a(xrd(t+3))
        a(f's_waitcnt lgkmcnt({min(3, 35-t)})')
        a(mm(ACC, vr(XF+4*(t%4)), vr(BM+4*t), t == 0))
        if t < 9:
            a(f's_add_u32 m0, s{sBUF}, {4096*t - 128*t}')
            a(f'buffer_load_dwordx4 v{XV}, s[{sAX}:{sAX+3}], s{sXO} offen offset:{128*t} lds')
    a(f'v_xor_b32 v{XR}, 0x10000, v{XR}')
    for i in range(8): a(cvt(ACC+i, ACC+2*i, ACC+2*i+1))
    a(f'''
    buffer_store_dwordx4 {vr(ACC)}, v{STA}, {srd}, s{sSO} offen sc1
    buffer_store_dwordx4 {vr(ACC+4)}, v{STA}, {srd}, s{sSO} offen offset:32 sc1
    s_cmp_lt_u32 s{sIT}, 64
    s_waitcnt vmcnt(2)
    s_cbranch_scc1 F_a1loop
F_a1done:
    ''')
    grid_arrive(a, 68)
    pstamp(a, prof, 0)
    C32, S32, N32 = 224, 232, 240
    a(f'''
    v_cvt_f32_u32 v{T3}, v{N31}
    v_cvt_f32_u32 v{BB2}, v{HI}
    v_mul_f32 v{BB2}, 4.0, v{BB2}              ; 4hi
    v_mul_f32 v{CC}, {fl(1.0/32)}, v{T3}
    v_mul_f32 v{BB}, v{BB2}, v{CC}
    ''')
    def kidx(aa, e): return 16*aa + 8*(e>>2) + (e&3)
    for aa in range(2):
        for i in range(4):
            trig_pair(a, C32+4*aa+i, 'cos', CC, kidx(aa,2*i), BB, kidx(aa,2*i+1), BB)
            trig_pair(a, S32+4*aa+i, 'sin', CC, kidx(aa,2*i), BB, kidx(aa,2*i+1), BB, neg_dst=N32+4*aa+i)
    def F64(kind, x, y, aa): return 32*kind + 16*x + 8*y + 4*aa
    for x in range(2):
        a(f'v_add_f32 v{CC}, {fl(32.0*x)}, v{T3}\nv_mul_f32 v{CC}, {fl(1.0/64)}, v{CC}\nv_mul_f32 v{BB}, v{BB2}, v{CC}')
        for y in range(2):
            for aa in range(2):
                for i in range(4):
                    k0, k1 = 32*y+kidx(aa,2*i), 32*y+kidx(aa,2*i+1)
                    trig_pair(a, F64(0,x,y,aa)+i, 'cos', CC, k0, BB, k1, BB, agpr=True)
                    trig_pair(a, F64(1,x,y,aa)+i, 'sin', CC, k0, BB, k1, BB, agpr=True, neg_dst=F64(2,x,y,aa)+i)
    GA = 96
    a(f'''
    s_mul_i32 s{sT0}, s21, 3641
    s_lshr_b32 s22, s{sT0}, 16                 ; grp
    s_mul_i32 s{sT0}, s22, 18
    s_sub_u32 s23, s21, s{sT0}                 ; dt
    v_bfe_u32 v{T0}, v{N31}, 2, 1
    v_lshlrev_b32 v{T0}, 4, v{T0}
    v_lshrrev_b32 v{T1}, 3, v{N31}
    v_lshl_add_u32 v{T0}, v{T1}, 2, v{T0}
    v_and_b32 v{T1}, 3, v{N31}
    v_add_u32 v{T0}, v{T0}, v{T1}
    s_lshl_b32 s{sT0}, s23, 5
    v_add_u32 v{T0}, s{sT0}, v{T0}
    v_cvt_f32_u32 v{T0}, v{T0}
    v_mul_f32 v{CC}, {fl(1.0/576)}, v{T0}
    v_mul_f32 v{BB}, v{BB2}, v{CC}
    v_add_f32 v{XV}, 0.25, v{BB}
    v_cmp_eq_u32 vcc, 0, v{HI}
    v_mov_b32 v{T0}, 1.0
    v_cndmask_b32 v{XR}, v{T0}, 0.5, vcc       ; hi==0 ? 0.5 : 1
    v_cndmask_b32 v{STA}, 0, 0.5, vcc          ; hi==0 ? 0.5 : 0
    ''')
    for t in range(37):
        for i in range(4):
            if t == 36 and i > 0:
                a(f'v_accvgpr_write_b32 a{GA+4*t+i}, 0'); continue
            mul = XR if (t == 0 and i == 0) else (STA if t == 36 else None)
            trig_pair(a, GA+4*t+i, 'cos', CC, 8*t+i, BB, 8*t+i, XV, agpr=True, mul=mul)
    grid_wait(a, 68, 96)
    pstamp(a, prof, 1)
    XI, DR, OP = 16, 100, 164
    def D(tile, im): return DR + 32*tile + 16*im
    def O(tile, im, aa): return OP + 16*tile + 8*im + 4*aa
    a(f'''
    s_cmp_ge_u32 s{sF}, 73
    s_cbranch_scc1 F_a2done
    v_lshlrev_b32 v{STA}, 4, v{N31}
    v_lshl_add_u32 v{STA}, v{HI}, 12, v{STA}
    s_lshl_b32 s{sT0}, s{sWAVE}, 2
    v_add_u32 v{STA}, s{sT0}, v{STA}
    s_cmp_gt_u32 s21, 288
    s_cbranch_scc1 F_a2zero
    v_lshlrev_b32 v{T3}, 4, v{N31}
    v_lshl_add_u32 v{T3}, v{HI}, 10, v{T3}
    s_lshl_b32 s{sT0}, s21, 13
    s_add_u32 s{sT0}, s{sT0}, {WS_X1}
    s_add_u32 s{sT1}, s{sT0}, 4096
    ''')
    def XIN(tile, im, aa): return XI + 16*tile + 8*im + 4*aa
    for tile in range(2):
        for im in range(2):
            for aa in range(2):
                a(f'buffer_load_dwordx4 {vr(XIN(tile,im,aa))}, v{T3}, {srd}, s{sT1 if im else sT0} offen offset:{aa*2048 + tile*512} sc1')
    a(f'''
    v_cvt_f32_u32 v{T3}, v{N31}
    v_mul_f32 v{CC}, {fl(1.0/2048)}, v{T3}
    v_mul_f32 v{BB}, v{BB2}, v{CC}
    ''')
    for tile in range(2):
        a(f's_waitcnt vmcnt({4*(1-tile)})')
        for aa in range(2): a(mm(D(tile,0), vr(XIN(tile,0,aa)), vr(C32+4*aa), aa == 0))
        for aa in range(2): a(mm(D(tile,1), vr(XIN(tile,1,aa)), vr(C32+4*aa), aa == 0))
        for aa in range(2): a(mm(D(tile,0), vr(XIN(tile,1,aa)), vr(S32+4*aa), False))
        for aa in range(2): a(mm(D(tile,1), vr(XIN(tile,0,aa)), vr(N32+4*aa), False))
    TW = 48
    def cmul_pack(tile, r, getcs, sign):
        for j in range(2):
            getcs(r+j, TW+2*j, TW+2*j+1)
        for j in range(2):
            re, im, c, s = D(tile,0)+r+j, D(tile,1)+r+j, TW+2*j, TW+2*j+1
            a(f'v_mul_f32 v{TW+4+j}, v{re}, v{c}')
            a(f'v_mul_f32 v{TW+6+j}, v{im}, v{c}')
            a(f'v_fma_f32 v{TW+4+j}, {"-" if sign > 0 else ""}v{im}, v{s}, v{TW+4+j}')
            a(f'v_fma_f32 v{TW+6+j}, {"" if sign > 0 else "-"}v{re}, v{s}, v{TW+6+j}')
        a(cvt(O(tile,0,0)+r//2, TW+4, TW+5)); a(cvt(O(tile,1,0)+r//2, TW+6, TW+7))
    def tw_cs(k_of):
        def f(r, c, s):
            a(f'v_fmamk_f32 v{c}, v{CC}, {fl(k_of(r))}, v{BB}')
            a(f'v_sin_f32 v{s}, v{c}'); a(f'v_cos_f32 v{c}, v{c}')
        return f
    for tile in range(2):
        for r in range(0, 16, 2): cmul_pack(tile, r, tw_cs(lambda r, tile=tile: 32*tile + 8*(r>>2) + (r&3)), -1)
    for sg in range(2):
        first = True
        for (dim, kind, im) in ((0,0,0),(1,0,1),(0,1,1),(1,2,0)):
            for tile in range(2):
                for aa in range(2):
                    a(mm(D(sg,dim), ar(F64(kind,sg,tile,aa)), vr(O(tile,im,aa)), kind == 0 and tile == 0 and aa == 0))
    def w_cs(sg):
        def f(r, c, s):
            a(f'v_lshlrev_b32 v{c}, 16, v{WF+16*sg+r}'); a(f'v_and_b32 v{s}, 0xffff0000, v{WF+16*sg+r}')
        return f
    for sg in range(2):
        for r in range(0, 16, 2): cmul_pack(sg, r, w_cs(sg), +1)
    for tile in range(2):
        for (dim, kind, im) in ((0,0,0),(1,0,1),(0,2,1),(1,1,0)):
            for sg in range(2):
                for aa in range(2):
                    a(mm(D(tile,dim), vr(O(sg,im,aa)), ar(F64(kind,tile,sg,aa)), kind == 0 and sg == 0 and aa == 0))
    for tile in range(2):
        a(f'v_add_f32 v{CC}, {fl(32.0*tile)}, v{T3}\nv_mul_f32 v{CC}, {fl(1.0/2048)}, v{CC}\nv_mul_f32 v{BB}, v{BB2}, v{CC}')
        for r in range(0, 16, 2): cmul_pack(tile, r, tw_cs(lambda r: 8*(r>>2) + (r&3)), +1)
    for tile in range(2):
        for (dim, K, im) in ((0,C32,0),(1,C32,1),(0,N32,1),(1,S32,0)):
            for aa in range(2):
                a(mm(D(tile,dim), vr(K+4*aa), vr(O(tile,im,aa)), K == C32 and aa == 0))
    for tile in range(2):
        for r in range(16):
            a(cvt(D(tile,0)+r, D(tile,0)+r, D(tile,1)+r))
            a(f'ds_write_b32 v{STA}, v{D(tile,0)+r} offset:{(64*(8*(r>>2)+(r&3)) + 32*tile)*16}')
    a('s_branch F_a2st')
    a('F_a2zero:')
    a(f'v_mov_b32 v{T0}, 0')
    for tile in range(2):
        for r in range(16):
            a(f'ds_write_b32 v{STA}, v{T0} offset:{(64*(8*(r>>2)+(r&3)) + 32*tile)*16}')
    a(f'''
F_a2st:
    s_waitcnt lgkmcnt(0)
    s_barrier
    v_lshlrev_b32 v{T3}, 4, v0
    s_lshl_b32 s{sT0}, s{sF}, 15
    s_add_u32 s{sT0}, s{sT0}, {WS_Y1}
    ''')
    for i in range(8): a(f'ds_read_b128 {vr(XI+4*i)}, v{T3} offset:{4096*i}')
    for i in range(8):
        a(f's_waitcnt lgkmcnt({7-i})')
        a(f'buffer_store_dwordx4 {vr(XI+4*i)}, v{T3}, {srd}, s{sT0} offen sc1')
        a(f's_add_u32 s{sT0}, s{sT0}, 4096')
    a('F_a2done:')
    grid_arrive(a, 72)
    grid_wait(a, 72, 96)
    pstamp(a, prof, 2)
    YD = 100
    a(f'''
    s_cmp_ge_u32 s22, 21
    s_cbranch_scc1 F_a3done
    v_lshlrev_b32 v{T3}, 4, v{N31}
    v_mov_b32 v{XV}, v{T3}
    v_lshl_add_u32 v{T3}, v{HI}, 15, v{T3}
    v_mul_u32_u24 v{STA}, 2304, v{N31}
    v_lshl_add_u32 v{STA}, v{HI}, 5, v{STA}
    s_mov_b32 s{sIT}, s22
    s_mov_b32 s42, {fl(2.0/576/2048)}
    s_mov_b32 s43, {fl(2.0/576/2048)}
F_a3loop:
    s_lshl_b32 s{sT0}, s{sIT}, 9
    s_add_u32 s{sT0}, s{sT0}, {WS_Y1}
    s_mul_i32 s{sSO}, s{sIT}, {32*2304}
    s_lshl_b32 s{sT1}, s23, 6
    s_add_u32 s{sSO}, s{sSO}, s{sT1}
    ''')
    for t in range(37):
        a(f'buffer_load_dwordx4 {vr(YD+4*t)}, v{T3 if t < 36 else XV}, {srd}, s{sT0} offen sc1')
        a(f's_add_u32 s{sT0}, s{sT0}, 65536')
    for t in range(37):
        a(f's_waitcnt vmcnt({36-t})')
        a(mm(ACC, ar(GA+4*t), vr(YD+4*t), t == 0))
    for i in range(8): a(f'v_pk_mul_f32 {vr(ACC+2*i,2)}, {vr(ACC+2*i,2)}, s[42:43]')
    for i in range(8): a(cvt(ACC+i, ACC+2*i, ACC+2*i+1))
    a(f'''
    buffer_store_dwordx4 {vr(ACC)}, v{STA}, s[{sOUT}:{sOUT+3}], s{sSO} offen
    buffer_store_dwordx4 {vr(ACC+4)}, v{STA}, s[{sOUT}:{sOUT+3}], s{sSO} offen offset:16
    s_add_u32 s{sIT}, s{sIT}, 21
    s_cmp_lt_u32 s{sIT}, 64
    s_waitcnt vmcnt(0)
    s_cbranch_scc1 F_a3loop
F_a3done:
    ''')
    pstamp(a, prof, 3)
```

```python
from common import *
import layouts as L

LDS_SC  = 0
LDS_OB  = 5120
LDS_GATE = 0
LDS_MEM = 7168
LDS_DUMMY = 5120
LDS_WO  = 16384

L16, PBST, SEL2, SEL2b, MW, MR, OW, WOA, IDX, ORD, T0, T1 = range(12)
SEL, PUB, TAGV, FLG = 12, 16, 18, 19
Q0, K0, Q1, K1, VA0, VA1 = 20, 24, 28, 32, 36, 40
KX, VX = 44, 52
def AQ(i): return 60 + 4*i
def AF(c): return AQ(c % 5)

def wreg(tile, c):
    idx = tile*9 + c
    if idx < 32: return f'a[{8*idx}:{8*idx+7}]'
    b = 80 + 8*(idx-32)
    return f'v[{b}:{b+7}]'
ACC = [Q0, K0, Q1, K1, VA0, VA1]

sW, sH, sSTEP, sTMP, sTMP2, sTO = 12, 13, 14, 15, 16, 17
sMBRD, sMBWR, sMBNX = 18, 19, 20
sPBR = 22
sKV, sMH = 23, 25
sRED = 26
sMLO, sMHI = 28, 30
sMG = 32
sMG2 = 30
sC = 34
sRT = 37
sMW = 38
sMB4, sMB8 = 39, 21
sPROF = 44
sPBW = 52

def smf(acc, a, b): return f'v_smfmac_f32_16x16x64_bf16 {vr(acc)}, {vr(a)}, {b}, v{IDX}'
mfma = mfma16

def consts(a):
    C, G, G1, X, Y, Z = AF(0), AF(0)+1, AF(0)+2, AF(0)+3, AF(1), AF(1)+1
    a(f'''
    v_and_b32 v{X}, 63, v0
    v_lshlrev_b32 v{L16}, 4, v{X}
    v_and_b32 v{C}, 15, v{X}              ; c
    v_lshrrev_b32 v{G}, 4, v{X}           ; g
    v_and_b32 v{G1}, 1, v{G}              ; g&1
    v_lshrrev_b32 v{PBST}, 1, v{G}
    v_lshlrev_b32 v{PBST}, 12, v{PBST}
    v_lshl_add_u32 v{PBST}, v{G1}, 3, v{PBST}
    v_lshl_add_u32 v{PBST}, v{C}, 4, v{PBST}
    v_mov_b32 v{Y}, {OOB}
    v_cmp_gt_u32 vcc, 8, v{C}
    v_cndmask_b32 v{PBST}, v{Y}, v{PBST}, vcc
    v_and_b32 v{Z}, 7, v{C}
    v_lshlrev_b32 v{Z}, 4, v{Z}
    v_lshrrev_b32 v{T0}, 3, v{C}           ; hb
    v_lshl_add_u32 v{MR}, v{T0}, 3, v{Z}       ; (c&7)*16 + hb*8
    v_lshl_add_u32 v{ORD}, v{G}, 7, v{Z}
    v_add_u32 v{ORD}, {LDS_OB}, v{ORD}
    v_lshl_add_u32 v{OW}, v{G}, 7, v{MR}
    s_lshl_b32 s{sTMP}, s{sW}, 9
    s_add_u32 s{sTMP}, s{sTMP}, {LDS_OB}
    v_add_u32 v{OW}, s{sTMP}, v{OW}
    v_lshl_add_u32 v{MR}, v{G1}, 7, v{MR}
    v_add_u32 v{MR}, 1024, v{MR}
    s_mul_i32 s{sTMP}, s{sW}, 1280
    s_mov_b32 s{sSCW}, s{sTMP}
    v_lshlrev_b32 v{MW}, 7, v{G1}
    v_lshl_add_u32 v{MW}, v{C}, 4, v{MW}
    v_add_u32 v{MW}, s{sTMP}, v{MW}
    v_add_u32 v{MW}, 1024, v{MW}
    s_mul_i32 s{sTMP}, s{sW}, 36864
    s_add_u32 s{sTMP}, s{sTMP}, {LDS_WO}
    v_add_u32 v{WOA}, s{sTMP}, v{L16}
    s_mov_b32 s{sMG2}, -1
    s_mov_b32 s{sMG2+1}, 0
    s_mov_b32 s66, 0
    s_mov_b32 s67, 0x00ff00ff
    s_mov_b32 s{sC}, 0x3e0293ee            ; 128^-0.5 * log2(e) = 0.12751743
    s_mov_b32 s{sC+1}, 0x3e0293ee
    ''')
    a(f'''
    v_and_b32 v{SEL}, 7, v{C}
    v_lshlrev_b32 v{SEL+1}, 2, v{G1}
    v_sub_u32 v{SEL}, v{SEL}, v{SEL+1}
    v_lshrrev_b32 v{SEL+1}, 3, v{C}
    v_lshlrev_b32 v{SEL+1}, 2, v{SEL+1}
    v_cmp_gt_u32 vcc, 4, v{SEL}
    v_add_u32 v{SEL}, v{SEL}, v{SEL+1}
    v_cndmask_b32 v{T1}, 15, v{SEL}, vcc
    ''')
    def onehot(base, ereg, n=4):
        for i in range(n):
            a(f'''
            v_mov_b32 v{base+i}, 0
            v_mov_b32 v{Y}, 0x3f80
            v_cmp_eq_u32 vcc, {2*i}, v{ereg}
            v_cndmask_b32 v{base+i}, v{base+i}, v{Y}, vcc
            v_mov_b32 v{Y}, 0x3f800000
            v_cmp_eq_u32 vcc, {2*i+1}, v{ereg}
            v_cndmask_b32 v{base+i}, v{base+i}, v{Y}, vcc
            ''')
    onehot(SEL, T1)
    a(f'v_and_b32 v{T1}, 3, v{C}')
    onehot(SEL2, T1, 2)
    a(f'''
    v_mov_b32 v{IDX}, 0x4444
    v_mov_b32 v{Y}, 0xeeee
    v_cmp_gt_u32 vcc, 8, v{C}
    v_cndmask_b32 v{IDX}, v{Y}, v{IDX}, vcc
    ''')

OPT = dict(alw=0.4, als=0.0, al=1, m1=0, f4=0, pfm=(0,1,2,3), p0=0, lz=6, fdelay=0, dir=0, bp=3, lg=1, fg=1, z0=0, z1=3, z2=0, ld=2, l0=0, e2=1, sb=1, ts=0, fs=0, pf=1, noqkv=0, qorder=(0,1,2), kv0=0, nofl=0, f3gap=3, l2pos=0, rsh=2, elate=0, NQ1=72, q2gap=2, noattn=0, nofft=0, es=0, nopub=0, gate=1, g1=1, g2=0, ez=6, qz=12, qgap=0, ers=5, qs=0, NM=48, egap=2, mgap=4, lgap=1, nocheck=0)
sVW = 19
sOOB = 68
sKIND, sPBO, sMBO = 27, 36, 65
sPBX = sPBW + 9
sXA = 19
sKVF, sFM = 69, 2
sSCW = 64
sM1, sM2, sM8 = 18, 39, 21
sX = 40
sMW2, sMW3 = 42, 43
sMBW = 24
def gen_step(a, ST, LD, prof, tag):
    srd = SRD_WS
    P = Stamps(a, prof)
    ool = []
    LOOP = f'{tag}_loop'; DONE = f'{tag}_done'
    A4 = AQ(4)
    def cnt(i): return f's_add_u32 s{sPROF+i}, s{sPROF+i}, 1\n' if prof else ''
    def tmo(ok): return f's_add_u32 s{sRT}, s{sRT}, 1\ns_cmp_gt_u32 s{sRT}, 0x100000\ns_cbranch_scc1 {ok}\n'
    def br(lbl): return f's_cbranch_vccnz {lbl}' if not OPT['nocheck'] else 's_nop 0'
    def ld(so): return f'buffer_load_dwordx4 {vr(A4)}, v{L16}, {srd}, s{so} offen {LD}'
    def cmpu(r): return f'v_cmp_u_f32 vcc, v{r}, v{r+2}'
    AD3 = T0
    F4 = OPT['f4']
    LQ = [VX, VX+4, A4, AQ(3)] if F4 else [VX, VX+4]
    lda = '\n'.join(f'buffer_load_dwordx4 {vr(q)}, v{L16}, {srd}, s{sM1} offen offset:{1024*i} {LD}' for i, q in enumerate(LQ))
    book = (f'v_cmp_eq_u32 s[{sFM}:{sFM+1}], v{TAGV}, v{FLG}\n'
            f's_add_u32 s{sTMP}, s{sKV}, {0 if OPT["kv0"] else KV_SEG}\ns_add_u32 s{sSTEP}, s{sSTEP}, 1')
    a(f'{LOOP}:')
    P('top')
    a(lda)
    a(f'v_add_u32 v{T1}, s{sMW}, v{L16}')
    for r in range(Q0, VA1+4, 2): a(f'v_mov_b64 {vr(r,2)}, 0')
    for c in range(2, 10): a(f's_xor_b32 s{sPBW+c}, s{sPBW+c}, {PB_STRIDE}')
    a(f'{tag}_la:')
    a(lda)
    n = len(LQ)
    for i, q in enumerate(LQ):
        a(f's_waitcnt vmcnt({2*n-1-i})')
        if i == 0: a(f'v_cmp_u_f32 s[{sX}:{sX+1}], v{q}, v{q+2}')
        else: a(cmpu(q))
        a(f'ds_write_b128 v{T1}, {vr(q)} offset:{1024*i}')
        if i > 0: a(f's_or_b64 ' + ('vcc' if i == n-1 else f's[{sX}:{sX+1}]') + f', vcc, s[{sX}:{sX+1}]')
    a(br(f'{tag}_rt0'))
    ool.append(f'{tag}_rt0:\n' + cnt(0) + tmo(f'{tag}_ok0') + f's_branch {tag}_la')
    a(f'{tag}_ok0:')
    P('mem0')
    a(book)
    a(f'v_add_u32 v{T1}, s{sMW3}, v{L16}')
    a('s_waitcnt lgkmcnt(0)')
    a('s_barrier')
    def rd(c): return f'ds_read_b128 {vr(AF(c))}, v{L16} offset:{LDS_MEM + 1024*c}'
    def M(c, n): return [smf(ACC[t], AF(c), wreg(t, c)) for t in range(n)]
    def dl(c): return f'buffer_load_dwordx4 {vr(AF(c))}, v{L16}, {srd}, s{sM2} offen offset:{(c-4)*1024} {LD}'
    ldb = f's_mov_b32 exec_hi, 0xffff\nbuffer_load_dwordx4 {vr(VX)}, v{L16}, {srd}, s{sM8} offen {LD}\ns_mov_b32 exec_hi, -1'
    chkb = f's_mov_b32 exec_hi, 0xffff\n{cmpu(VX)}\nds_write_b128 v{T1}, {vr(VX)}\ns_mov_b32 exec_hi, -1'
    for c in range(3 if F4 else 4): a(rd(c))
    P('barA')
    bp = OPT['bp']
    seq = []
    for c in range(4):
        seq.append(f's_waitcnt lgkmcnt({2 if (F4 and c == 0) else 3-c})')
        for x in M(c, 6): seq.append(x)
    if not OPT['dir']:
        k = 0
        orx = f's_or_b64 vcc, vcc, s[{sX}:{sX+1}]'
        for x in seq:
            a(x)
            if x.startswith('v_smfmac'):
                if F4 and k == 2: a('s_waitcnt vmcnt(0)'); a(rd(3))
                if k == bp: a(dl(4))
                if k == bp+1: a(ldb)
                if k == max(bp+2, 6): a(dl(5))
                if k == 21: a('s_waitcnt vmcnt(2)'); a(cmpu(AF(4)))
                if OPT['qs'] and k in (5, 11, 17): P(f'c{k//6}')
                k += 1
        a(br(f'{tag}_rt2'))
        ool.append(f'{tag}_rt2:\n' + cnt(3) + tmo(f'{tag}_ok2') + dl(4) + '\n' + ldb + '\n' + dl(5) + '\ns_waitcnt vmcnt(2)\n' + cmpu(AF(4)) + '\n' + br(f'{tag}_rt2') + f'\ns_branch {tag}_ok2')
        a(f'{tag}_ok2:')
        if OPT['qs']: P('c3')
        m = M(4, 4)
        a(m[0]); a('s_waitcnt vmcnt(1)'); a(chkb); a(m[1]); a('s_waitcnt vmcnt(0)'); a(f'v_cmp_u_f32 s[{sX}:{sX+1}], v{AF(5)}, v{AF(5)+2}'); a(m[2])
        a(m[3]); a(orx); a(br(f'{tag}_rt1'))
        ool.append(f'{tag}_rt1:\n' + cnt(2) + tmo(f'{tag}_ok1') + ldb + '\n' + dl(5) + '\ns_waitcnt vmcnt(0)\n' + chkb + f'\nv_cmp_u_f32 s[{sX}:{sX+1}], v{AF(5)}, v{AF(5)+2}\ns_nop 1\n'
                   + orx + '\n' + br(f'{tag}_rt1') + f'\ns_branch {tag}_ok1')
        a(f'{tag}_ok1:')
        a(f's_bitcmp1_b64 s[{sFM}:{sFM+1}], s{sSTEP}')
        a('s_waitcnt lgkmcnt(0)')
        a('s_barrier')
        if OPT['qs']: P('barB')
        a(rd(6)); a(rd(7)); a(rd(8))
    else:
        def dd(c): return f'buffer_load_dwordx4 {vr(AF(c))}, v{L16}, {srd}, s{sM2 if c < 8 else sM8} offen offset:{((c-4)%4)*1024} {LD}'
        k = 0
        when = {bp: 4, max(bp+1, 6): 5, 12: 6, 18: 7}
        for x in seq:
            a(x)
            if x.startswith('v_smfmac'):
                if k in when: a(dd(when[k]))
                if k == 21: a('s_waitcnt vmcnt(3)'); a(cmpu(AF(4)))
                if OPT['qs'] and k in (5, 11, 17): P(f'c{k//6}')
                k += 1
        def rt(n, hi):
            ool.append(f'{tag}_d{n}:\n' + cnt(2) + tmo(f'{tag}_dk{n}') + '\n'.join(dd(x) for x in range(n, hi+1)) + f'\ns_waitcnt vmcnt({hi-n})\n' + cmpu(AF(n)) + '\n' + br(f'{tag}_d{n}') + f'\ns_branch {tag}_dk{n}')
        a(br(f'{tag}_d4')); rt(4, 7); a(f'{tag}_dk4:')
        if OPT['qs']: P('c3')
        for c in range(4, 8):
            m = M(c, 4)
            a(m[0])
            if c == 4: a(dd(8))
            a(m[1]); a(f's_waitcnt vmcnt({8-c-1})'); a(cmpu(AF(c+1))); a(m[2]); a(m[3]); a(br(f'{tag}_d{c+1}')); rt(c+1, 8); a(f'{tag}_dk{c+1}:')
            if OPT['qs'] and c in (4, 5): P('x')
        a(f's_bitcmp1_b64 s[{sFM}:{sFM+1}], s{sSTEP}')
    a(f's_cbranch_scc0 {tag}_fl')
    a(f'{tag}_flok:')
    if OPT['ts']:
        a(f's_lshl_b32 s{sTO}, s{sH}, 2\ns_add_u32 s{sTO}, s{sTO}, s{sW}\ns_lshl_b32 s{sTO}, s{sTO}, 6\ns_add_u32 s{sTO}, s{sTO}, s{sSTEP}\ns_lshl_b32 s{sTO}, s{sTO}, 2\ns_add_u32 s{sTO}, s{sTO}, {WS_PROF+0x30000}')
        a(f'v_mov_b32 v{T0}, s{P.base+4}\ns_mov_b64 exec, 1\nbuffer_store_dword v{T0}, v{L16}, {srd}, s{sTO} offen\ns_mov_b64 exec, -1')
    ool.append(f'{tag}_fl:\n' + tmo(f'{tag}_flok') + f'v_lshrrev_b32 v{T0}, 2, v{L16}\nbuffer_load_dword v{FLG}, v{T0}, {srd}, s{sKVF} offen sc1\ns_waitcnt vmcnt(0)\n'
               f'v_cmp_eq_u32 s[{sFM}:{sFM+1}], v{TAGV}, v{FLG}\ns_nop 1\ns_bitcmp1_b64 s[{sFM}:{sFM+1}], s{sSTEP}\ns_cbranch_scc0 {tag}_fl\ns_branch {tag}_flok')
    assert not OPT['dir']
    late = []
    rops = [
        f'v_mov_b64 {vr(T0,2)}, -1\ns_mov_b32 exec_hi, 0\nbuffer_store_dwordx4 {vr(PUB)}, v{ORD}, {srd}, s{sOOB if OPT["nopub"] else sMH} offen sc1',
        f'buffer_store_dwordx2 {vr(T0,2)}, v{PBST}, {srd}, s{sMBO} offen {ST}\ns_mov_b32 exec_hi, -1\nv_lshlrev_b32 v{T1}, {OPT["rsh"]}, v{L16}',
        f'buffer_store_dword v{T0}, v{T1}, {srd}, s{sPBO} offen {ST}',
        f'buffer_store_dword v{T0}, v{T1}, {srd}, s{sPBO} offen offset:8 {ST}',
    ]
    m = M(5, 4)
    a(f's_cmp_eq_u64 s[{sFM}:{sFM+1}], -1')
    a(m[0])
    a(f's_cbranch_scc0 {tag}_fa')
    a(f'{tag}_fad:')
    ool.append(f'{tag}_fa:\nv_lshrrev_b32 v{T1}, 2, v{L16}\nbuffer_load_dword v{FLG}, v{T1}, {srd}, s{sKVF} offen sc1\ns_branch {tag}_fad')
    a(m[1]); a(f'buffer_load_dwordx4 {vr(VX)}, v{L16}, {srd}, s{sKV} offen offset:2048 sc1')
    a(m[2]); a(m[3]); a(f'buffer_load_dwordx4 {vr(VX+4)}, v{L16}, {srd}, s{sKV} offen offset:3072 sc1')
    if OPT['qs']: P('c5')
    m = M(6, 4)
    a('s_waitcnt lgkmcnt(2)')
    for k in range(4):
        a(m[k])
        a(rops[k])
    for c in range(7, 9):
        m = M(c, 4)
        a(f's_waitcnt lgkmcnt({8-c})')
        for k, x in enumerate(m):
            if c == 8 and k == 3: a(cvt(Q0, Q0, Q0+1))
            a(x)
    P('qk')
    vq = [(t, c) for c in (5, 6, 7, 4, 8) for t in (4, 5)]
    def vm(n=1):
        for _ in range(n):
            t, c = vq.pop(0); a(smf(ACC[t], AF(c), wreg(t, c)))
    a(cvt(Q0+1, Q0+2, Q0+3)); a(cvt(Q0+2, K0, K0+1)); a(cvt(Q0+3, K0+2, K0+3))
    a(cvt(Q1, Q1, Q1+1)); a(cvt(Q1+1, Q1+2, Q1+3))
    a(mfma(K0, Q0, SEL))
    a(cvt(Q1+2, K1, K1+1)); a(cvt(Q1+3, K1+2, K1+3))
    a(mfma(K1, Q1, SEL))
    U = Q0
    a(cvt(U, K0, K0+1)); a(cvt(U+1, K0+2, K0+3))
    vm(1)
    a(cvt(U+2, K1, K1+1)); a(cvt(U+3, K1+2, K1+3))
    TX0, TX1, TM = K0, Q1, K1
    a(f'v_add_u32 v{T0}, s{sSCW}, v{L16}')
    a(mfma(TX0, KX, U)); a(mfma(TX1, KX+4, U)); a(mfma(TM, U, U))
    if OPT['m1']: vm(1)
    if not OPT['qs']: P('S')
    for r in range(4):
        a(f'v_mov_b32_dpp v{TX0+r}, v{TX1+r} row_ror:8 row_mask:0xf bank_mask:0xc')
    a(f'ds_write_b128 v{T0}, {vr(TX0)} offset:{LDS_SC}')
    a(f's_mov_b64 exec, s[66:67]')
    a(f'ds_write_b128 v{MW}, {vr(TM)} offset:{LDS_SC}')
    a(f's_mov_b64 exec, -1')
    vm(1)
    a(f'buffer_load_dwordx4 {vr(KX)}, v{L16}, {srd}, s{sTMP} offen sc1')
    vm(1)
    a(f'buffer_load_dwordx4 {vr(KX+4)}, v{L16}, {srd}, s{sTMP} offen offset:1024 sc1')
    vm(2 if OPT['m1'] else 3)
    if not OPT['qs']: P('wr')
    a(f's_waitcnt lgkmcnt(0)')
    a('s_barrier')
    P('bar1')
    RD = AQ(0)
    a(f'ds_read_b128 {vr(RD)}, v{L16} offset:{LDS_SC}')
    a(f'ds_read_b128 {vr(RD+4)}, v{L16} offset:{LDS_SC+1280}')
    vm(1)
    a(f'ds_read_b128 {vr(RD+8)}, v{L16} offset:{LDS_SC+2560}')
    a(f'ds_read_b128 {vr(TX0)}, v{L16} offset:{LDS_SC+3840}')
    vm(1)
    MRD = Q1
    for w in range(4):
        a(f'ds_read_b64 {vr(MRD+2*w,2)}, v{MR} offset:{LDS_SC+1280*w}')
        if w == 1: vm(1)
    vm(1)
    assert not vq
    a('s_waitcnt lgkmcnt(6)')
    a(pkadd(RD, RD, RD+4)); a(pkadd(RD+2, RD+2, RD+6))
    a('s_waitcnt lgkmcnt(4)')
    a(pkadd(TX0, TX0, RD+8)); a(pkadd(TX0+2, TX0+2, RD+10))
    a('s_waitcnt lgkmcnt(0)')
    a(pkadd(MRD, MRD, MRD+2)); a(pkadd(MRD+4, MRD+4, MRD+6))
    SX = RD; SM = MRD
    a(pkadd(SX, SX, TX0)); a(pkadd(SX+2, SX+2, TX0+2)); a(pkadd(SM, SM, MRD+4))
    MX = T0
    a(f'v_max3_f32 v{MX}, v{SX}, v{SX+1}, v{SX+2}')
    a(f'v_max3_f32 v{MX}, v{MX}, v{SX+3}, v{SM}')
    a(f'v_max_f32 v{MX}, v{MX}, v{SM+1}')
    if OPT['es']: P.k += 1; P.names.append('adds')
    elif not OPT['qs']: P('adds')
    def woread(i, buf): a(f'ds_read_b128 {vr(buf)}, v{WOA} offset:{i*1024}')
    WB = [K1, AQ(1), AQ(2), VX, VX+4, VA0, VA1]
    woread(1, WB[1]); woread(2, WB[2])
    a(f'v_max_f32_dpp v{MX}, v{MX}, v{MX} row_ror:8 row_mask:0xf bank_mask:0xf')
    a(f'v_mov_b32 v{T1}, v{MX}')
    VM = U
    a(cvt(VM, VA0, VA0+1)); a(cvt(VM+1, VA0+2, VA0+3))
    a(f'v_permlane16_swap_b32 v{MX}, v{T1}')
    a(f'v_max_f32 v{MX}, v{MX}, v{T1}')
    a(f'v_mov_b32 v{T1}, v{MX}')
    a(cvt(VM+2, VA1+2, VA1+3)); a(cvt(VM+3, VA1, VA1+1))
    a(f'v_permlane32_swap_b32 v{MX}, v{T1}')
    a(f'v_max_f32 v{MX}, v{MX}, v{T1}')
    a(f'v_mul_f32 v{MX}, s{sC}, v{MX}')
    for r in (SX, SX+2, SM):
        a(f'v_pk_fma_f32 {vr(r,2)}, {vr(r,2)}, s[{sC}:{sC+1}], {vr(MX,2)} op_sel_hi:[1,1,0] neg_lo:[0,0,1] neg_hi:[0,0,1]')
    for r in [SX, SX+1, SX+2, SX+3, SM, SM+1]: a(f'v_exp_f32 v{r}, v{r}')
    a('s_waitcnt vmcnt(6)')
    a(f'v_swap_b32 v{VX+4}, v{VX+6}')
    PR = TX0; PM = K1; VM = U
    a(cvt(PR, SX, SX+1)); a(cvt(PR+1, SX+2, SX+3)); a(cvt(PM, SM, SM+1))
    a(f'v_mov_b32_dpp v{PR+2}, v{PR} row_ror:8 row_mask:0xf bank_mask:0xf')
    a(f'v_mov_b32_dpp v{PR+3}, v{PR+1} row_ror:8 row_mask:0xf bank_mask:0xf')
    a(f'v_mov_b32_dpp v{PM+1}, v{PM} row_ror:8 row_mask:0xf bank_mask:0xf')
    a(f'v_swap_b32 v{VX+5}, v{VX+7}')
    if OPT['es']: P.k += 1; P.names.append('smax')
    elif not OPT['qs']: P('smax')
    PD = [AQ(3), AQ(4)]
    SUM = T0
    a(mfma(PD[0], VX, PR))
    a(f'v_add_f32 v{T1}, v{SM}, v{SM+1}')
    a(pkadd(SX, SX, SX+2))
    a(mfma(PD[1], VX+4, PR))
    a(f'v_add_f32 v{SUM}, v{SX}, v{SX+1}')
    a(f'v_fmac_f32 v{SUM}, 0.5, v{T1}')
    a(f'v_mfma_f32_16x16x16_bf16 {vr(PD[0])}, {vr(VM,2)}, {vr(PM,2)}, {vr(PD[0])}')
    a(f'v_add_f32_dpp v{SUM}, v{SUM}, v{SUM} row_ror:8 row_mask:0xf bank_mask:0xf')
    a(f'v_mfma_f32_16x16x16_bf16 {vr(PD[1])}, {vr(VM+2,2)}, {vr(PM,2)}, {vr(PD[1])}')
    a(f'v_mov_b32 v{T1}, v{SUM}')
    woread(0, WB[0]); woread(3, WB[3])
    a(f'v_permlane16_swap_b32 v{SUM}, v{T1}')
    a(f'v_add_f32 v{SUM}, v{SUM}, v{T1}')
    a(f'v_mov_b32 v{T1}, v{SUM}')
    for r in range(2): a(f'v_mov_b32_dpp v{PD[0]+r}, v{PD[1]+r} quad_perm:[0,1,2,3] row_mask:0xf bank_mask:0xc')
    a(f'v_permlane32_swap_b32 v{SUM}, v{T1}')
    a(f'v_add_f32 v{SUM}, v{SUM}, v{T1}')
    a(f'v_rcp_f32 v{SUM}, v{SUM}')
    for r in range(2,4): a(f'v_mov_b32_dpp v{PD[0]+r}, v{PD[1]+r} quad_perm:[0,1,2,3] row_mask:0xf bank_mask:0xc')
    O = PD[0]
    for r in (0, 2): a(f'v_pk_mul_f32 {vr(O+r,2)}, {vr(O+r,2)}, {vr(SUM,2)} op_sel_hi:[1,0]')
    a(cvt(O, O, O+1)); a(cvt(O+1, O+2, O+3))
    a(f'ds_write_b64 v{OW}, {vr(O,2)}')
    if OPT['es']: P.k += 1; P.names.append('pv')
    else: P('pv')
    for i in range(4, 7): woread(i, WB[i])
    wrap = 0xfffcffff
    a(f"""
    s_add_u32 s{sM1}, s{sM1}, {MB_STRIDE}
    s_and_b32 s{sM1}, s{sM1}, {wrap}
    s_add_u32 s{sM8}, s{sM8}, {MB_STRIDE}
    s_and_b32 s{sM8}, s{sM8}, {wrap}
    s_add_u32 s{sM2}, s{sM2}, {MB_STRIDE}
    s_and_b32 s{sM2}, s{sM2}, {wrap}
    s_add_u32 s{sMBO}, s{sMBO}, {MB_STRIDE}
    s_and_b32 s{sMBO}, s{sMBO}, {wrap}
    """)
    a('s_waitcnt lgkmcnt(3)')
    a('s_barrier')
    if not OPT['qs']: P('bar2')
    if prof:
        a(f's_cmp_lg_u32 s{sSTEP}, 40\ns_cbranch_scc1 {tag}_nd')
        a(f's_lshl_b32 s{sTO}, s{sH}, 2\ns_add_u32 s{sTO}, s{sTO}, s{sW}\ns_lshl_b32 s{sTO}, s{sTO}, 7\ns_add_u32 s{sTO}, s{sTO}, {WS_PROF+0x20000}\ns_waitcnt lgkmcnt(0)\ns_mov_b64 exec, 1')
        for k in range(14): a(f'v_mov_b32 v{T0}, s{P.base+2*k}\nbuffer_store_dword v{T0}, v{L16}, {srd}, s{sTO} offen offset:{4*k}')
        a(f's_mov_b64 exec, -1\n{tag}_nd:')
    OA = [AQ(3), AQ(4), Q1, AQ(0)]
    for u in range(4): a(f'ds_read_b128 {vr(OA[u])}, v{ORD} offset:{u*512}')
    a(f"""
    s_add_u32 s{sMBW}, s{sMBW}, {MB_STRIDE}
    s_and_b32 s{sMBW}, s{sMBW}, {wrap}
    s_add_u32 s{sKV}, s{sKV}, {0 if OPT['kv0'] else KV_SEG}
    s_add_u32 s{sMH}, s{sMH}, {MH_STRIDE}
    s_xor_b32 s{sPBO}, s{sPBO}, {PB_STRIDE}
    s_cmp_eq_u32 s{sW}, 0
    """)
    a(f'v_add_u32 v{T0}, s{sXA}, v{L16}')
    NB = 7
    DD = [U, TX0]
    S2 = OA[0]; RDa = OA[3]
    own = lambda c: (WOA, c*4096, sPBW+c)
    X1 = (T0, 0, sPBX); X2 = (T1, 0, sPBX+1)
    T_W0 = [own(c) for c in range(6)]
    T_10 = [own(c) for c in range(7)] + [X1, own(7), own(8)]
    T_11 = T_10
    class St: pass
    st = St(); st.issued = NB; st.q = [4, 5, 6, 'o0', 'o1', 'o2', 'o3']
    def fork():
        n = St(); n.issued = st.issued; n.q = list(st.q); return n
    def need(S, ids):
        idx = max([S.q.index(x) for x in ids if x in S.q], default=-1)
        if idx >= 0:
            a(f's_waitcnt lgkmcnt({min(len(S.q)-1-idx, 15)})')
            del S.q[:idx+1]
    def post(T, c, k):
        d = DD[c % 2]
        if k == 0: a(cvt(d, d, d+1))
        if k == 1: a(cvt(d+1, d+2, d+3))
        if k == 2: a(f'buffer_store_dwordx2 {vr(d,2)}, v{PBST}, {srd}, s{T[c][2]} offen {ST}')
    def wread(S, T):
        i = S.issued; adr, imm, _ = T[i // 4]
        a(f'ds_read_b128 {vr(WB[i % NB])}, v{adr} offset:{imm + (i % 4)*1024}'); S.q.append(i); S.issued += 1
    s2b = {0: f'v_mov_b64 {vr(S2,2)}, 0\nv_mov_b64 {vr(S2+2,2)}, 0',
           1: f'v_mov_b32_dpp v{S2}, v{SEL2} quad_perm:[0,1,2,3] row_mask:0xf bank_mask:0x1',
           2: f'v_mov_b32_dpp v{S2+1}, v{SEL2+1} quad_perm:[0,1,2,3] row_mask:0xf bank_mask:0x1',
           3: f'v_mov_b32_dpp v{S2+2}, v{SEL2} quad_perm:[0,1,2,3] row_mask:0xf bank_mask:0x2\nv_mov_b32_dpp v{S2+3}, v{SEL2+1} quad_perm:[0,1,2,3] row_mask:0xf bank_mask:0x2'}
    def rload(R, i): return f'buffer_load_dwordx4 {vr(R[i])}, v{L16}, {srd}, s{sPBR} offen offset:{i*1024} {LD}'
    def slots(S, T, i0, i1, extra=None, red=False):
        N = 4*len(T)
        for i in range(i0, i1):
            c, u = divmod(i, 4)
            d = DD[c % 2]
            if c == 0: need(S, [f'o{u}'])
            elif u % 2 == 0: need(S, [i, i+1])
            a(mfma(d, WB[i % NB], OA[u], None if u == 0 else d))
            if S.issued < N and (c > 0 or not OPT['p0']): wread(S, T)
            if extra and i in extra: a(extra[i])
            if c >= (2 if OPT['p0'] else 1) and u >= 1: post(T, c-1, u-1)
            if red and c == len(T)-1: a(s2b[u])
        if i1 == N:
            for c in range(2): a(f's_xor_b32 s{sPBW+c}, s{sPBW+c}, {PB_STRIDE}')
            a(f's_cmp_eq_u32 s{sKIND}, 0')
            for k in range(3): post(T, len(T)-1, k)
    def zacc(o=None, lo=0, hi=12):
        for r in list(range(Q0, VA1+4, 2))[lo:hi]: a(f'v_mov_b64 {vr(r,2)}, 0')
    def xors(o=None):
        for c in range(2, 10): a(f's_xor_b32 s{sPBW+c}, s{sPBW+c}, {PB_STRIDE}')
    gwr = f'v_mov_b32 v{T0}, s{sSTEP}\nds_write_b32 v{L16}, v{T0} offset:{LDS_GATE}'
    def reduce(R, young, lbl, fail, gw=False):
        for i in range(4):
            a(f's_waitcnt vmcnt({young[i]})')
            a(mfma(RDa, S2, R[i], None if i == 0 else RDa))
        a('s_nop 6')
        a(f'{lbl}_c:')
        a(f'v_cmp_u_f32 vcc, v{RDa}, v{RDa}')
        for r in range(4): a(f'v_add_f32_dpp v{RDa+r}, v{RDa+r}, v{RDa+r} row_ror:8 row_mask:0xf bank_mask:0xf')
        a(cvt(PUB, RDa, RDa+1)); a(cvt(PUB+1, RDa+2, RDa+3))
        a(br(fail))
        a(f'{lbl}_ok:')
        a('s_mov_b32 exec_hi, 0')
        a(f'buffer_store_dwordx2 {vr(PUB,2)}, v{PBST}, {srd}, s{sMBW} offen {ST}')
        a('s_mov_b64 exec, -1')
        if gw: a(gwr)
        a(f's_xor_b32 s{sPBR}, s{sPBR}, {PB_STRIDE}')
        a(f's_cmp_eq_u32 s{sSTEP}, 63')
        a(f's_cbranch_scc1 {DONE}')
    def rl4(R): return '\n'.join(rload(R, i) for i in range(4))
    def plain_retry(R, lbl, okl, cl, site):
        ool.append(f'{lbl}:\n' + cnt(site) + tmo(okl) + rl4(R) + '\n' +
                   '\n'.join(f's_waitcnt vmcnt({3-i})\n' + mfma(RDa, S2, R[i], None if i == 0 else RDa) for i in range(4)) + f'\ns_nop 7\ns_branch {cl}')
    def gate(lbl):
        a(f'{lbl}:')
        a(f'ds_read_b32 v{T0}, v{L16} offset:{LDS_GATE}')
        a(tmo(f'{lbl}d'))
        a('s_waitcnt lgkmcnt(0)')
        a(f'v_cmp_ne_u32 vcc, s{sSTEP}, v{T0}')
        a(f's_cbranch_vccnz {lbl}')
        a(f'{lbl}d:')
    def PS(k):
        if prof: a(f's_memtime s[{P.base+2*k}:{P.base+2*k+1}]')
    def nops(n, why):
        n *= 8
        while n > 0:
            k = min(n, 16); a(f's_nop {k-1}   ; {why}'); n -= k
    kwo = P.k + (0 if OPT['qs'] else 1)
    R0 = [AQ(1), AQ(2), VX, VX+4]
    slots(st, T_11, 0, 4)
    if OPT['p0']:
        for _ in range(4): wread(st, T_11)
        for k in range(3): post(T_11, 0, k)
    if not OPT['qs']: P('wo0')
    slots(st, T_11, 4, 16)
    S0 = fork()
    a(f's_cbranch_scc1 {tag}_w0')
    slots(st, T_11, 16, 29)
    S3e = fork()
    a(f's_cmp_eq_u32 s{sKIND}, 1')
    a(f's_cbranch_scc1 {tag}_w3e')
    slots(st, T_11, 29, 40, red=True)
    PS(kwo)
    a(f's_cbranch_scc1 {tag}_k2')
    if not OPT['lz']: zacc()
    xors()
    if OPT['lg']: gate(f'{tag}_lgate')
    if OPT['lz']: zacc(lo=0, hi=OPT['lz'])
    for i in range(OPT['l0']): a('s_nop 7')
    a(rl4(R0))
    if OPT['lz']: zacc(lo=OPT['lz'])
    if OPT['ld']:
        if not OPT['lz']: a('s_sleep 1')
        a(f'{tag}_l2:')
        a(rl4(R0))
        reduce(R0, [7, 6, 5, 4], f'{tag}_rl', f'{tag}_lf')
        ool.append(f'{tag}_lf:\n' + cnt(5) + tmo(f'{tag}_rl_ok') + f's_branch {tag}_l2')
    else:
        reduce(R0, [3, 2, 1, 0], f'{tag}_rl', f'{tag}_lf')
        plain_retry(R0, f'{tag}_lf', f'{tag}_rl_ok', f'{tag}_rl_c', 5)
    PS(kwo+1); PS(0)
    a('s_waitcnt vmcnt(1)')
    a(f's_branch {tag}_ok0')
    a(f'{tag}_w0:')
    a('s_nop 1')
    slots(S0, T_W0, 16, 24, red=True)
    P('wo')
    nops(OPT['z0'], 'let the last partial stores land before the first poll')
    a(rl4(R0))
    nops(OPT['z1'], 'spacing between two overlapped poll rounds')
    a(f'{tag}_e2:')
    a(rl4(R0))
    reduce(R0, [7, 6, 5, 4], f'{tag}_re', f'{tag}_ef', gw=True)
    ool.append(f'{tag}_ef:\n' + cnt(1) + tmo(f'{tag}_re_ok') + f's_branch {tag}_e2')
    nops(OPT['z2'], 'let the publish stores land before the first poll')
    P('red')
    a(f's_branch {LOOP}')
    a(f'{tag}_k2:')
    a(f's_cmp_eq_u32 s{sSTEP}, 63')
    a(f's_cbranch_scc1 {tag}_end')
    if F4: a(f's_branch {tag}_w3z')
    a(f's_cmp_eq_u32 s{sW}, 3')
    a(f's_cbranch_scc1 {tag}_w3z')
    if OPT['fg']: gate(f'{tag}_gate')
    for i in range(OPT['g2']): a('s_nop 7')
    PS(kwo+1)
    a(f's_branch {LOOP}')
    a(f'{tag}_w3e:')
    R3 = [WB[i % NB] for i in range(33, 37)]
    slots(S3e, T_10, 29, 40, extra={33+i: rload(R3, i) for i in range(4)}, red=True)
    PS(kwo)
    reduce(R3, [6, 5, 4, 2], f'{tag}_r3', f'{tag}_3f')
    plain_retry(R3, f'{tag}_3f', f'{tag}_r3_ok', f'{tag}_r3_c', 4)
    a(f'{tag}_w3z:')
    zacc(); xors()
    PS(kwo+1); PS(0)
    a(f's_branch {tag}_ok0')
    for o in ool: a(o)
    a(f'{DONE}:')

def init_sgprs(a):
    srd = f's[{sWS}:{sWS+3}]'
    a(f'''
    s_mov_b32 s{sSTEP}, 0
    s_mov_b32 s{sRT}, 0
    s_mov_b32 s{sOOB}, 0x7f000000
    s_lshl_b32 s{sM1}, s{sW}, 10
    s_add_u32 s{sMW}, s{sM1}, {LDS_MEM}
    s_add_u32 s{sM1}, s{sM1}, {WS_MB+1024}
    s_mov_b32 s{sM2}, {WS_MB+1024+4096}
    s_mul_i32 s{sM8}, s{sW}, 768
    s_add_u32 s{sMW3}, s{sM8}, {LDS_MEM+6144}
    s_add_u32 s{sM8}, s{sM8}, {WS_MB+1024+6144}
    {'s_mov_b32 s%d, %d' % (sM8, WS_MB+1024+8192) if OPT['dir'] else ''}
    s_lshl_b32 s{sTMP}, s{sH}, 7
    s_lshl_b32 s{sTMP2}, s{sW}, 13
    s_add_u32 s{sPBW}, s{sTMP}, s{sTMP2}
    s_add_u32 s{sPBW}, s{sPBW}, {WS_PB}
    ''')
    for c in range(1, 9): a(f's_add_u32 s{sPBW+c}, s{sPBW}, {c*32768}')
    a(f'''
    s_lshl_b32 s{sTMP}, s{sH}, 2
    s_add_u32 s{sTMP}, s{sTMP}, s{sW}
    s_lshl_b32 s{sKV}, s{sTMP}, 12
    s_add_u32 s{sKV}, s{sKV}, {WS_KV}
    s_lshl_b32 s{sKVF}, s{sTMP}, 8
    s_add_u32 s{sKVF}, s{sKVF}, {WS_KVF}
    s_add_u32 s{sTMP}, s{sW}, 5
    s_lshl_b32 s{sXA}, s{sTMP}, 12
    s_add_u32 s{sXA}, s{sXA}, {LDS_WO}
    s_add_u32 s{sXA+1}, s{sXA}, {3*4096}
    s_lshl_b32 s{sPBX}, s{sTMP}, 15
    s_lshl_b32 s{sTMP2}, s{sH}, 7
    s_add_u32 s{sPBX}, s{sPBX}, s{sTMP2}
    s_add_u32 s{sPBX}, s{sPBX}, {WS_PB}
    s_add_u32 s{sPBX+1}, s{sPBX}, {3*32768}
    s_mov_b32 s{sKIND}, 0
    s_mov_b32 s{sTMP}, 72
    s_cmp_eq_u32 s{sW}, 0
    s_cselect_b32 s{sKIND}, 2, s{sKIND}
    s_cselect_b32 s{sTMP}, s{sH}, s{sTMP}
    s_add_u32 s{sTMP2}, s{sH}, 40
    s_cmp_eq_u32 s{sW}, 1
    s_cselect_b32 s{sKIND}, 2, s{sKIND}
    s_cselect_b32 s{sTMP}, s{sTMP2}, s{sTMP}
    s_add_u32 s{sTMP2}, s{sH}, 32
    s_cmp_eq_u32 s{sW}, 3
    s_cselect_b32 s{sTO}, s{sTMP2}, 99
    s_cmp_lt_u32 s{sTO}, 40
    s_cselect_b32 s{sKIND}, 1, s{sKIND}
    s_cselect_b32 s{sTMP}, s{sTO}, s{sTMP}
    s_lshl_b32 s{sPBR}, s{sTMP}, 12
    s_add_u32 s{sPBR}, s{sPBR}, {WS_PB}
    s_lshl_b32 s{sRED}, s{sTMP}, 7
    s_add_u32 s{sRED}, s{sRED}, 1024
    s_cmp_eq_u32 s{sKIND}, 0
    s_cselect_b32 s{sRED}, 0x7f000000, s{sRED}
    s_lshl_b32 s{sMH}, s{sTMP}, 8
    s_cmp_eq_u32 s{sKIND}, 0
    s_cselect_b32 s{sMH}, 0x7f000000, s{sMH}
    s_add_u32 s{sMH}, s{sMH}, {WS_MH - LDS_OB}
    s_add_u32 s{sMBO}, s{sRED}, {WS_MB+2*MB_STRIDE}
    s_add_u32 s{sMBW}, s{sRED}, {WS_MB}
    s_xor_b32 s{sPBO}, s{sPBR}, {PB_STRIDE}
    s_cmp_eq_u32 s{sKIND}, 0
    s_cselect_b32 s{sPBO}, 0x7f000000, s{sPBO}
    ''')

def gen_chain(a, prof=False):
    srd = SRD_WS
    sA, sB, sC3, sD = 72, 76, 80, 84
    sM0 = 88
    from qkv import pstamp
    a('R_chain:')
    pstamp(a, prof, 0, 76)
    make_srd(a, sA, KA_WQ, 576*8192); make_srd(a, sB, KA_WK, 576*8192); make_srd(a, sC3, KA_WV, 576*8192)
    make_srd(a, sD, KA_WO, 4096*1152); make_srd(a, sM0, KA_MEM0, 9216)
    a(f's_load_dwordx2 s[92:93], s[0:1], {KA_DBG}')
    TA = 44; TMPB = 20; WOV = 26
    a(f'''
    s_mov_b32 s{sW}, s{sWAVE}
    s_mov_b32 s{sH}, s{sRANK}
    s_mul_i32 s{sTMP2}, s{sW}, 36864
    s_add_u32 s94, s{sTMP2}, {LDS_WO}
    s_lshl_b32 s95, s{sH}, 8
    s_lshl_b32 s{sTMP}, s{sW}, 17
    s_add_u32 s95, s95, s{sTMP}             ; h*256 + w*16*8192
    s_mul_i32 s97, s{sH}, {128*1152}
    s_lshl_b32 s{sTMP}, s{sW}, 5
    s_add_u32 s97, s97, s{sTMP}             ; h*128*1152 + w*32
    v_and_b32 v28, 63, v0
    s_mov_b32 s{sTMP}, s{sH}
    s_cmp_eq_u32 s{sW}, 1
    s_cselect_b32 s{sTMP2}, 40, 0
    s_add_u32 s{sTMP}, s{sTMP}, s{sTMP2}
    s_cmp_eq_u32 s{sW}, 3
    s_cselect_b32 s{sTMP2}, 32, 0
    s_add_u32 s{sTMP}, s{sTMP}, s{sTMP2}
    s_lshl_b32 s{sTMP}, s{sTMP}, 4
    v_and_b32 v70, 7, v28
    v_mul_u32_u24 v70, 1152, v70
    v_bfe_u32 v71, v28, 4, 1
    v_lshl_add_u32 v70, v71, 3, v70
    s_waitcnt lgkmcnt(0)
    buffer_load_dwordx2 {vr(PUB,2)}, v70, s[{sM0}:{sM0+3}], s{sTMP} offen
    ''')
    def after_issue():
        if DBG.get('bare'): return 0
        a(f's_waitcnt vmcnt(36)\nv_add_u32 v{TAGV}, 1, v4')
        a(f'''
        v_lshrrev_b32 v29, 4, v28               ; g'
        v_bfe_u32 v30, v28, 2, 2                ; r4
        v_and_b32 v31, 3, v28                   ; c4
        v_and_b32 v32, 1, v30                   ; r4&1
        v_lshrrev_b32 v33, 1, v30               ; r4>>1
        v_and_b32 v34, 1, v29                   ; g'&1
        v_lshl_add_u32 v35, v33, 3, v32
        v_lshl_add_u32 v35, v34, 2, v35         ; row16
        v_lshl_add_u32 v36, v34, 1, v32
        v_lshl_add_u32 v36, v33, 2, v36         ; swz
        s_lshl_b32 s{sTMP}, s{sW}, 1
        v_xor_b32 v36, s{sTMP}, v36
        v_lshlrev_b32 v35, 8, v35
        v_lshl_add_u32 v35, v36, 5, v35
        v_lshl_add_u32 v35, v31, 3, v35
        v_lshrrev_b32 v37, 1, v29
        v_mul_u32_u24 v37, 36864, v37
        v_add_u32 v35, v35, v37
        v_add_u32 v{TA}, {LDS_WO}, v35
        v_xor_b32 v{TA+1}, 32, v{TA}
        v_add_u32 v{TA+2}, {2*36864}, v{TA}
        v_add_u32 v{TA+3}, {2*36864}, v{TA+1}
        v_lshrrev_b32 v{WOV}, 1, v28
        v_mul_u32_u24 v{WOV}, 1152, v{WOV}
        v_and_b32 v38, 1, v28
        v_lshl_add_u32 v{WOV}, v38, 4, v{WOV}
        v_lshrrev_b32 v39, 2, v28
        v_lshlrev_b32 v39, 5, v39
        v_lshl_add_u32 v39, v31, 3, v39
        v_add_u32 v39, s94, v39
        ''')
        consts(a)
        init_sgprs(a)
        return 0
    def reads(m, c):
        out = []
        for t in range(2):
            tile = [0, 1, 4][m] + ([0, 2][t] if m < 2 else t)
            w = wreg(tile, c)
            k, lo = w[0], int(w[2:w.index(':')])
            for hb2 in range(2):
                for rh in range(2):
                    r = lo + 4*hb2 + 2*rh
                    out.append(f'ds_read_b64_tr_b16 {k}[{r}:{r+1}], v{TA+2*hb2+t} offset:{c*4096 + rh*512}')
        return out
    def wo_dma(c):
        if DBG.get('nowo'): return []
        return [f's_add_u32 s96, s97, {c*128 + j*32*1152}\ns_add_u32 m0, s94, {c*4096 + j*1024}\n'
                f'buffer_load_dwordx4 v{WOV}, s[{sD}:{sD+3}], s96 offen lds' for j in range(4)]
    pstamp(a, prof, 1, 76)
    def pr(m, c):
        n = 0
        if c == 8 and prof and not DBG.get('nops'): pstamp(a, prof, 2+m, 76); n += 1
        return n
    cnt = stage_weights(a, 'C', [f's[{x}:{x+3}]' for x in (sA, sB, sC3)], reads, 'chain', LDS_WO, TMPB, [95, 96, 94],
                        extra_dma=wo_dma, after_issue=after_issue, post_read=pr)
    if DBG.get('bare'):
        a('s_waitcnt vmcnt(0)'); pstamp(a, prof, 5, 76); a('s_endpgm')
        a('F_ok0:\nF_end:\ns_endpgm'); return
    a(f'''
    v_mov_b32 v{T0}, 64
    v_lshrrev_b32 v{T1}, 2, v{L16}
    global_load_dword v76, v{T0}, s[92:93] sc1
    buffer_load_dword v{FLG}, v{T1}, {srd}, s{sKVF} offen sc1
    v_lshlrev_b32 v77, 2, v{L16}
    buffer_load_dword v72, v77, {srd}, s{sPBO} offen sc1
    s_xor_b32 s{sTMP}, s{sPBO}, {PB_STRIDE}
    buffer_load_dword v72, v77, {srd}, s{sTMP} offen sc1
    s_mov_b32 exec_hi, 0
    ''')
    for k in range(1, 4):
        a(f's_add_u32 s{sTMP}, s{sRED}, {WS_MB + k*MB_STRIDE}')
        a(f'buffer_load_dwordx2 v[72:73], v{PBST}, {srd}, s{sTMP} offen sc1')
    a('s_mov_b32 exec_hi, -1')
    cnt[-1] += 7
    for c in range(9):
        a(f's_waitcnt vmcnt({sum(cnt[27+c+1:]) + (7 if c == 8 else 0)})')
        b = 40 + 16*(c % 2)
        for u in range(4):
            for rh in range(2):
                a(f'ds_read_b64_tr_b16 v[{b+4*u+2*rh}:{b+4*u+2*rh+1}], v39 offset:{c*4096 + u*1024 + rh*512}')
        a('s_waitcnt lgkmcnt(0)')
        for u in range(4):
            a(f'ds_write_b128 v{WOA}, {vr(b+4*u)} offset:{(4*c+u)*1024}')
    if OPT['noqkv']:
        a('s_waitcnt vmcnt(0)'); pstamp(a, prof, 5, 76); a('s_endpgm')
    a(f'''
    s_waitcnt vmcnt(0)
    s_branch C_wi2
C_wi:
    global_load_dword v76, v{T0}, s[92:93] sc1
    buffer_load_dword v{FLG}, v{T1}, {srd}, s{sKVF} offen sc1
    s_waitcnt vmcnt(0)
C_wi2:
    v_readfirstlane_b32 s{sTMP}, v76
    v_cmp_eq_u32 s[{sFM}:{sFM+1}], v{TAGV}, v{FLG}
    s_add_u32 s{sRT}, s{sRT}, 1
    s_cmp_gt_u32 s{sRT}, 0x100000
    s_cbranch_scc1 C_wfd
    s_cmp_lt_u32 s{sTMP}, 45
    s_cbranch_scc1 C_wi
    s_bitcmp1_b64 s[{sFM}:{sFM+1}], 0
    s_cbranch_scc0 C_wi
C_wfd:
    s_waitcnt lgkmcnt(0)
    buffer_load_dwordx4 {vr(KX)}, v{L16}, {srd}, s{sKV} offen sc1
    buffer_load_dwordx4 {vr(KX+4)}, v{L16}, {srd}, s{sKV} offen offset:1024 sc1
    ''')
    pstamp(a, prof, 5, 76)
    if OPT['noqkv']: a('s_endpgm')
    for r in range(Q0, VA1+4, 2): a(f'v_mov_b64 {vr(r,2)}, 0')
    if prof:
        for i in range(8): a(f's_mov_b32 s{sPROF+i}, 0')
        a('s_memrealtime s[28:29]\ns_memtime s[32:33]')
    a(f's_cmp_lg_u32 s{sW}, 0\ns_cbranch_scc1 F_ok0' if OPT['f4'] else f's_bitcmp1_b32 s{sW}, 0\ns_cbranch_scc1 F_ok0')
    for c in range(2, 10): a(f's_xor_b32 s{sPBW+c}, s{sPBW+c}, {PB_STRIDE}')
    gen_step(a, '', 'sc1', prof, 'F')
    a(f'''
    s_mov_b32 exec_hi, 0
    buffer_store_dwordx4 {vr(PUB)}, v{ORD}, {srd}, s{sMH} offen sc1
    s_mov_b64 exec, -1
F_end:
    ''')
    if prof:
        a(f'''
        s_memrealtime s[30:31]
        s_memtime s[74:75]
        s_waitcnt lgkmcnt(0)
        s_sub_u32 s74, s74, s32
        s_lshl_b32 s{sTMP}, s{sH}, 2
        s_add_u32 s{sTMP}, s{sTMP}, s{sW}
        s_lshl_b32 s{sTMP}, s{sTMP}, 7
        s_add_u32 s{sTMP}, s{sTMP}, {WS_PROF}
        v_mov_b32 v1, 0
        ''')
        regs = [sPROF+i for i in range(8)] + [sPROF]*4 + [70, 28, 30, sRT] + [74+2*i for i in range(14)]
        for i, r in enumerate(regs):
            a(f'v_mov_b32 v2, s{r}\nbuffer_store_dword v2, v1, {srd}, s{sTMP} offen offset:{4*i}')
    a('s_endpgm')
```

```python
import sys
from common import *
import chain, qkv, fft, oproj
NAME = 'concat_heads__spectral_gfnet__memory_aug_recurrent_mem_tr__prompt_kernel'
def gen(prof=False, name=NAME):
    a = Asm()
    a('; @launch grid=(256,1,1) block=(256,1,1) lds=163840')
    a('.amdgcn_target "amdgcn-amd-amdhsa--gfx950"\n.text')
    a(kernel_header(name))
    a(f'''
    s_load_dwordx2 s[12:13], s[0:1], {KA_DBG}
    s_load_dwordx2 s[{sWS}:{sWS+1}], s[0:1], {KA_WS}
    s_getreg_b32 s{sXCC}, hwreg(HW_REG_XCC_ID)
    s_mov_b32 s{sWS+2}, {WS_SIZE}
    s_mov_b32 s{sWS+3}, 0x00020000
    ''')
    if prof: a('s_memrealtime s[70:71]')
    a(f'''
    s_and_b32 s{sXCC}, s{sXCC}, 7
    v_lshrrev_b32 v2, 6, v0
    v_mov_b32 v5, {WS_EPOCH}
    s_waitcnt lgkmcnt(0)
    v_readfirstlane_b32 s{sWAVE}, v2
    v_cmp_eq_u32 vcc, 0, v0
    s_and_saveexec_b64 s[14:15], vcc
    s_cbranch_execz L_skip
    s_lshl_b32 s16, s{sXCC}, 2
    s_cmp_eq_u32 s{sXCC}, 0
    s_cselect_b32 s16, 192, s16
    v_mov_b32 v1, s16
    v_mov_b32 v2, 1
    global_atomic_add v3, v1, v2, s[12:13] sc0
    v_mov_b32 v1, 0
    s_waitcnt vmcnt(0)
    ds_write_b32 v1, v3
    s_waitcnt lgkmcnt(0)
L_skip:
    s_mov_b64 exec, s[14:15]
    buffer_load_dword v4, v5, {SRD_WS}, 0 offen sc1
    s_barrier
    v_mov_b32 v1, 0
    ds_read_b32 v3, v1
    s_waitcnt lgkmcnt(0)
    v_readfirstlane_b32 s{sRANK}, v3
    s_barrier
    s_cmp_ge_u32 s{sRANK}, 32
    s_cbranch_scc1 L_exit
    s_getpc_b64 s[16:17]
L_pc:
    s_lshl_b32 s18, s{sRANK}, 12
    v_lshlrev_b32 v1, 4, v0
    v_add_u32 v1, s18, v1
    v_cmp_gt_u32 vcc, L_code_end - L_pc - 16, v1
    s_and_saveexec_b64 s[14:15], vcc
    s_cbranch_execz L_nopf
    global_load_dwordx4 v[60:63], v1, s[16:17]
L_nopf:
    s_mov_b64 exec, s[14:15]
    s_cmp_eq_u32 s{sXCC}, 0
    s_cbranch_scc1 R_chain
    s_waitcnt vmcnt(0)
    v_readfirstlane_b32 s{sTAG}, v4
    s_add_u32 s{sTAG}, s{sTAG}, 1
    ''')
    if chain.OPT['pf'] == 2:
        for i, k in enumerate((KA_WQ, KA_WK, KA_WV, KA_WO)): make_srd(a, 44+4*i, k, 576*8192)
        a(f'''
        s_sub_u32 s16, s{sXCC}, 1
        s_lshl_b32 s16, s16, 5
        s_add_u32 s16, s16, s{sRANK}
        s_lshl_b32 s16, s16, 2
        s_add_u32 s16, s16, s{sWAVE}
        s_mul_i32 s16, s16, 5376
        s_add_u32 s17, s16, 4096
        v_and_b32 v1, 63, v0
        v_lshlrev_b32 v1, 4, v1
        s_waitcnt lgkmcnt(0)
        ''')
        for i in chain.OPT['pfm']:
            for j in range(6):
                if j == 5: a('s_mov_b64 exec, 0xffff')
                a(f'buffer_load_dwordx4 v[60:63], v1, s[{44+4*i}:{47+4*i}], s{16 + j//4} offen offset:{(j%4)*1024}')
            a('s_mov_b64 exec, -1')
    a(f'''
    s_cmp_le_u32 s{sXCC}, 4
    s_cbranch_scc1 {'L_exit' if chain.OPT['noqkv'] else 'R_qkv'}
    s_branch {'L_exit' if chain.OPT['nofft'] else 'R_fft'}
L_exit:
    s_endpgm
    ''')
    qkv.gen_qkv(a, 'L_exit', prof)
    chain.gen_chain(a, prof)
    fft.gen_fft(a, prof)
    oproj.gen_oproj(a, prof)
    a('L_code_end:')
    a('.section .rodata,"a"')
    txt = a.render() + kernel_desc(name)
    for p in a.branch_check(): print('HAZ', p)
    if chain.OPT['al']:
        import align
        txt, n, tot = align.align(txt, 'F_loop', 'F_done', wo=chain.OPT['alw'], ws=chain.OPT['als'])
        print('aligned', n, tot)
    return txt
if __name__ == '__main__':
    def out(n, prof, **kw):
        DBG.clear(); DBG.update(kw)
        old = dict(chain.OPT); chain.OPT.update(kw)
        open(f'mb/{n}.s', 'w').write(gen(prof, 'full_kernel')); chain.OPT.update(old)
    out('full', False); out('full_prof', True)
    hdr = ''.join(l for l in open('cdna_kernels/' + NAME[:-7] + '.s.ref') if l.startswith(';') and '@launch' not in l)
    open('cdna_kernels/' + NAME[:-7] + '.s', 'w').write(hdr + gen(False))
    for a in sys.argv[1:]:
        n, kw = a.split(':', 1); out(n, True, **eval(f'dict({kw})'))
```

```python
from common import *
import layouts as L

LDS_SC  = 0
LDS_OB  = 5120
LDS_GATE = 0
LDS_MEM = 7168
LDS_DUMMY = 5120
LDS_WO  = 16384

L16, PBST, SEL2, SEL2b, MW, MR, OW, WOA, IDX, ORD, T0, T1 = range(12)
SEL, PUB, TAGV, FLG = 12, 16, 18, 19
Q0, K0, Q1, K1, VA0, VA1 = 20, 24, 28, 32, 36, 40
KX, VX = 44, 52
def AQ(i): return 60 + 4*i
def AF(c): return AQ(c % 5)

def wreg(tile, c):
    idx = tile*9 + c
    if idx < 32: return f'a[{8*idx}:{8*idx+7}]'
    b = 80 + 8*(idx-32)
    return f'v[{b}:{b+7}]'
ACC = [Q0, K0, Q1, K1, VA0, VA1]

sW, sH, sSTEP, sTMP, sTMP2, sTO = 12, 13, 14, 15, 16, 17
sMBRD, sMBWR, sMBNX = 18, 19, 20
sPBR = 22
sKV, sMH = 23, 25
sRED = 26
sMLO, sMHI = 28, 30
sMG = 32
sMG2 = 30
sC = 34
sRT = 37
sMW = 38
sMB4, sMB8 = 39, 21
sPROF = 44
sPBW = 52

def smf(acc, a, b): return f'v_smfmac_f32_16x16x64_bf16 {vr(acc)}, {vr(a)}, {b}, v{IDX}'
mfma = mfma16

def consts(a):
    C, G, G1, X, Y, Z = AF(0), AF(0)+1, AF(0)+2, AF(0)+3, AF(1), AF(1)+1
    a(f'''
    v_and_b32 v{X}, 63, v0
    v_lshlrev_b32 v{L16}, 4, v{X}
    v_and_b32 v{C}, 15, v{X}              ; c
    v_lshrrev_b32 v{G}, 4, v{X}           ; g
    v_and_b32 v{G1}, 1, v{G}              ; g&1
    v_lshrrev_b32 v{PBST}, 1, v{G}
    v_lshlrev_b32 v{PBST}, 12, v{PBST}
    v_lshl_add_u32 v{PBST}, v{G1}, 3, v{PBST}
    v_lshl_add_u32 v{PBST}, v{C}, 4, v{PBST}
    v_mov_b32 v{Y}, {OOB}
    v_cmp_gt_u32 vcc, 8, v{C}
    v_cndmask_b32 v{PBST}, v{Y}, v{PBST}, vcc
    v_and_b32 v{Z}, 7, v{C}
    v_lshlrev_b32 v{Z}, 4, v{Z}
    v_lshrrev_b32 v{T0}, 3, v{C}           ; hb
    v_lshl_add_u32 v{MR}, v{T0}, 3, v{Z}       ; (c&7)*16 + hb*8
    v_lshl_add_u32 v{ORD}, v{G}, 7, v{Z}
    v_add_u32 v{ORD}, {LDS_OB}, v{ORD}
    v_lshl_add_u32 v{OW}, v{G}, 7, v{MR}
    s_lshl_b32 s{sTMP}, s{sW}, 9
    s_add_u32 s{sTMP}, s{sTMP}, {LDS_OB}
    v_add_u32 v{OW}, s{sTMP}, v{OW}
    v_lshl_add_u32 v{MR}, v{G1}, 7, v{MR}
    v_add_u32 v{MR}, 1024, v{MR}
    s_mul_i32 s{sTMP}, s{sW}, 1280
    s_mov_b32 s{sSCW}, s{sTMP}
    v_lshlrev_b32 v{MW}, 7, v{G1}
    v_lshl_add_u32 v{MW}, v{C}, 4, v{MW}
    v_add_u32 v{MW}, s{sTMP}, v{MW}
    v_add_u32 v{MW}, 1024, v{MW}
    s_mul_i32 s{sTMP}, s{sW}, 36864
    s_add_u32 s{sTMP}, s{sTMP}, {LDS_WO}
    v_add_u32 v{WOA}, s{sTMP}, v{L16}
    s_mov_b32 s{sMG2}, -1
    s_mov_b32 s{sMG2+1}, 0
    s_mov_b32 s66, 0
    s_mov_b32 s67, 0x00ff00ff
    s_mov_b32 s{sC}, 0x3e0293ee            ; 128^-0.5 * log2(e) = 0.12751743
    s_mov_b32 s{sC+1}, 0x3e0293ee
    ''')
    a(f'''
    v_and_b32 v{SEL}, 7, v{C}
    v_lshlrev_b32 v{SEL+1}, 2, v{G1}
    v_sub_u32 v{SEL}, v{SEL}, v{SEL+1}
    v_lshrrev_b32 v{SEL+1}, 3, v{C}
    v_lshlrev_b32 v{SEL+1}, 2, v{SEL+1}
    v_cmp_gt_u32 vcc, 4, v{SEL}
    v_add_u32 v{SEL}, v{SEL}, v{SEL+1}
    v_cndmask_b32 v{T1}, 15, v{SEL}, vcc
    ''')
    def onehot(base, ereg, n=4):
        for i in range(n):
            a(f'''
            v_mov_b32 v{base+i}, 0
            v_mov_b32 v{Y}, 0x3f80
            v_cmp_eq_u32 vcc, {2*i}, v{ereg}
            v_cndmask_b32 v{base+i}, v{base+i}, v{Y}, vcc
            v_mov_b32 v{Y}, 0x3f800000
            v_cmp_eq_u32 vcc, {2*i+1}, v{ereg}
            v_cndmask_b32 v{base+i}, v{base+i}, v{Y}, vcc
            ''')
    onehot(SEL, T1)
    a(f'v_and_b32 v{T1}, 3, v{C}')
    onehot(SEL2, T1, 2)
    a(f'''
    v_mov_b32 v{IDX}, 0x4444
    v_mov_b32 v{Y}, 0xeeee
    v_cmp_gt_u32 vcc, 8, v{C}
    v_cndmask_b32 v{IDX}, v{Y}, v{IDX}, vcc
    ''')

OPT = dict(fake=0, alw=0.4, als=0.0, al=1, m1=0, f4=0, pfm=(0,1,2,3), p0=0, lz=6, fdelay=0, dir=0, bp=3, lg=1, fg=1, z0=0, z1=3, z2=0, ld=2, l0=0, e2=1, sb=1, ts=0, fs=0, pf=1, noqkv=0, qorder=(0,1,2), kv0=0, nofl=0, f3gap=3, l2pos=0, rsh=2, elate=0, NQ1=72, q2gap=2, noattn=0, nofft=0, es=0, nopub=0, gate=1, g1=1, g2=0, ez=6, qz=12, qgap=0, ers=5, qs=0, NM=48, egap=2, mgap=4, lgap=1, nocheck=0)
sVW = 19
sOOB = 68
sKIND, sPBO, sMBO = 27, 36, 65
sPBX = sPBW + 9
sXA = 19
sKVF, sFM = 69, 2
sSCW = 64
sM1, sM2, sM8 = 18, 39, 21
sX = 40
sMW2, sMW3 = 42, 43
sMBW = 24
def gen_step(a, ST, LD, prof, tag):
    srd = SRD_WS
    P = Stamps(a, prof)
    ool = []
    LOOP = f'{tag}_loop'; DONE = f'{tag}_done'
    A4 = AQ(4)
    def cnt(i): return f's_add_u32 s{sPROF+i}, s{sPROF+i}, 1\n' if prof else ''
    def tmo(ok): return f's_add_u32 s{sRT}, s{sRT}, 1\ns_cmp_gt_u32 s{sRT}, 0x100000\ns_cbranch_scc1 {ok}\n'
    def br(lbl): return f's_cbranch_vccnz {lbl}' if not OPT['nocheck'] else 's_nop 0'
    def ld(so): return f'buffer_load_dwordx4 {vr(A4)}, v{L16}, {srd}, s{so} offen {LD}'
    def cmpu(r): return f'v_cmp_u_f32 vcc, v{r}, v{r+2}'
    AD3 = T0
    F4 = OPT['f4']
    LQ = [VX, VX+4, A4, AQ(3)] if F4 else [VX, VX+4]
    lda = '\n'.join(f'buffer_load_dwordx4 {vr(q)}, v{L16}, {srd}, s{sM1} offen offset:{1024*i} {LD}' for i, q in enumerate(LQ))
    book = (f'v_cmp_eq_u32 s[{sFM}:{sFM+1}], v{TAGV}, v{FLG}\n'
            f's_add_u32 s{sTMP}, s{sKV}, {0 if OPT["kv0"] else KV_SEG}\ns_add_u32 s{sSTEP}, s{sSTEP}, 1')
    a(f'{LOOP}:')
    P('top')
    a(lda)
    a(f'v_add_u32 v{T1}, s{sMW}, v{L16}')
    for r in range(Q0, VA1+4, 2): a(f'v_mov_b64 {vr(r,2)}, 0')
    for c in range(2, 10): a(f's_xor_b32 s{sPBW+c}, s{sPBW+c}, {PB_STRIDE}')
    a(f'{tag}_la:')
    a(lda)
    n = len(LQ)
    for i, q in enumerate(LQ):
        a(f's_waitcnt vmcnt({2*n-1-i})')
        if i == 0: a(f'v_cmp_u_f32 s[{sX}:{sX+1}], v{q}, v{q+2}')
        else: a(cmpu(q))
        a(f'ds_write_b128 v{T1}, {vr(q)} offset:{1024*i}')
        if i > 0: a(f's_or_b64 ' + ('vcc' if i == n-1 else f's[{sX}:{sX+1}]') + f', vcc, s[{sX}:{sX+1}]')
    a(br(f'{tag}_rt0'))
    ool.append(f'{tag}_rt0:\n' + cnt(0) + tmo(f'{tag}_ok0') + f's_branch {tag}_la')
    a(f'{tag}_ok0:')
    P('mem0')
    a(book)
    a(f'v_add_u32 v{T1}, s{sMW3}, v{L16}')
    a('s_waitcnt lgkmcnt(0)')
    a('s_barrier')
    def rd(c): return f'ds_read_b128 {vr(AF(c))}, v{L16} offset:{LDS_MEM + 1024*c}'
    def M(c, n): return [smf(ACC[t], AF(c), wreg(t, c)) for t in range(n)]
    def dl(c): return f'buffer_load_dwordx4 {vr(AF(c))}, v{L16}, {srd}, s{sM2} offen offset:{(c-4)*1024} {LD}'
    ldb = f's_mov_b32 exec_hi, 0xffff\nbuffer_load_dwordx4 {vr(VX)}, v{L16}, {srd}, s{sM8} offen {LD}\ns_mov_b32 exec_hi, -1'
    chkb = f's_mov_b32 exec_hi, 0xffff\n{cmpu(VX)}\nds_write_b128 v{T1}, {vr(VX)}\ns_mov_b32 exec_hi, -1'
    for c in range(3 if F4 else 4): a(rd(c))
    P('barA')
    bp = OPT['bp']
    seq = []
    for c in range(4):
        seq.append(f's_waitcnt lgkmcnt({2 if (F4 and c == 0) else 3-c})')
        for x in M(c, 6): seq.append(x)
    if not OPT['dir']:
        k = 0
        orx = f's_or_b64 vcc, vcc, s[{sX}:{sX+1}]'
        for x in seq:
            a(x)
            if x.startswith('v_smfmac'):
                if F4 and k == 2: a('s_waitcnt vmcnt(0)'); a(rd(3))
                if k == bp: a(dl(4))
                if k == bp+1: a(ldb)
                if k == max(bp+2, 6): a(dl(5))
                if k == 21: a('s_waitcnt vmcnt(2)'); a(cmpu(AF(4)))
                if OPT['qs'] and k in (5, 11, 17): P(f'c{k//6}')
                k += 1
        a(br(f'{tag}_rt2'))
        ool.append(f'{tag}_rt2:\n' + cnt(3) + tmo(f'{tag}_ok2') + dl(4) + '\n' + ldb + '\n' + dl(5) + '\ns_waitcnt vmcnt(2)\n' + cmpu(AF(4)) + '\n' + br(f'{tag}_rt2') + f'\ns_branch {tag}_ok2')
        a(f'{tag}_ok2:')
        if OPT['qs']: P('c3')
        m = M(4, 4)
        a(m[0]); a('s_waitcnt vmcnt(1)'); a(chkb); a(m[1]); a('s_waitcnt vmcnt(0)'); a(f'v_cmp_u_f32 s[{sX}:{sX+1}], v{AF(5)}, v{AF(5)+2}'); a(m[2])
        a(m[3]); a(orx); a(br(f'{tag}_rt1'))
        ool.append(f'{tag}_rt1:\n' + cnt(2) + tmo(f'{tag}_ok1') + ldb + '\n' + dl(5) + '\ns_waitcnt vmcnt(0)\n' + chkb + f'\nv_cmp_u_f32 s[{sX}:{sX+1}], v{AF(5)}, v{AF(5)+2}\ns_nop 1\n'
                   + orx + '\n' + br(f'{tag}_rt1') + f'\ns_branch {tag}_ok1')
        a(f'{tag}_ok1:')
        a(f's_bitcmp1_b64 s[{sFM}:{sFM+1}], s{sSTEP}')
        a('s_waitcnt lgkmcnt(0)')
        a('s_barrier')
        if OPT['qs']: P('barB')
        a(rd(6)); a(rd(7)); a(rd(8))
    else:
        def dd(c): return f'buffer_load_dwordx4 {vr(AF(c))}, v{L16}, {srd}, s{sM2 if c < 8 else sM8} offen offset:{((c-4)%4)*1024} {LD}'
        k = 0
        when = {bp: 4, max(bp+1, 6): 5, 12: 6, 18: 7}
        for x in seq:
            a(x)
            if x.startswith('v_smfmac'):
                if k in when: a(dd(when[k]))
                if k == 21: a('s_waitcnt vmcnt(3)'); a(cmpu(AF(4)))
                if OPT['qs'] and k in (5, 11, 17): P(f'c{k//6}')
                k += 1
        def rt(n, hi):
            ool.append(f'{tag}_d{n}:\n' + cnt(2) + tmo(f'{tag}_dk{n}') + '\n'.join(dd(x) for x in range(n, hi+1)) + f'\ns_waitcnt vmcnt({hi-n})\n' + cmpu(AF(n)) + '\n' + br(f'{tag}_d{n}') + f'\ns_branch {tag}_dk{n}')
        a(br(f'{tag}_d4')); rt(4, 7); a(f'{tag}_dk4:')
        if OPT['qs']: P('c3')
        for c in range(4, 8):
            m = M(c, 4)
            a(m[0])
            if c == 4: a(dd(8))
            a(m[1]); a(f's_waitcnt vmcnt({8-c-1})'); a(cmpu(AF(c+1))); a(m[2]); a(m[3]); a(br(f'{tag}_d{c+1}')); rt(c+1, 8); a(f'{tag}_dk{c+1}:')
            if OPT['qs'] and c in (4, 5): P('x')
        a(f's_bitcmp1_b64 s[{sFM}:{sFM+1}], s{sSTEP}')
    a(f's_cbranch_scc0 {tag}_fl')
    a(f'{tag}_flok:')
    if OPT['ts']:
        a(f's_lshl_b32 s{sTO}, s{sH}, 2\ns_add_u32 s{sTO}, s{sTO}, s{sW}\ns_lshl_b32 s{sTO}, s{sTO}, 6\ns_add_u32 s{sTO}, s{sTO}, s{sSTEP}\ns_lshl_b32 s{sTO}, s{sTO}, 2\ns_add_u32 s{sTO}, s{sTO}, {WS_PROF+0x30000}')
        a(f'v_mov_b32 v{T0}, s{P.base+4}\ns_mov_b64 exec, 1\nbuffer_store_dword v{T0}, v{L16}, {srd}, s{sTO} offen\ns_mov_b64 exec, -1')
    ool.append(f'{tag}_fl:\n' + tmo(f'{tag}_flok') + f'v_lshrrev_b32 v{T0}, 2, v{L16}\nbuffer_load_dword v{FLG}, v{T0}, {srd}, s{sKVF} offen sc1\ns_waitcnt vmcnt(0)\n'
               f'v_cmp_eq_u32 s[{sFM}:{sFM+1}], v{TAGV}, v{FLG}\ns_nop 1\ns_bitcmp1_b64 s[{sFM}:{sFM+1}], s{sSTEP}\ns_cbranch_scc0 {tag}_fl\ns_branch {tag}_flok')
    assert not OPT['dir']
    late = []
    rops = [
        f'v_mov_b64 {vr(T0,2)}, -1\ns_mov_b32 exec_hi, 0\nbuffer_store_dwordx4 {vr(PUB)}, v{ORD}, {srd}, s{sOOB if OPT["nopub"] else sMH} offen sc1',
        f'buffer_store_dwordx2 {vr(T0,2)}, v{PBST}, {srd}, s{sMBO} offen {ST}\ns_mov_b32 exec_hi, -1\nv_lshlrev_b32 v{T1}, {OPT["rsh"]}, v{L16}',
        f'buffer_store_dword v{T0}, v{T1}, {srd}, s{sPBO} offen {ST}',
        f'buffer_store_dword v{T0}, v{T1}, {srd}, s{sPBO} offen offset:8 {ST}',
    ]
    m = M(5, 4)
    a(f's_cmp_eq_u64 s[{sFM}:{sFM+1}], -1')
    a(m[0])
    a(f's_cbranch_scc0 {tag}_fa')
    a(f'{tag}_fad:')
    ool.append(f'{tag}_fa:\nv_lshrrev_b32 v{T1}, 2, v{L16}\nbuffer_load_dword v{FLG}, v{T1}, {srd}, s{sKVF} offen sc1\ns_branch {tag}_fad')
    a(m[1]); a(f'buffer_load_dwordx4 {vr(VX)}, v{L16}, {srd}, s{sKV} offen offset:2048 sc1')
    a(m[2]); a(m[3]); a(f'buffer_load_dwordx4 {vr(VX+4)}, v{L16}, {srd}, s{sKV} offen offset:3072 sc1')
    if OPT['qs']: P('c5')
    m = M(6, 4)
    a('s_waitcnt lgkmcnt(2)')
    for k in range(4):
        a(m[k])
        a(rops[k])
    for c in range(7, 9):
        m = M(c, 4)
        a(f's_waitcnt lgkmcnt({8-c})')
        for k, x in enumerate(m):
            if c == 8 and k == 3: a(cvt(Q0, Q0, Q0+1))
            a(x)
    P('qk')
    vq = [(t, c) for c in (5, 6, 7, 4, 8) for t in (4, 5)]
    def vm(n=1):
        for _ in range(n):
            t, c = vq.pop(0); a(smf(ACC[t], AF(c), wreg(t, c)))
    a(cvt(Q0+1, Q0+2, Q0+3)); a(cvt(Q0+2, K0, K0+1)); a(cvt(Q0+3, K0+2, K0+3))
    a(cvt(Q1, Q1, Q1+1)); a(cvt(Q1+1, Q1+2, Q1+3))
    a(mfma(K0, Q0, SEL))
    a(cvt(Q1+2, K1, K1+1)); a(cvt(Q1+3, K1+2, K1+3))
    a(mfma(K1, Q1, SEL))
    U = Q0
    a(cvt(U, K0, K0+1)); a(cvt(U+1, K0+2, K0+3))
    vm(1)
    a(cvt(U+2, K1, K1+1)); a(cvt(U+3, K1+2, K1+3))
    TX0, TX1, TM = K0, Q1, K1
    a(f'v_add_u32 v{T0}, s{sSCW}, v{L16}')
    a(mfma(TX0, KX, U)); a(mfma(TX1, KX+4, U)); a(mfma(TM, U, U))
    if OPT['m1']: vm(1)
    if not OPT['qs']: P('S')
    for r in range(4):
        a(f'v_mov_b32_dpp v{TX0+r}, v{TX1+r} row_ror:8 row_mask:0xf bank_mask:0xc')
    a(f'ds_write_b128 v{T0}, {vr(TX0)} offset:{LDS_SC}')
    a(f's_mov_b64 exec, s[66:67]')
    a(f'ds_write_b128 v{MW}, {vr(TM)} offset:{LDS_SC}')
    a(f's_mov_b64 exec, -1')
    vm(1)
    a(f'buffer_load_dwordx4 {vr(KX)}, v{L16}, {srd}, s{sTMP} offen sc1')
    vm(1)
    a(f'buffer_load_dwordx4 {vr(KX+4)}, v{L16}, {srd}, s{sTMP} offen offset:1024 sc1')
    vm(2 if OPT['m1'] else 3)
    if not OPT['qs']: P('wr')
    a(f's_waitcnt lgkmcnt(0)')
    a('s_barrier')
    P('bar1')
    RD = AQ(0)
    a(f'ds_read_b128 {vr(RD)}, v{L16} offset:{LDS_SC}')
    a(f'ds_read_b128 {vr(RD+4)}, v{L16} offset:{LDS_SC+1280}')
    vm(1)
    a(f'ds_read_b128 {vr(RD+8)}, v{L16} offset:{LDS_SC+2560}')
    a(f'ds_read_b128 {vr(TX0)}, v{L16} offset:{LDS_SC+3840}')
    vm(1)
    MRD = Q1
    for w in range(4):
        a(f'ds_read_b64 {vr(MRD+2*w,2)}, v{MR} offset:{LDS_SC+1280*w}')
        if w == 1: vm(1)
    vm(1)
    assert not vq
    a('s_waitcnt lgkmcnt(6)')
    a(pkadd(RD, RD, RD+4)); a(pkadd(RD+2, RD+2, RD+6))
    a('s_waitcnt lgkmcnt(4)')
    a(pkadd(TX0, TX0, RD+8)); a(pkadd(TX0+2, TX0+2, RD+10))
    a('s_waitcnt lgkmcnt(0)')
    a(pkadd(MRD, MRD, MRD+2)); a(pkadd(MRD+4, MRD+4, MRD+6))
    SX = RD; SM = MRD
    a(pkadd(SX, SX, TX0)); a(pkadd(SX+2, SX+2, TX0+2)); a(pkadd(SM, SM, MRD+4))
    MX = T0
    a(f'v_max3_f32 v{MX}, v{SX}, v{SX+1}, v{SX+2}')
    a(f'v_max3_f32 v{MX}, v{MX}, v{SX+3}, v{SM}')
    a(f'v_max_f32 v{MX}, v{MX}, v{SM+1}')
    if OPT['es']: P.k += 1; P.names.append('adds')
    elif not OPT['qs']: P('adds')
    def woread(i, buf): a(f'ds_read_b128 {vr(buf)}, v{WOA} offset:{i*1024}')
    WB = [K1, AQ(1), AQ(2), VX, VX+4, VA0, VA1]
    woread(1, WB[1]); woread(2, WB[2])
    a(f'v_max_f32_dpp v{MX}, v{MX}, v{MX} row_ror:8 row_mask:0xf bank_mask:0xf')
    a(f'v_mov_b32 v{T1}, v{MX}')
    VM = U
    a(cvt(VM, VA0, VA0+1)); a(cvt(VM+1, VA0+2, VA0+3))
    a(f'v_permlane16_swap_b32 v{MX}, v{T1}')
    a(f'v_max_f32 v{MX}, v{MX}, v{T1}')
    a(f'v_mov_b32 v{T1}, v{MX}')
    a(cvt(VM+2, VA1+2, VA1+3)); a(cvt(VM+3, VA1, VA1+1))
    a(f'v_permlane32_swap_b32 v{MX}, v{T1}')
    a(f'v_max_f32 v{MX}, v{MX}, v{T1}')
    a(f'v_mul_f32 v{MX}, s{sC}, v{MX}')
    for r in (SX, SX+2, SM):
        a(f'v_pk_fma_f32 {vr(r,2)}, {vr(r,2)}, s[{sC}:{sC+1}], {vr(MX,2)} op_sel_hi:[1,1,0] neg_lo:[0,0,1] neg_hi:[0,0,1]')
    for r in [SX, SX+1, SX+2, SX+3, SM, SM+1]: a(f'v_exp_f32 v{r}, v{r}')
    a('s_waitcnt vmcnt(6)')
    a(f'v_swap_b32 v{VX+4}, v{VX+6}')
    PR = TX0; PM = K1; VM = U
    a(cvt(PR, SX, SX+1)); a(cvt(PR+1, SX+2, SX+3)); a(cvt(PM, SM, SM+1))
    a(f'v_mov_b32_dpp v{PR+2}, v{PR} row_ror:8 row_mask:0xf bank_mask:0xf')
    a(f'v_mov_b32_dpp v{PR+3}, v{PR+1} row_ror:8 row_mask:0xf bank_mask:0xf')
    a(f'v_mov_b32_dpp v{PM+1}, v{PM} row_ror:8 row_mask:0xf bank_mask:0xf')
    a(f'v_swap_b32 v{VX+5}, v{VX+7}')
    if OPT['es']: P.k += 1; P.names.append('smax')
    elif not OPT['qs']: P('smax')
    PD = [AQ(3), AQ(4)]
    SUM = T0
    a(mfma(PD[0], VX, PR))
    a(f'v_add_f32 v{T1}, v{SM}, v{SM+1}')
    a(pkadd(SX, SX, SX+2))
    a(mfma(PD[1], VX+4, PR))
    a(f'v_add_f32 v{SUM}, v{SX}, v{SX+1}')
    a(f'v_fmac_f32 v{SUM}, 0.5, v{T1}')
    a(f'v_mfma_f32_16x16x16_bf16 {vr(PD[0])}, {vr(VM,2)}, {vr(PM,2)}, {vr(PD[0])}')
    a(f'v_add_f32_dpp v{SUM}, v{SUM}, v{SUM} row_ror:8 row_mask:0xf bank_mask:0xf')
    a(f'v_mfma_f32_16x16x16_bf16 {vr(PD[1])}, {vr(VM+2,2)}, {vr(PM,2)}, {vr(PD[1])}')
    a(f'v_mov_b32 v{T1}, v{SUM}')
    woread(0, WB[0]); woread(3, WB[3])
    a(f'v_permlane16_swap_b32 v{SUM}, v{T1}')
    a(f'v_add_f32 v{SUM}, v{SUM}, v{T1}')
    a(f'v_mov_b32 v{T1}, v{SUM}')
    for r in range(2): a(f'v_mov_b32_dpp v{PD[0]+r}, v{PD[1]+r} quad_perm:[0,1,2,3] row_mask:0xf bank_mask:0xc')
    a(f'v_permlane32_swap_b32 v{SUM}, v{T1}')
    a(f'v_add_f32 v{SUM}, v{SUM}, v{T1}')
    a(f'v_rcp_f32 v{SUM}, v{SUM}')
    for r in range(2,4): a(f'v_mov_b32_dpp v{PD[0]+r}, v{PD[1]+r} quad_perm:[0,1,2,3] row_mask:0xf bank_mask:0xc')
    O = PD[0]
    for r in (0, 2): a(f'v_pk_mul_f32 {vr(O+r,2)}, {vr(O+r,2)}, {vr(SUM,2)} op_sel_hi:[1,0]')
    a(cvt(O, O, O+1)); a(cvt(O+1, O+2, O+3))
    a(f'ds_write_b64 v{OW}, {vr(O,2)}')
    if OPT['es']: P.k += 1; P.names.append('pv')
    else: P('pv')
    for i in range(4, 7): woread(i, WB[i])
    wrap = 0xfffcffff
    a(f"""
    s_add_u32 s{sM1}, s{sM1}, {MB_STRIDE}
    s_and_b32 s{sM1}, s{sM1}, {wrap}
    s_add_u32 s{sM8}, s{sM8}, {MB_STRIDE}
    s_and_b32 s{sM8}, s{sM8}, {wrap}
    s_add_u32 s{sM2}, s{sM2}, {MB_STRIDE}
    s_and_b32 s{sM2}, s{sM2}, {wrap}
    s_add_u32 s{sMBO}, s{sMBO}, {MB_STRIDE}
    s_and_b32 s{sMBO}, s{sMBO}, {wrap}
    """)
    a('s_waitcnt lgkmcnt(3)')
    a('s_barrier')
    if not OPT['qs']: P('bar2')
    if prof:
        a(f's_cmp_lg_u32 s{sSTEP}, 40\ns_cbranch_scc1 {tag}_nd')
        a(f's_lshl_b32 s{sTO}, s{sH}, 2\ns_add_u32 s{sTO}, s{sTO}, s{sW}\ns_lshl_b32 s{sTO}, s{sTO}, 7\ns_add_u32 s{sTO}, s{sTO}, {WS_PROF+0x20000}\ns_waitcnt lgkmcnt(0)\ns_mov_b64 exec, 1')
        for k in range(14): a(f'v_mov_b32 v{T0}, s{P.base+2*k}\nbuffer_store_dword v{T0}, v{L16}, {srd}, s{sTO} offen offset:{4*k}')
        a(f's_mov_b64 exec, -1\n{tag}_nd:')
    OA = [AQ(3), AQ(4), Q1, AQ(0)]
    for u in range(4): a(f'ds_read_b128 {vr(OA[u])}, v{ORD} offset:{u*512}')
    a(f"""
    s_add_u32 s{sMBW}, s{sMBW}, {MB_STRIDE}
    s_and_b32 s{sMBW}, s{sMBW}, {wrap}
    s_add_u32 s{sKV}, s{sKV}, {0 if OPT['kv0'] else KV_SEG}
    s_add_u32 s{sMH}, s{sMH}, {MH_STRIDE}
    s_xor_b32 s{sPBO}, s{sPBO}, {PB_STRIDE}
    s_cmp_eq_u32 s{sW}, 0
    """)
    a(f'v_add_u32 v{T0}, s{sXA}, v{L16}')
    NB = 7
    DD = [U, TX0]
    S2 = OA[0]; RDa = OA[3]
    own = lambda c: (WOA, c*4096, sPBW+c)
    X1 = (T0, 0, sPBX); X2 = (T1, 0, sPBX+1)
    T_W0 = [own(c) for c in range(6)]
    T_10 = [own(c) for c in range(7)] + [X1, own(7), own(8)]
    T_11 = T_10
    class St: pass
    st = St(); st.issued = NB; st.q = [4, 5, 6, 'o0', 'o1', 'o2', 'o3']
    def fork():
        n = St(); n.issued = st.issued; n.q = list(st.q); return n
    def need(S, ids):
        idx = max([S.q.index(x) for x in ids if x in S.q], default=-1)
        if idx >= 0:
            a(f's_waitcnt lgkmcnt({min(len(S.q)-1-idx, 15)})')
            del S.q[:idx+1]
    def post(T, c, k):
        d = DD[c % 2]
        if k == 0: a(cvt(d, d, d+1))
        if k == 1: a(cvt(d+1, d+2, d+3))
        if k == 2: a(f'buffer_store_dwordx2 {vr(d,2)}, v{PBST}, {srd}, s{T[c][2]} offen {ST}')
    def wread(S, T):
        i = S.issued; adr, imm, _ = T[i // 4]
        a(f'ds_read_b128 {vr(WB[i % NB])}, v{adr} offset:{imm + (i % 4)*1024}'); S.q.append(i); S.issued += 1
    s2b = {0: f'v_mov_b64 {vr(S2,2)}, 0\nv_mov_b64 {vr(S2+2,2)}, 0',
           1: f'v_mov_b32_dpp v{S2}, v{SEL2} quad_perm:[0,1,2,3] row_mask:0xf bank_mask:0x1',
           2: f'v_mov_b32_dpp v{S2+1}, v{SEL2+1} quad_perm:[0,1,2,3] row_mask:0xf bank_mask:0x1',
           3: f'v_mov_b32_dpp v{S2+2}, v{SEL2} quad_perm:[0,1,2,3] row_mask:0xf bank_mask:0x2\nv_mov_b32_dpp v{S2+3}, v{SEL2+1} quad_perm:[0,1,2,3] row_mask:0xf bank_mask:0x2'}
    def rload(R, i): return f'buffer_load_dwordx4 {vr(R[i])}, v{L16}, {srd}, s{sPBR} offen offset:{i*1024} {LD}'
    def slots(S, T, i0, i1, extra=None, red=False):
        N = 4*len(T)
        for i in range(i0, i1):
            c, u = divmod(i, 4)
            d = DD[c % 2]
            if c == 0: need(S, [f'o{u}'])
            elif u % 2 == 0: need(S, [i, i+1])
            a(mfma(d, WB[i % NB], OA[u], None if u == 0 else d))
            if S.issued < N and (c > 0 or not OPT['p0']): wread(S, T)
            if extra and i in extra: a(extra[i])
            if c >= (2 if OPT['p0'] else 1) and u >= 1: post(T, c-1, u-1)
            if red and c == len(T)-1: a(s2b[u])
        if i1 == N:
            for c in range(2): a(f's_xor_b32 s{sPBW+c}, s{sPBW+c}, {PB_STRIDE}')
            a(f's_cmp_eq_u32 s{sKIND}, 0')
            for k in range(3): post(T, len(T)-1, k)
    def zacc(o=None, lo=0, hi=12):
        for r in list(range(Q0, VA1+4, 2))[lo:hi]: a(f'v_mov_b64 {vr(r,2)}, 0')
    def xors(o=None):
        for c in range(2, 10): a(f's_xor_b32 s{sPBW+c}, s{sPBW+c}, {PB_STRIDE}')
    gwr = f'v_mov_b32 v{T0}, s{sSTEP}\nds_write_b32 v{L16}, v{T0} offset:{LDS_GATE}'
    def reduce(R, young, lbl, fail, gw=False):
        for i in range(4):
            a(f's_waitcnt vmcnt({young[i]})')
            a(mfma(RDa, S2, R[i], None if i == 0 else RDa))
        a('s_nop 6')
        a(f'{lbl}_c:')
        a(f'v_cmp_u_f32 vcc, v{RDa}, v{RDa}')
        for r in range(4): a(f'v_add_f32_dpp v{RDa+r}, v{RDa+r}, v{RDa+r} row_ror:8 row_mask:0xf bank_mask:0xf')
        a(cvt(PUB, RDa, RDa+1)); a(cvt(PUB+1, RDa+2, RDa+3))
        a(br(fail))
        a(f'{lbl}_ok:')
        a('s_mov_b32 exec_hi, 0')
        a(f'buffer_store_dwordx2 {vr(PUB,2)}, v{PBST}, {srd}, s{sMBW} offen {ST}')
        a('s_mov_b64 exec, -1')
        if gw: a(gwr)
        a(f's_xor_b32 s{sPBR}, s{sPBR}, {PB_STRIDE}')
        a(f's_cmp_eq_u32 s{sSTEP}, 63')
        a(f's_cbranch_scc1 {DONE}')
    def rl4(R): return '\n'.join(rload(R, i) for i in range(4))
    def plain_retry(R, lbl, okl, cl, site):
        ool.append(f'{lbl}:\n' + cnt(site) + tmo(okl) + rl4(R) + '\n' +
                   '\n'.join(f's_waitcnt vmcnt({3-i})\n' + mfma(RDa, S2, R[i], None if i == 0 else RDa) for i in range(4)) + f'\ns_nop 7\ns_branch {cl}')
    def gate(lbl):
        a(f'{lbl}:')
        a(f'ds_read_b32 v{T0}, v{L16} offset:{LDS_GATE}')
        a(tmo(f'{lbl}d'))
        a('s_waitcnt lgkmcnt(0)')
        a(f'v_cmp_ne_u32 vcc, s{sSTEP}, v{T0}')
        a(f's_cbranch_vccnz {lbl}')
        a(f'{lbl}d:')
    def PS(k):
        if prof: a(f's_memtime s[{P.base+2*k}:{P.base+2*k+1}]')
    def nops(n, why):
        n *= 8
        while n > 0:
            k = min(n, 16); a(f's_nop {k-1}   ; {why}'); n -= k
    kwo = P.k + (0 if OPT['qs'] else 1)
    R0 = [AQ(1), AQ(2), VX, VX+4]
    slots(st, T_11, 0, 4)
    if OPT['p0']:
        for _ in range(4): wread(st, T_11)
        for k in range(3): post(T_11, 0, k)
    if not OPT['qs']: P('wo0')
    slots(st, T_11, 4, 16)
    S0 = fork()
    a(f's_cbranch_scc1 {tag}_w0')
    slots(st, T_11, 16, 29)
    S3e = fork()
    a(f's_cmp_eq_u32 s{sKIND}, 1')
    a(f's_cbranch_scc1 {tag}_w3e')
    slots(st, T_11, 29, 40, red=True)
    PS(kwo)
    a(f's_cbranch_scc1 {tag}_k2')
    if not OPT['lz']: zacc()
    xors()
    if OPT['lg']: gate(f'{tag}_lgate')
    if OPT['lz']: zacc(lo=0, hi=OPT['lz'])
    for i in range(OPT['l0']): a('s_nop 7')
    a(rl4(R0))
    if OPT['lz']: zacc(lo=OPT['lz'])
    if OPT['ld']:
        if not OPT['lz']: a('s_sleep 1')
        a(f'{tag}_l2:')
        a(rl4(R0))
        reduce(R0, [7, 6, 5, 4], f'{tag}_rl', f'{tag}_lf')
        ool.append(f'{tag}_lf:\n' + cnt(5) + tmo(f'{tag}_rl_ok') + f's_branch {tag}_l2')
    else:
        reduce(R0, [3, 2, 1, 0], f'{tag}_rl', f'{tag}_lf')
        plain_retry(R0, f'{tag}_lf', f'{tag}_rl_ok', f'{tag}_rl_c', 5)
    PS(kwo+1); PS(0)
    a('s_waitcnt vmcnt(1)')
    a(f's_branch {tag}_ok0')
    a(f'{tag}_w0:')
    a('s_nop 1')
    slots(S0, T_W0, 16, 24, red=True)
    P('wo')
    nops(OPT['z0'], 'let the last partial stores land before the first poll')
    a(rl4(R0))
    nops(OPT['z1'], 'spacing between two overlapped poll rounds')
    a(f'{tag}_e2:')
    a(rl4(R0))
    reduce(R0, [7, 6, 5, 4], f'{tag}_re', f'{tag}_ef', gw=True)
    ool.append(f'{tag}_ef:\n' + cnt(1) + tmo(f'{tag}_re_ok') + f's_branch {tag}_e2')
    nops(OPT['z2'], 'let the publish stores land before the first poll')
    P('red')
    a(f's_branch {LOOP}')
    a(f'{tag}_k2:')
    a(f's_cmp_eq_u32 s{sSTEP}, 63')
    a(f's_cbranch_scc1 {tag}_end')
    if F4: a(f's_branch {tag}_w3z')
    a(f's_cmp_eq_u32 s{sW}, 3')
    a(f's_cbranch_scc1 {tag}_w3z')
    if OPT['fg']: gate(f'{tag}_gate')
    for i in range(OPT['g2']): a('s_nop 7')
    PS(kwo+1)
    a(f's_branch {LOOP}')
    a(f'{tag}_w3e:')
    R3 = [WB[i % NB] for i in range(33, 37)]
    slots(S3e, T_10, 29, 40, extra={33+i: rload(R3, i) for i in range(4)}, red=True)
    PS(kwo)
    reduce(R3, [6, 5, 4, 2], f'{tag}_r3', f'{tag}_3f')
    plain_retry(R3, f'{tag}_3f', f'{tag}_r3_ok', f'{tag}_r3_c', 4)
    a(f'{tag}_w3z:')
    zacc(); xors()
    PS(kwo+1); PS(0)
    a(f's_branch {tag}_ok0')
    for o in ool: a(o)
    a(f'{DONE}:')

def init_sgprs(a):
    srd = f's[{sWS}:{sWS+3}]'
    a(f'''
    s_mov_b32 s{sSTEP}, 0
    s_mov_b32 s{sRT}, 0
    s_mov_b32 s{sOOB}, 0x7f000000
    s_lshl_b32 s{sM1}, s{sW}, 10
    s_add_u32 s{sMW}, s{sM1}, {LDS_MEM}
    s_add_u32 s{sM1}, s{sM1}, {WS_MB+1024}
    s_mov_b32 s{sM2}, {WS_MB+1024+4096}
    s_mul_i32 s{sM8}, s{sW}, 768
    s_add_u32 s{sMW3}, s{sM8}, {LDS_MEM+6144}
    s_add_u32 s{sM8}, s{sM8}, {WS_MB+1024+6144}
    {'s_mov_b32 s%d, %d' % (sM8, WS_MB+1024+8192) if OPT['dir'] else ''}
    s_lshl_b32 s{sTMP}, s{sH}, 7
    s_lshl_b32 s{sTMP2}, s{sW}, 13
    s_add_u32 s{sPBW}, s{sTMP}, s{sTMP2}
    s_add_u32 s{sPBW}, s{sPBW}, {WS_PB}
    ''')
    for c in range(1, 9): a(f's_add_u32 s{sPBW+c}, s{sPBW}, {c*32768}')
    a(f'''
    s_lshl_b32 s{sTMP}, s{sH}, 2
    s_add_u32 s{sTMP}, s{sTMP}, s{sW}
    s_lshl_b32 s{sKV}, s{sTMP}, 12
    s_add_u32 s{sKV}, s{sKV}, {WS_KV}
    s_lshl_b32 s{sKVF}, s{sTMP}, 8
    s_add_u32 s{sKVF}, s{sKVF}, {WS_KVF}
    s_add_u32 s{sTMP}, s{sW}, 5
    s_lshl_b32 s{sXA}, s{sTMP}, 12
    s_add_u32 s{sXA}, s{sXA}, {LDS_WO}
    s_add_u32 s{sXA+1}, s{sXA}, {3*4096}
    s_lshl_b32 s{sPBX}, s{sTMP}, 15
    s_lshl_b32 s{sTMP2}, s{sH}, 7
    s_add_u32 s{sPBX}, s{sPBX}, s{sTMP2}
    s_add_u32 s{sPBX}, s{sPBX}, {WS_PB}
    s_add_u32 s{sPBX+1}, s{sPBX}, {3*32768}
    s_mov_b32 s{sKIND}, 0
    s_mov_b32 s{sTMP}, 72
    s_cmp_eq_u32 s{sW}, 0
    s_cselect_b32 s{sKIND}, 2, s{sKIND}
    s_cselect_b32 s{sTMP}, s{sH}, s{sTMP}
    s_add_u32 s{sTMP2}, s{sH}, 40
    s_cmp_eq_u32 s{sW}, 1
    s_cselect_b32 s{sKIND}, 2, s{sKIND}
    s_cselect_b32 s{sTMP}, s{sTMP2}, s{sTMP}
    s_add_u32 s{sTMP2}, s{sH}, 32
    s_cmp_eq_u32 s{sW}, 3
    s_cselect_b32 s{sTO}, s{sTMP2}, 99
    s_cmp_lt_u32 s{sTO}, 40
    s_cselect_b32 s{sKIND}, 1, s{sKIND}
    s_cselect_b32 s{sTMP}, s{sTO}, s{sTMP}
    s_lshl_b32 s{sPBR}, s{sTMP}, 12
    s_add_u32 s{sPBR}, s{sPBR}, {WS_PB}
    s_lshl_b32 s{sRED}, s{sTMP}, 7
    s_add_u32 s{sRED}, s{sRED}, 1024
    s_cmp_eq_u32 s{sKIND}, 0
    s_cselect_b32 s{sRED}, 0x7f000000, s{sRED}
    s_lshl_b32 s{sMH}, s{sTMP}, 8
    s_cmp_eq_u32 s{sKIND}, 0
    s_cselect_b32 s{sMH}, 0x7f000000, s{sMH}
    s_add_u32 s{sMH}, s{sMH}, {WS_MH - LDS_OB}
    s_add_u32 s{sMBO}, s{sRED}, {WS_MB+2*MB_STRIDE}
    s_add_u32 s{sMBW}, s{sRED}, {WS_MB}
    s_xor_b32 s{sPBO}, s{sPBR}, {PB_STRIDE}
    s_cmp_eq_u32 s{sKIND}, 0
    s_cselect_b32 s{sPBO}, 0x7f000000, s{sPBO}
    ''')

def gen_chain(a, prof=False):
    srd = SRD_WS
    sA, sB, sC3, sD = 72, 76, 80, 84
    sM0 = 88
    from qkv import pstamp
    a('R_chain:')
    pstamp(a, prof, 0, 76)
    make_srd(a, sA, KA_WQ, 576*8192); make_srd(a, sB, KA_WK, 576*8192); make_srd(a, sC3, KA_WV, 576*8192)
    make_srd(a, sD, KA_WO, 4096*1152); make_srd(a, sM0, KA_MEM0, 9216)
    a(f's_load_dwordx2 s[92:93], s[0:1], {KA_DBG}')
    TA = 44; TMPB = 20; WOV = 26
    a(f'''
    s_mov_b32 s{sW}, s{sWAVE}
    s_mov_b32 s{sH}, s{sRANK}
    s_mul_i32 s{sTMP2}, s{sW}, 36864
    s_add_u32 s94, s{sTMP2}, {LDS_WO}
    s_lshl_b32 s95, s{sH}, 8
    s_lshl_b32 s{sTMP}, s{sW}, 17
    s_add_u32 s95, s95, s{sTMP}             ; h*256 + w*16*8192
    s_mul_i32 s97, s{sH}, {128*1152}
    s_lshl_b32 s{sTMP}, s{sW}, 5
    s_add_u32 s97, s97, s{sTMP}             ; h*128*1152 + w*32
    v_and_b32 v28, 63, v0
    s_mov_b32 s{sTMP}, s{sH}
    s_cmp_eq_u32 s{sW}, 1
    s_cselect_b32 s{sTMP2}, 40, 0
    s_add_u32 s{sTMP}, s{sTMP}, s{sTMP2}
    s_cmp_eq_u32 s{sW}, 3
    s_cselect_b32 s{sTMP2}, 32, 0
    s_add_u32 s{sTMP}, s{sTMP}, s{sTMP2}
    s_lshl_b32 s{sTMP}, s{sTMP}, 4
    v_and_b32 v70, 7, v28
    v_mul_u32_u24 v70, 1152, v70
    v_bfe_u32 v71, v28, 4, 1
    v_lshl_add_u32 v70, v71, 3, v70
    s_waitcnt lgkmcnt(0)
    buffer_load_dwordx2 {vr(PUB,2)}, v70, s[{sM0}:{sM0+3}], s{sTMP} offen
    ''')
    def after_issue():
        if DBG.get('bare'): return 0
        a(f's_waitcnt vmcnt(36)\nv_add_u32 v{TAGV}, 1, v4')
        a(f'''
        v_lshrrev_b32 v29, 4, v28               ; g'
        v_bfe_u32 v30, v28, 2, 2                ; r4
        v_and_b32 v31, 3, v28                   ; c4
        v_and_b32 v32, 1, v30                   ; r4&1
        v_lshrrev_b32 v33, 1, v30               ; r4>>1
        v_and_b32 v34, 1, v29                   ; g'&1
        v_lshl_add_u32 v35, v33, 3, v32
        v_lshl_add_u32 v35, v34, 2, v35         ; row16
        v_lshl_add_u32 v36, v34, 1, v32
        v_lshl_add_u32 v36, v33, 2, v36         ; swz
        s_lshl_b32 s{sTMP}, s{sW}, 1
        v_xor_b32 v36, s{sTMP}, v36
        v_lshlrev_b32 v35, 8, v35
        v_lshl_add_u32 v35, v36, 5, v35
        v_lshl_add_u32 v35, v31, 3, v35
        v_lshrrev_b32 v37, 1, v29
        v_mul_u32_u24 v37, 36864, v37
        v_add_u32 v35, v35, v37
        v_add_u32 v{TA}, {LDS_WO}, v35
        v_xor_b32 v{TA+1}, 32, v{TA}
        v_add_u32 v{TA+2}, {2*36864}, v{TA}
        v_add_u32 v{TA+3}, {2*36864}, v{TA+1}
        v_lshrrev_b32 v{WOV}, 1, v28
        v_mul_u32_u24 v{WOV}, 1152, v{WOV}
        v_and_b32 v38, 1, v28
        v_lshl_add_u32 v{WOV}, v38, 4, v{WOV}
        v_lshrrev_b32 v39, 2, v28
        v_lshlrev_b32 v39, 5, v39
        v_lshl_add_u32 v39, v31, 3, v39
        v_add_u32 v39, s94, v39
        ''')
        consts(a)
        init_sgprs(a)
        return 0
    def reads(m, c):
        out = []
        for t in range(2):
            tile = [0, 1, 4][m] + ([0, 2][t] if m < 2 else t)
            w = wreg(tile, c)
            k, lo = w[0], int(w[2:w.index(':')])
            for hb2 in range(2):
                for rh in range(2):
                    r = lo + 4*hb2 + 2*rh
                    out.append(f'ds_read_b64_tr_b16 {k}[{r}:{r+1}], v{TA+2*hb2+t} offset:{c*4096 + rh*512}')
        return out
    def wo_dma(c):
        if DBG.get('nowo'): return []
        return [f's_add_u32 s96, s97, {c*128 + j*32*1152}\ns_add_u32 m0, s94, {c*4096 + j*1024}\n'
                f'buffer_load_dwordx4 v{WOV}, s[{sD}:{sD+3}], s96 offen lds' for j in range(4)]
    pstamp(a, prof, 1, 76)
    def pr(m, c):
        n = 0
        if c == 8 and prof and not DBG.get('nops'): pstamp(a, prof, 2+m, 76); n += 1
        return n
    cnt = stage_weights(a, 'C', [f's[{x}:{x+3}]' for x in (sA, sB, sC3)], reads, 'chain', LDS_WO, TMPB, [95, 96, 94],
                        extra_dma=wo_dma, after_issue=after_issue, post_read=pr)
    if DBG.get('bare'):
        a('s_waitcnt vmcnt(0)'); pstamp(a, prof, 5, 76); a('s_endpgm')
        a('F_ok0:\nF_end:\ns_endpgm'); return
    a(f'''
    v_mov_b32 v{T0}, 64
    v_lshrrev_b32 v{T1}, 2, v{L16}
    global_load_dword v76, v{T0}, s[92:93] sc1
    global_load_dword v78, v{T0}, s[92:93] offset:128 sc1
    v_mov_b32 v79, 0
    buffer_load_dword v{FLG}, v{T1}, {srd}, s{sKVF} offen sc1
    v_lshlrev_b32 v77, 2, v{L16}
    buffer_load_dword v72, v77, {srd}, s{sPBO} offen sc1
    s_xor_b32 s{sTMP}, s{sPBO}, {PB_STRIDE}
    buffer_load_dword v72, v77, {srd}, s{sTMP} offen sc1
    s_mov_b32 exec_hi, 0
    ''')
    for k in range(1, 4):
        a(f's_add_u32 s{sTMP}, s{sRED}, {WS_MB + k*MB_STRIDE}')
        a(f'buffer_load_dwordx2 v[72:73], v{PBST}, {srd}, s{sTMP} offen sc1')
    a('s_mov_b32 exec_hi, -1')
    cnt[-1] += 8
    for c in range(9):
        a(f's_waitcnt vmcnt({sum(cnt[27+c+1:]) + (8 if c == 8 else 0)})')
        b = 40 + 16*(c % 2)
        for u in range(4):
            for rh in range(2):
                a(f'ds_read_b64_tr_b16 v[{b+4*u+2*rh}:{b+4*u+2*rh+1}], v39 offset:{c*4096 + u*1024 + rh*512}')
        a('s_waitcnt lgkmcnt(0)')
        for u in range(4):
            a(f'ds_write_b128 v{WOA}, {vr(b+4*u)} offset:{(4*c+u)*1024}')
    if OPT['noqkv']:
        a('s_waitcnt vmcnt(0)'); pstamp(a, prof, 5, 76); a('s_endpgm')
    a(f'''
    s_waitcnt vmcnt(0)
    s_branch C_wi2
C_wi:
    global_load_dword v76, v{T0}, s[92:93] sc1
    global_load_dword v79, v{T0}, s[92:93] offset:-32 sc1
    s_waitcnt vmcnt(0)
    global_load_dword v78, v{T0}, s[92:93] offset:128 sc1
    buffer_load_dword v{FLG}, v{T1}, {srd}, s{sKVF} offen sc1
    s_waitcnt vmcnt(0)
C_wi2:
    v_readfirstlane_b32 s{sTMP}, v76
    v_readfirstlane_b32 s96, v78
    v_readfirstlane_b32 s97, v79
    v_cmp_eq_u32 s[{sFM}:{sFM+1}], v{TAGV}, v{FLG}
    s_add_u32 s{sRT}, s{sRT}, 1
    s_cmp_gt_u32 s{sRT}, 0x100000
    s_cbranch_scc1 C_wfd
    s_cmp_lt_u32 s{sTMP}, 45
    s_cbranch_scc1 C_wi
    s_bitcmp1_b64 s[{sFM}:{sFM+1}], 0
    s_cbranch_scc0 C_wi
    s_cmp_ge_u32 s96, 32
    s_cbranch_scc1 C_wfd
    s_add_u32 s97, s97, s96
    s_cmp_lt_u32 s97, 256
    s_cbranch_scc1 C_wi
C_wfd:
    s_waitcnt lgkmcnt(0)
    buffer_load_dwordx4 {vr(KX)}, v{L16}, {srd}, s{sKV} offen sc1
    buffer_load_dwordx4 {vr(KX+4)}, v{L16}, {srd}, s{sKV} offen offset:1024 sc1
    ''')
    pstamp(a, prof, 5, 76)
    if OPT['noqkv']: a('s_endpgm')
    for r in range(Q0, VA1+4, 2): a(f'v_mov_b64 {vr(r,2)}, 0')
    if prof:
        for i in range(8): a(f's_mov_b32 s{sPROF+i}, 0')
        a('s_memrealtime s[28:29]\ns_memtime s[32:33]')
    def run(tag, ST):
        a(f's_bitcmp1_b32 s{sW}, 0\ns_cbranch_scc1 {tag}_ok0')
        for c in range(2, 10): a(f's_xor_b32 s{sPBW+c}, s{sPBW+c}, {PB_STRIDE}')
        gen_step(a, ST, 'sc1', prof and tag == 'F', tag)
        a(f'''
        s_mov_b32 exec_hi, 0
        buffer_store_dwordx4 {vr(PUB)}, v{ORD}, {srd}, s{sMH} offen sc1
        s_mov_b64 exec, -1
{tag}_end:
        ''')
    a('s_cmp_lt_u32 s96, 32\ns_cbranch_scc1 S_start')
    run('F', '')
    a('s_branch C_fin')
    a('S_start:')
    run('S', 'sc1')
    a('C_fin:')
    if prof:
        a(f'''
        s_memrealtime s[30:31]
        s_memtime s[74:75]
        s_waitcnt lgkmcnt(0)
        s_sub_u32 s74, s74, s32
        s_lshl_b32 s{sTMP}, s{sH}, 2
        s_add_u32 s{sTMP}, s{sTMP}, s{sW}
        s_lshl_b32 s{sTMP}, s{sTMP}, 7
        s_add_u32 s{sTMP}, s{sTMP}, {WS_PROF}
        v_mov_b32 v1, 0
        ''')
        regs = [sPROF+i for i in range(8)] + [sPROF]*4 + [70, 28, 30, sRT] + [74+2*i for i in range(14)]
        for i, r in enumerate(regs):
            a(f'v_mov_b32 v2, s{r}\nbuffer_store_dword v2, v1, {srd}, s{sTMP} offen offset:{4*i}')
    a('s_endpgm')
```

```python
from asmlib import *
KA_AX, KA_WR, KA_WI, KA_BX, KA_MEM0, KA_WQ, KA_WK, KA_WV, KA_WO, KA_SEG, KA_OUT, KA_DBG, KA_WS = [8*i for i in range(13)]
WS_PB   = 0x800000
PB_STRIDE = 0x80000
WS_MB   = 0x100000
MB_STRIDE = 0x4000
WS_KVF  = 0x180000
WS_OF   = 0x700000
WS_EPOCH = 0x1f0000
WS_PROF = 0x200000
WS_KV   = 0x1000000
KV_SEG  = 32*16384
WS_Q    = 0x3200000
WS_MH   = 0x400000
MH_STRIDE = 0x8000
QS_SEG  = 32*8192
WS_O    = 0x5200000
WS_X1   = 0x6200000
WS_Y1   = 0x6600000
WS_SIZE = 0x10000000
OOB = 0x7ff00000
SOOB = 0x7f000000
sXCC, sRANK, sWAVE, sTAG = 4, 5, 6, 7
sWS = 8
SRD_WS = f's[{sWS}:{sWS+3}]'
def vr(b, n=4): return f'v[{b}:{b+n-1}]'
def ar(b, n=4): return f'a[{b}:{b+n-1}]'
def cvt(d, x, y): return f'v_cvt_pk_bf16_f32 v{d}, v{x}, v{y}'
def pkadd(d, x, y): return f'v_pk_add_f32 {vr(d,2)}, {vr(x,2)}, {vr(y,2)}'
def mfma16(d, a, b, c=None):
    return f'v_mfma_f32_16x16x32_bf16 {vr(d)}, {vr(a)}, {vr(b)}, {vr(c) if c is not None else 0}'

def make_srd(a, s, karg_off, nbytes):
    a(f'''
    s_load_dwordx2 s[{s}:{s+1}], s[0:1], {karg_off}
    s_mov_b32 s{s+2}, {nbytes}
    s_mov_b32 s{s+3}, 0x00020000
    ''')

DBG = {}
class Stamps:
    def __init__(self, a, on, base=74, n=14): self.a=a; self.on=on; self.base=base; self.k=0; self.n=n; self.names=[]
    def __call__(self, name):
        if self.on:
            assert self.k < self.n
            self.a(f's_memtime s[{self.base+2*self.k}:{self.base+2*self.k+1}]'); self.k += 1; self.names.append(name)

def stage_weights(a, tag, mats, nwave_reads, swz_kind, LDS_BASE, tmp, sT, extra_dma=None, after_issue=None, post_read=None):
    sHO, sOF, sLB = sT
    X, R = tmp+4, tmp+5
    a(f'''
    v_and_b32 v{X}, 63, v0
    v_lshrrev_b32 v{R}, 4, v{X}
    v_and_b32 v{X}, 15, v{X}
    ''')
    for j in range(4):
        if swz_kind == 'chain':
            a(f'v_and_b32 v{tmp+j}, 1, v{R}\nv_lshlrev_b32 v{tmp+j}, 1, v{tmp+j}\nv_xor_b32 v{tmp+j}, {j<<2}, v{tmp+j}')
        else:
            a(f'v_lshlrev_b32 v{tmp+j}, 2, v{R}')
        a(f'''
        v_xor_b32 v{tmp+j}, v{tmp+j}, v{X}
        v_lshlrev_b32 v{tmp+j}, 4, v{tmp+j}
        v_lshl_add_u32 v{tmp+j}, v{R}, 13, v{tmp+j}
        v_add_u32 v{tmp+j}, {j*4*8192}, v{tmp+j}
        ''')
    def dma(n):
        m, c = divmod(n, 9)
        out = []
        for j in range(4):
            out.append((f's_add_u32 s{sOF}, s{sHO}, {c*64*8192}\n' if j == 0 else '') + f's_add_u32 m0, s{sLB}, {c*4096 + j*1024}\n'
                       f'buffer_load_dwordx4 v{tmp+j}, {mats[m]}, s{sOF} offen lds')
        return out
    N = 9*len(mats)
    cnt = []
    def group(n):
        if n < N: return dma(n)
        if extra_dma is not None and n - N < 9: return extra_dma(n - N)
        return []
    for n in range(9):
        for x in group(n): a(x)
        cnt.append(4)
        if n < 8: a('s_barrier')
    if after_issue: cnt[-1] += after_issue() or 0
    for n in range(N):
        younger = sum(cnt[n+1:])
        a(f's_waitcnt vmcnt({min(younger,63)}) lgkmcnt(0)')
        if not DBG.get('nobar'): a('s_barrier')
        g = group(n-1+9) if n >= 1 else []
        if n >= 1: cnt.append(len(g))
        rds = nwave_reads(*divmod(n, 9))
        if DBG.get('notr'): rds = []
        for j in range(4):
            for ins in rds[2*j:2*j+2]: a(ins)
            if j < len(g): a(g[j])
        if post_read: cnt[-1] += post_read(*divmod(n, 9)) or 0
    a('s_waitcnt lgkmcnt(0)')
    a('s_barrier')
    g = group(N-1+9)
    for x in g: a(x)
    cnt.append(len(g))
    return cnt

def late_arrive(a, tag, dbg, r):
    a(f'''
    s_cmp_eq_u32 s3, 0
    s_cbranch_scc1 {tag}_la
    s_cmp_lg_u32 s{sWAVE}, 0
    s_cbranch_scc1 {tag}_la
    s_mov_b64 exec, 1
    v_mov_b32 v{r}, 32
    v_mov_b32 v{r+1}, 1
    global_atomic_add v{r}, v{r+1}, s[{dbg}:{dbg+1}]
    s_mov_b64 exec, -1
{tag}_la:
    ''')
```

```python
import sys
from common import *
import chain, qkv, fft, oproj
NAME = 'concat_heads__spectral_gfnet__memory_aug_recurrent_mem_tr__prompt_kernel'
FAKE = 's_mul_i32 s16, s2, 37\n    s_lshr_b32 s16, s16, 10\n    s_add_u32 s16, s16, 3\n    s_and_b32 s4, s16, 7'
DOC = '''; ---------------------------------------------------------------------------------------------
; ---------------------------------------------------------------------------------------------'''
def gen(prof=False, name=NAME):
    a = Asm()
    a('; @launch grid=(256,1,1) block=(256,1,1) lds=163840')
    a('.amdgcn_target "amdgcn-amd-amdhsa--gfx950"\n.text')
    a(DOC)
    a(kernel_header(name))
    a(f'''
    s_load_dwordx2 s[12:13], s[0:1], {KA_DBG}
    s_load_dwordx2 s[{sWS}:{sWS+1}], s[0:1], {KA_WS}
    s_getreg_b32 s{sXCC}, hwreg(HW_REG_XCC_ID)
    s_mov_b32 s{sWS+2}, {WS_SIZE}
    s_mov_b32 s{sWS+3}, 0x00020000
    ''')
    if prof: a('s_memrealtime s[70:71]')
    a(f'''
    s_and_b32 s{sXCC}, s{sXCC}, 7
    {FAKE if chain.OPT['fake'] else ''}
    v_lshrrev_b32 v2, 6, v0
    v_mov_b32 v5, {WS_EPOCH}
    s_waitcnt lgkmcnt(0)
    v_readfirstlane_b32 s{sWAVE}, v2
    s_cmp_ge_u32 s2, 256
    s_cbranch_scc1 L_exit
    v_cmp_eq_u32 vcc, 0, v0
    s_and_saveexec_b64 s[14:15], vcc
    s_cbranch_execz L_skip
    s_lshl_b32 s16, s{sXCC}, 2
    s_cmp_eq_u32 s{sXCC}, 0
    s_cselect_b32 s16, 192, s16
    v_mov_b32 v1, s16
    v_mov_b32 v2, 1
    global_atomic_add v3, v1, v2, s[12:13] sc0
    s_waitcnt vmcnt(0)
    v_readfirstlane_b32 s17, v3
    s_cmp_lt_u32 s17, 32
    s_cbranch_scc1 L_nat
    v_mov_b32 v1, 32
    global_atomic_add v1, v2, s[12:13]     ; arrivals
    v_mov_b32 v1, 36
    global_atomic_add v3, v1, v2, s[12:13] sc0
    v_mov_b32 v1, 0
    s_mov_b32 s18, 0
    s_waitcnt vmcnt(0)
    v_readfirstlane_b32 s17, v3            ; n
L_orw:
    global_load_dword v3, v1, s[12:13] offset:32 sc1
    global_load_dword v6, v1, s[12:13] offset:192 sc1
    s_waitcnt vmcnt(0)
    v_readfirstlane_b32 s19, v3
    v_readfirstlane_b32 s16, v6
    s_min_u32 s16, s16, 32
    s_add_u32 s19, s19, s16
    s_add_u32 s18, s18, 1
    s_cmp_gt_u32 s18, 0x4000
    s_cbranch_scc1 L_oex
    s_cmp_lt_u32 s19, 256
    s_cbranch_scc1 L_orw
    s_cmp_gt_u32 s19, 256
    s_cbranch_scc1 L_oex
    s_mov_b32 s18, 0                       ; x
L_orx:
    s_lshl_b32 s16, s18, 2
    s_cmp_eq_u32 s18, 0
    s_cselect_b32 s16, 192, s16
    v_mov_b32 v1, s16
    global_load_dword v3, v1, s[12:13] sc1
    s_waitcnt vmcnt(0)
    v_readfirstlane_b32 s19, v3
    s_min_u32 s19, s19, 32
    s_sub_u32 s16, 32, s19
    s_cmp_lt_u32 s17, s16
    s_cbranch_scc1 L_orf
    s_sub_u32 s17, s17, s16
    s_add_u32 s18, s18, 1
    s_cmp_lt_u32 s18, 8
    s_cbranch_scc1 L_orx
L_oex:
    s_mov_b32 s17, 0x1000
    s_branch L_orv
L_orf:
    s_add_u32 s17, s17, s19
    s_lshl_b32 s18, s18, 8
    s_add_u32 s17, s17, s18
    s_branch L_orv
L_nat:
    s_lshl_b32 s18, s{sXCC}, 8
    s_add_u32 s17, s17, s18
    s_add_u32 s17, s17, 64
L_orv:
    v_mov_b32 v3, s17
    v_mov_b32 v1, 0
    ds_write_b32 v1, v3
    s_waitcnt lgkmcnt(0)
L_skip:
    s_mov_b64 exec, s[14:15]
    buffer_load_dword v4, v5, {SRD_WS}, 0 offen sc1
    v_and_b32 v6, 63, v0
    v_lshlrev_b32 v6, 21, v6
    buffer_load_dword v7, v6, {SRD_WS}, 0 offen offset:64
    s_barrier
    v_mov_b32 v1, 0
    ds_read_b32 v3, v1
    s_waitcnt lgkmcnt(0)
    v_readfirstlane_b32 s{sRANK}, v3
    s_barrier
    s_and_b32 s3, s{sRANK}, 64
    s_lshr_b32 s{sXCC}, s{sRANK}, 8
    s_and_b32 s{sRANK}, s{sRANK}, 31
    s_cmp_ge_u32 s{sXCC}, 8
    s_cbranch_scc1 L_exit
    s_getpc_b64 s[16:17]
L_pc:
    s_lshl_b32 s18, s{sRANK}, 12
    v_lshlrev_b32 v1, 4, v0
    v_add_u32 v1, s18, v1
    v_cmp_gt_u32 vcc, L_code_end - L_pc - 16, v1
    s_and_saveexec_b64 s[14:15], vcc
    s_cbranch_execz L_nopf
    global_load_dwordx4 v[60:63], v1, s[16:17]
L_nopf:
    s_mov_b64 exec, s[14:15]
    s_cmp_eq_u32 s{sXCC}, 0
    s_cbranch_scc1 R_chain
    s_waitcnt vmcnt(0)
    v_readfirstlane_b32 s{sTAG}, v4
    s_add_u32 s{sTAG}, s{sTAG}, 1
    ''')
    if chain.OPT['pf'] == 2:
        for i, k in enumerate((KA_WQ, KA_WK, KA_WV, KA_WO)): make_srd(a, 44+4*i, k, 576*8192)
        a(f'''
        s_sub_u32 s16, s{sXCC}, 1
        s_lshl_b32 s16, s16, 5
        s_add_u32 s16, s16, s{sRANK}
        s_lshl_b32 s16, s16, 2
        s_add_u32 s16, s16, s{sWAVE}
        s_mul_i32 s16, s16, 5376
        s_add_u32 s17, s16, 4096
        v_and_b32 v1, 63, v0
        v_lshlrev_b32 v1, 4, v1
        s_waitcnt lgkmcnt(0)
        ''')
        for i in chain.OPT['pfm']:
            for j in range(6):
                if j == 5: a('s_mov_b64 exec, 0xffff')
                a(f'buffer_load_dwordx4 v[60:63], v1, s[{44+4*i}:{47+4*i}], s{16 + j//4} offen offset:{(j%4)*1024}')
            a('s_mov_b64 exec, -1')
    a(f'''
    s_cmp_le_u32 s{sXCC}, 4
    s_cbranch_scc1 {'L_exit' if chain.OPT['noqkv'] else 'R_qkv'}
    s_branch {'L_exit' if chain.OPT['nofft'] else 'R_fft'}
L_exit:
    s_endpgm
    ''')
    qkv.gen_qkv(a, 'L_exit', prof)
    chain.gen_chain(a, prof)
    fft.gen_fft(a, prof)
    oproj.gen_oproj(a, prof)
    a('L_code_end:')
    a('.section .rodata,"a"')
    txt = a.render() + kernel_desc(name)
    for p in a.branch_check(): print('HAZ', p)
    if chain.OPT['al']:
        import align
        txt, n, tot = align.align(txt, 'F_loop', 'F_done', wo=chain.OPT['alw'], ws=chain.OPT['als'])
        print('aligned', n, tot)
    return txt
if __name__ == '__main__':
    def out(n, prof, **kw):
        DBG.clear(); DBG.update(kw)
        old = dict(chain.OPT); chain.OPT.update(kw)
        open(f'mb/{n}.s', 'w').write(gen(prof, 'full_kernel')); chain.OPT.update(old)
    out('full', False); out('full_prof', True)
    hdr = ''.join(l for l in open('cdna_kernels/' + NAME[:-7] + '.s.ref') if l.startswith(';') and '@launch' not in l)
    open('cdna_kernels/' + NAME[:-7] + '.s', 'w').write(hdr + gen(False))
    for a in sys.argv[1:]:
        n, kw = a.split(':', 1); out(n, True, **eval(f'dict({kw})'))
```

```python
from common import *
import layouts as L

LDS_SC  = 0
LDS_OB  = 5120
LDS_GATE = 0
LDS_MEM = 7168
LDS_DUMMY = 5120
LDS_WO  = 16384

L16, PBST, SEL2, SEL2b, MW, MR, OW, WOA, IDX, ORD, T0, T1 = range(12)
SEL, PUB, TAGV, FLG = 12, 16, 18, 19
Q0, K0, Q1, K1, VA0, VA1 = 20, 24, 28, 32, 36, 40
KX, VX = 44, 52
def AQ(i): return 60 + 4*i
def AF(c): return AQ(c % 5)

def wreg(tile, c):
    idx = tile*9 + c
    if idx < 32: return f'a[{8*idx}:{8*idx+7}]'
    b = 80 + 8*(idx-32)
    return f'v[{b}:{b+7}]'
ACC = [Q0, K0, Q1, K1, VA0, VA1]

sW, sH, sSTEP, sTMP, sTMP2, sTO = 12, 13, 14, 15, 16, 17
sMBRD, sMBWR, sMBNX = 18, 19, 20
sPBR = 22
sKV, sMH = 23, 25
sRED = 26
sMLO, sMHI = 28, 30
sMG = 32
sMG2 = 30
sC = 34
sRT = 37
sMW = 38
sMB4, sMB8 = 39, 21
sPROF = 44
sPBW = 52

def smf(acc, a, b): return f'v_smfmac_f32_16x16x64_bf16 {vr(acc)}, {vr(a)}, {b}, v{IDX}'
mfma = mfma16

def consts(a):
    C, G, G1, X, Y, Z = AF(0), AF(0)+1, AF(0)+2, AF(0)+3, AF(1), AF(1)+1
    a(f'''
    v_and_b32 v{X}, 63, v0
    v_lshlrev_b32 v{L16}, 4, v{X}
    v_and_b32 v{C}, 15, v{X}              ; c
    v_lshrrev_b32 v{G}, 4, v{X}           ; g
    v_and_b32 v{G1}, 1, v{G}              ; g&1
    v_lshrrev_b32 v{PBST}, 1, v{G}
    v_lshlrev_b32 v{PBST}, 12, v{PBST}
    v_lshl_add_u32 v{PBST}, v{G1}, 3, v{PBST}
    v_lshl_add_u32 v{PBST}, v{C}, 4, v{PBST}
    v_mov_b32 v{Y}, {OOB}
    v_cmp_gt_u32 vcc, 8, v{C}
    v_cndmask_b32 v{PBST}, v{Y}, v{PBST}, vcc
    v_and_b32 v{Z}, 7, v{C}
    v_lshlrev_b32 v{Z}, 4, v{Z}
    v_lshrrev_b32 v{T0}, 3, v{C}           ; hb
    v_lshl_add_u32 v{MR}, v{T0}, 3, v{Z}       ; (c&7)*16 + hb*8
    v_lshl_add_u32 v{ORD}, v{G}, 7, v{Z}
    v_add_u32 v{ORD}, {LDS_OB}, v{ORD}
    v_lshl_add_u32 v{OW}, v{G}, 7, v{MR}
    s_lshl_b32 s{sTMP}, s{sW}, 9
    s_add_u32 s{sTMP}, s{sTMP}, {LDS_OB}
    v_add_u32 v{OW}, s{sTMP}, v{OW}
    v_lshl_add_u32 v{MR}, v{G1}, 7, v{MR}
    v_add_u32 v{MR}, 1024, v{MR}
    s_mul_i32 s{sTMP}, s{sW}, 1280
    s_mov_b32 s{sSCW}, s{sTMP}
    v_lshlrev_b32 v{MW}, 7, v{G1}
    v_lshl_add_u32 v{MW}, v{C}, 4, v{MW}
    v_add_u32 v{MW}, s{sTMP}, v{MW}
    v_add_u32 v{MW}, 1024, v{MW}
    s_mul_i32 s{sTMP}, s{sW}, 36864
    s_add_u32 s{sTMP}, s{sTMP}, {LDS_WO}
    v_add_u32 v{WOA}, s{sTMP}, v{L16}
    s_mov_b32 s{sMG2}, -1
    s_mov_b32 s{sMG2+1}, 0
    s_mov_b32 s66, 0
    s_mov_b32 s67, 0x00ff00ff
    s_mov_b32 s{sC}, 0x3e0293ee            ; 128^-0.5 * log2(e) = 0.12751743
    s_mov_b32 s{sC+1}, 0x3e0293ee
    ''')
    a(f'''
    v_and_b32 v{SEL}, 7, v{C}
    v_lshlrev_b32 v{SEL+1}, 2, v{G1}
    v_sub_u32 v{SEL}, v{SEL}, v{SEL+1}
    v_lshrrev_b32 v{SEL+1}, 3, v{C}
    v_lshlrev_b32 v{SEL+1}, 2, v{SEL+1}
    v_cmp_gt_u32 vcc, 4, v{SEL}
    v_add_u32 v{SEL}, v{SEL}, v{SEL+1}
    v_cndmask_b32 v{T1}, 15, v{SEL}, vcc
    ''')
    def onehot(base, ereg, n=4):
        for i in range(n):
            a(f'''
            v_mov_b32 v{base+i}, 0
            v_mov_b32 v{Y}, 0x3f80
            v_cmp_eq_u32 vcc, {2*i}, v{ereg}
            v_cndmask_b32 v{base+i}, v{base+i}, v{Y}, vcc
            v_mov_b32 v{Y}, 0x3f800000
            v_cmp_eq_u32 vcc, {2*i+1}, v{ereg}
            v_cndmask_b32 v{base+i}, v{base+i}, v{Y}, vcc
            ''')
    onehot(SEL, T1)
    a(f'v_and_b32 v{T1}, 3, v{C}')
    onehot(SEL2, T1, 2)
    a(f'''
    v_mov_b32 v{IDX}, 0x4444
    v_mov_b32 v{Y}, 0xeeee
    v_cmp_gt_u32 vcc, 8, v{C}
    v_cndmask_b32 v{IDX}, v{Y}, v{IDX}, vcc
    ''')

OPT = dict(nw=0, sh=8, lite=0, v18=0, fake=0, alw=0.4, als=0.0, al=1, m1=1, f4=0, pfm=(0,1,2,3), p0=0, lz=6, fdelay=0, dir=0, bp=3, lg=1, fg=1, z0=0, z1=3, z2=0, ld=2, l0=0, e2=1, sb=1, ts=0, fs=0, pf=1, noqkv=0, qorder=(0,1,2), kv0=0, nofl=0, f3gap=3, l2pos=0, rsh=2, elate=0, NQ1=72, q2gap=2, noattn=0, nofft=0, es=0, nopub=0, gate=1, g1=1, g2=0, ez=6, qz=12, qgap=0, ers=5, qs=0, NM=48, egap=2, mgap=4, lgap=1, nocheck=0)
sVW = 19
sOOB = 68
sKIND, sPBO, sMBO = 27, 36, 65
sPBX = sPBW + 9
sXA = 19
sKVF, sFM = 69, 2
sSCW = 64
sM1, sM2, sM8 = 18, 39, 21
sX = 40
sMW2, sMW3 = 42, 43
sMBW = 24
def gen_step(a, ST, LD, prof, tag):
    srd = SRD_WS
    P = Stamps(a, prof)
    ool = []
    LOOP = f'{tag}_loop'; DONE = f'{tag}_done'
    A4 = AQ(4)
    def cnt(i): return f's_add_u32 s{sPROF+i}, s{sPROF+i}, 1\n' if prof else ''
    def tmo(ok): return f's_add_u32 s{sRT}, s{sRT}, 1\ns_cmp_gt_u32 s{sRT}, 0x100000\ns_cbranch_scc1 {ok}\n'
    def br(lbl): return f's_cbranch_vccnz {lbl}' if not OPT['nocheck'] else 's_nop 0'
    def ld(so): return f'buffer_load_dwordx4 {vr(A4)}, v{L16}, {srd}, s{so} offen {LD}'
    def cmpu(r): return f'v_cmp_u_f32 vcc, v{r}, v{r+2}'
    AD3 = T0
    F4 = OPT['f4']
    LQ = [VX, VX+4, A4, AQ(3)] if F4 else [VX, VX+4]
    lda = '\n'.join(f'buffer_load_dwordx4 {vr(q)}, v{L16}, {srd}, s{sM1} offen offset:{1024*i} {LD}' for i, q in enumerate(LQ))
    book = (f'v_cmp_eq_u32 s[{sFM}:{sFM+1}], v{TAGV}, v{FLG}\n'
            f's_add_u32 s{sTMP}, s{sKV}, {0 if OPT["kv0"] else KV_SEG}\ns_add_u32 s{sSTEP}, s{sSTEP}, 1')
    a(f'{LOOP}:')
    P('top')
    a(lda)
    a(f'v_add_u32 v{T1}, s{sMW}, v{L16}')
    for r in range(Q0, VA1+4, 2): a(f'v_mov_b64 {vr(r,2)}, 0')
    for c in range(2, 10): a(f's_xor_b32 s{sPBW+c}, s{sPBW+c}, {PB_STRIDE}')
    a(f'{tag}_la:')
    a(lda)
    n = len(LQ)
    for i, q in enumerate(LQ):
        a(f's_waitcnt vmcnt({2*n-1-i})')
        if i == 0: a(f'v_cmp_u_f32 s[{sX}:{sX+1}], v{q}, v{q+2}')
        else: a(cmpu(q))
        a(f'ds_write_b128 v{T1}, {vr(q)} offset:{1024*i}')
        if i > 0: a(f's_or_b64 ' + ('vcc' if i == n-1 else f's[{sX}:{sX+1}]') + f', vcc, s[{sX}:{sX+1}]')
    a(br(f'{tag}_rt0'))
    ool.append(f'{tag}_rt0:\n' + cnt(0) + tmo(f'{tag}_ok0') + f's_branch {tag}_la')
    a(f'{tag}_ok0:')
    P('mem0')
    a(book)
    a(f'v_add_u32 v{T1}, s{sMW3}, v{L16}')
    if not OPT['nw'] & 4: a('s_waitcnt lgkmcnt(0)')
    a('s_barrier')
    def rd(c): return f'ds_read_b128 {vr(AF(c))}, v{L16} offset:{LDS_MEM + 1024*c}'
    def M(c, n): return [smf(ACC[t], AF(c), wreg(t, c)) for t in range(n)]
    def dl(c): return f'buffer_load_dwordx4 {vr(AF(c))}, v{L16}, {srd}, s{sM2} offen offset:{(c-4)*1024} {LD}'
    ldb = f's_mov_b32 exec_hi, 0xffff\nbuffer_load_dwordx4 {vr(VX)}, v{L16}, {srd}, s{sM8} offen {LD}\ns_mov_b32 exec_hi, -1'
    chkb = f's_mov_b32 exec_hi, 0xffff\n{cmpu(VX)}\nds_write_b128 v{T1}, {vr(VX)}\ns_mov_b32 exec_hi, -1'
    for c in range(3 if F4 else 4): a(rd(c))
    P('barA')
    bp = OPT['bp']
    seq = []
    for c in range(4):
        seq.append(f's_waitcnt lgkmcnt({2 if (F4 and c == 0) else 3-c})')
        for x in M(c, 6): seq.append(x)
    if not OPT['dir']:
        k = 0
        orx = f's_or_b64 vcc, vcc, s[{sX}:{sX+1}]'
        for x in seq:
            a(x)
            if x.startswith('v_smfmac'):
                if F4 and k == 2: a('s_waitcnt vmcnt(0)'); a(rd(3))
                if k == bp: a(dl(4))
                if k == bp+1: a(ldb)
                if k == max(bp+2, 6): a(dl(5))
                if k == 21: a('s_waitcnt vmcnt(2)'); a(cmpu(AF(4)))
                if OPT['qs'] and k in (5, 11, 17): P(f'c{k//6}')
                k += 1
        a(br(f'{tag}_rt2'))
        ool.append(f'{tag}_rt2:\n' + cnt(3) + tmo(f'{tag}_ok2') + dl(4) + '\n' + ldb + '\n' + dl(5) + '\ns_waitcnt vmcnt(2)\n' + cmpu(AF(4)) + '\n' + br(f'{tag}_rt2') + f'\ns_branch {tag}_ok2')
        a(f'{tag}_ok2:')
        if OPT['qs']: P('c3')
        m = M(4, 4)
        a(m[0]); a('s_waitcnt vmcnt(1)'); a(chkb); a(m[1]); a('s_waitcnt vmcnt(0)'); a(f'v_cmp_u_f32 s[{sX}:{sX+1}], v{AF(5)}, v{AF(5)+2}'); a(m[2])
        a(m[3]); a(orx); a(br(f'{tag}_rt1'))
        ool.append(f'{tag}_rt1:\n' + cnt(2) + tmo(f'{tag}_ok1') + ldb + '\n' + dl(5) + '\ns_waitcnt vmcnt(0)\n' + chkb + f'\nv_cmp_u_f32 s[{sX}:{sX+1}], v{AF(5)}, v{AF(5)+2}\ns_nop 1\n'
                   + orx + '\n' + br(f'{tag}_rt1') + f'\ns_branch {tag}_ok1')
        a(f'{tag}_ok1:')
        a(f's_bitcmp1_b64 s[{sFM}:{sFM+1}], s{sSTEP}')
        if not OPT['nw'] & 8: a('s_waitcnt lgkmcnt(0)')
        a('s_barrier')
        if OPT['qs']: P('barB')
        a(rd(6)); a(rd(7)); a(rd(8))
    else:
        def dd(c): return f'buffer_load_dwordx4 {vr(AF(c))}, v{L16}, {srd}, s{sM2 if c < 8 else sM8} offen offset:{((c-4)%4)*1024} {LD}'
        k = 0
        when = {bp: 4, max(bp+1, 6): 5, 12: 6, 18: 7}
        for x in seq:
            a(x)
            if x.startswith('v_smfmac'):
                if k in when: a(dd(when[k]))
                if k == 21: a('s_waitcnt vmcnt(3)'); a(cmpu(AF(4)))
                if OPT['qs'] and k in (5, 11, 17): P(f'c{k//6}')
                k += 1
        def rt(n, hi):
            ool.append(f'{tag}_d{n}:\n' + cnt(2) + tmo(f'{tag}_dk{n}') + '\n'.join(dd(x) for x in range(n, hi+1)) + f'\ns_waitcnt vmcnt({hi-n})\n' + cmpu(AF(n)) + '\n' + br(f'{tag}_d{n}') + f'\ns_branch {tag}_dk{n}')
        a(br(f'{tag}_d4')); rt(4, 7); a(f'{tag}_dk4:')
        if OPT['qs']: P('c3')
        for c in range(4, 8):
            m = M(c, 4)
            a(m[0])
            if c == 4: a(dd(8))
            a(m[1]); a(f's_waitcnt vmcnt({8-c-1})'); a(cmpu(AF(c+1))); a(m[2]); a(m[3]); a(br(f'{tag}_d{c+1}')); rt(c+1, 8); a(f'{tag}_dk{c+1}:')
            if OPT['qs'] and c in (4, 5): P('x')
        a(f's_bitcmp1_b64 s[{sFM}:{sFM+1}], s{sSTEP}')
    a(f's_cbranch_scc0 {tag}_fl')
    a(f'{tag}_flok:')
    if OPT['ts']:
        a(f's_lshl_b32 s{sTO}, s{sH}, 2\ns_add_u32 s{sTO}, s{sTO}, s{sW}\ns_lshl_b32 s{sTO}, s{sTO}, 6\ns_add_u32 s{sTO}, s{sTO}, s{sSTEP}\ns_lshl_b32 s{sTO}, s{sTO}, 2\ns_add_u32 s{sTO}, s{sTO}, {WS_PROF+0x30000}')
        a(f'v_mov_b32 v{T0}, s{P.base+4}\ns_mov_b64 exec, 1\nbuffer_store_dword v{T0}, v{L16}, {srd}, s{sTO} offen\ns_mov_b64 exec, -1')
    ool.append(f'{tag}_fl:\n' + tmo(f'{tag}_flok') + f'v_lshrrev_b32 v{T0}, 2, v{L16}\nbuffer_load_dword v{FLG}, v{T0}, {srd}, s{sKVF} offen sc1\ns_waitcnt vmcnt(0)\n'
               f'v_cmp_eq_u32 s[{sFM}:{sFM+1}], v{TAGV}, v{FLG}\ns_nop 1\ns_bitcmp1_b64 s[{sFM}:{sFM+1}], s{sSTEP}\ns_cbranch_scc0 {tag}_fl\ns_branch {tag}_flok')
    assert not OPT['dir']
    late = []
    rops = [
        f'v_mov_b64 {vr(T0,2)}, -1\ns_mov_b32 exec_hi, 0\nbuffer_store_dwordx4 {vr(PUB)}, v{ORD}, {srd}, s{sOOB if OPT["nopub"] else sMH} offen sc1',
        f'buffer_store_dwordx2 {vr(T0,2)}, v{PBST}, {srd}, s{sMBO} offen {ST}\ns_mov_b32 exec_hi, -1\nv_lshlrev_b32 v{T1}, {OPT["rsh"]}, v{L16}',
        f'buffer_store_dword v{T0}, v{T1}, {srd}, s{sPBO} offen {ST}',
        f'buffer_store_dword v{T0}, v{T1}, {srd}, s{sPBO} offen offset:8 {ST}',
    ]
    m = M(5, 4)
    a(f's_cmp_eq_u64 s[{sFM}:{sFM+1}], -1')
    a(m[0])
    a(f's_cbranch_scc0 {tag}_fa')
    a(f'{tag}_fad:')
    ool.append(f'{tag}_fa:\nv_lshrrev_b32 v{T1}, 2, v{L16}\nbuffer_load_dword v{FLG}, v{T1}, {srd}, s{sKVF} offen sc1\ns_branch {tag}_fad')
    a(m[1]); a(f'buffer_load_dwordx4 {vr(VX)}, v{L16}, {srd}, s{sKV} offen offset:2048 sc1')
    a(m[2]); a(m[3]); a(f'buffer_load_dwordx4 {vr(VX+4)}, v{L16}, {srd}, s{sKV} offen offset:3072 sc1')
    if OPT['v18']:
        for x in M(4, 6)[4:] + M(5, 6)[4:]: a(x)
    if OPT['qs']: P('c5')
    m = M(6, 4)
    a('s_waitcnt lgkmcnt(2)')
    for k in range(4):
        a(m[k])
        a(rops[k])
    for c in range(7, 9):
        m = M(c, 4)
        a(f's_waitcnt lgkmcnt({8-c})')
        for k, x in enumerate(m):
            if c == 8 and k == 3: a(cvt(Q0, Q0, Q0+1))
            a(x)
    P('qk')
    vq = [(t, c) for c in ((6, 7, 8) if OPT['v18'] else (5, 6, 7, 4, 8)) for t in (4, 5)]
    def vm(n=1):
        for _ in range(n):
            t, c = vq.pop(0); a(smf(ACC[t], AF(c), wreg(t, c)))
    a(cvt(Q0+1, Q0+2, Q0+3)); a(cvt(Q0+2, K0, K0+1)); a(cvt(Q0+3, K0+2, K0+3))
    a(cvt(Q1, Q1, Q1+1)); a(cvt(Q1+1, Q1+2, Q1+3))
    a(mfma(K0, Q0, SEL))
    a(cvt(Q1+2, K1, K1+1)); a(cvt(Q1+3, K1+2, K1+3))
    a(mfma(K1, Q1, SEL))
    U = Q0
    a(cvt(U, K0, K0+1)); a(cvt(U+1, K0+2, K0+3))
    vm(1)
    a(cvt(U+2, K1, K1+1)); a(cvt(U+3, K1+2, K1+3))
    TX0, TX1, TM = K0, Q1, K1
    a(f'v_add_u32 v{T0}, s{sSCW}, v{L16}')
    a(mfma(TX0, KX, U)); a(mfma(TX1, KX+4, U)); a(mfma(TM, U, U))
    if OPT['m1']: vm(1)
    if not OPT['qs']: P('S')
    for r in range(4):
        a(f'v_mov_b32_dpp v{TX0+r}, v{TX1+r} row_ror:8 row_mask:0xf bank_mask:0xc')
    a(f'ds_write_b128 v{T0}, {vr(TX0)} offset:{LDS_SC}')
    a(f's_mov_b64 exec, s[66:67]')
    a(f'ds_write_b128 v{MW}, {vr(TM)} offset:{LDS_SC}')
    a(f's_mov_b64 exec, -1')
    vm(1)
    a(f'buffer_load_dwordx4 {vr(KX)}, v{L16}, {srd}, s{sTMP} offen sc1')
    vm(1)
    a(f'buffer_load_dwordx4 {vr(KX+4)}, v{L16}, {srd}, s{sTMP} offen offset:1024 sc1')
    vm(1 if OPT['v18'] else (2 if OPT['m1'] else 3))
    if not OPT['qs']: P('wr')
    if not OPT['nw'] & 1: a(f's_waitcnt lgkmcnt(0)')
    a('s_barrier')
    P('bar1')
    RD = AQ(0)
    MRD = Q1
    if OPT['v18']:
        a(f'ds_read_b128 {vr(RD)}, v{L16} offset:{LDS_SC}')
        a(f'ds_read_b128 {vr(RD+4)}, v{L16} offset:{LDS_SC+1280}')
        vm(1)
        a(f'ds_read_b128 {vr(RD+8)}, v{L16} offset:{LDS_SC+2560}')
        a(f'ds_read_b128 {vr(TX0)}, v{L16} offset:{LDS_SC+3840}')
        vm(1)
        for w in range(4): a(f'ds_read_b64 {vr(MRD+2*w,2)}, v{MR} offset:{LDS_SC+1280*w}')
        a(cvt(U, VA0, VA0+1)); a(cvt(U+1, VA0+2, VA0+3)); a(cvt(U+2, VA1+2, VA1+3)); a(cvt(U+3, VA1, VA1+1))
    else:
        a(f'ds_read_b128 {vr(RD)}, v{L16} offset:{LDS_SC}')
        a(f'ds_read_b128 {vr(RD+4)}, v{L16} offset:{LDS_SC+1280}')
        vm(1)
        a(f'ds_read_b128 {vr(RD+8)}, v{L16} offset:{LDS_SC+2560}')
        a(f'ds_read_b128 {vr(TX0)}, v{L16} offset:{LDS_SC+3840}')
        vm(1)
        MRD = Q1
        for w in range(4):
            a(f'ds_read_b64 {vr(MRD+2*w,2)}, v{MR} offset:{LDS_SC+1280*w}')
            if w == 1: vm(1)
        vm(1)
    assert not vq
    a('s_waitcnt lgkmcnt(6)')
    a(pkadd(RD, RD, RD+4)); a(pkadd(RD+2, RD+2, RD+6))
    a('s_waitcnt lgkmcnt(4)')
    a(pkadd(TX0, TX0, RD+8)); a(pkadd(TX0+2, TX0+2, RD+10))
    a('s_waitcnt lgkmcnt(0)')
    a(pkadd(MRD, MRD, MRD+2)); a(pkadd(MRD+4, MRD+4, MRD+6))
    SX = RD; SM = MRD
    a(pkadd(SX, SX, TX0)); a(pkadd(SX+2, SX+2, TX0+2)); a(pkadd(SM, SM, MRD+4))
    MX = T0
    a(f'v_max3_f32 v{MX}, v{SX}, v{SX+1}, v{SX+2}')
    a(f'v_max3_f32 v{MX}, v{MX}, v{SX+3}, v{SM}')
    a(f'v_max_f32 v{MX}, v{MX}, v{SM+1}')
    if OPT['es']: P.k += 1; P.names.append('adds')
    elif not OPT['qs']: P('adds')
    def woread(i, buf): a(f'ds_read_b128 {vr(buf)}, v{WOA} offset:{i*1024}')
    WB = [K1, AQ(1), AQ(2), VX, VX+4, VA0, VA1]
    woread(1, WB[1]); woread(2, WB[2])
    a(f'v_max_f32_dpp v{MX}, v{MX}, v{MX} row_ror:8 row_mask:0xf bank_mask:0xf')
    a(f'v_mov_b32 v{T1}, v{MX}')
    VM = U
    if OPT['v18']: a('s_waitcnt vmcnt(6)'); a(f'v_swap_b32 v{VX+4}, v{VX+6}')
    else: a(cvt(VM, VA0, VA0+1)); a(cvt(VM+1, VA0+2, VA0+3))
    a(f'v_permlane16_swap_b32 v{MX}, v{T1}')
    a(f'v_max_f32 v{MX}, v{MX}, v{T1}')
    a(f'v_mov_b32 v{T1}, v{MX}')
    if OPT['v18']: a(f'v_swap_b32 v{VX+5}, v{VX+7}')
    else: a(cvt(VM+2, VA1+2, VA1+3)); a(cvt(VM+3, VA1, VA1+1))
    a(f'v_permlane32_swap_b32 v{MX}, v{T1}')
    a(f'v_max_f32 v{MX}, v{MX}, v{T1}')
    a(f'v_mul_f32 v{MX}, s{sC}, v{MX}')
    for r in (SX, SX+2, SM):
        a(f'v_pk_fma_f32 {vr(r,2)}, {vr(r,2)}, s[{sC}:{sC+1}], {vr(MX,2)} op_sel_hi:[1,1,0] neg_lo:[0,0,1] neg_hi:[0,0,1]')
    for r in [SX, SX+1, SX+2, SX+3, SM, SM+1]: a(f'v_exp_f32 v{r}, v{r}')
    if not OPT['v18']: a('s_waitcnt vmcnt(6)'); a(f'v_swap_b32 v{VX+4}, v{VX+6}')
    PR = TX0; PM = K1; VM = U
    a(cvt(PR, SX, SX+1)); a(cvt(PR+1, SX+2, SX+3)); a(cvt(PM, SM, SM+1))
    a(f'v_mov_b32_dpp v{PR+2}, v{PR} row_ror:8 row_mask:0xf bank_mask:0xf')
    a(f'v_mov_b32_dpp v{PR+3}, v{PR+1} row_ror:8 row_mask:0xf bank_mask:0xf')
    a(f'v_mov_b32_dpp v{PM+1}, v{PM} row_ror:8 row_mask:0xf bank_mask:0xf')
    if not OPT['v18']: a(f'v_swap_b32 v{VX+5}, v{VX+7}')
    if OPT['es']: P.k += 1; P.names.append('smax')
    elif not OPT['qs']: P('smax')
    PD = [AQ(3), AQ(4)]
    SUM = T0
    a(mfma(PD[0], VX, PR))
    a(f'v_add_f32 v{T1}, v{SM}, v{SM+1}')
    a(pkadd(SX, SX, SX+2))
    a(mfma(PD[1], VX+4, PR))
    a(f'v_add_f32 v{SUM}, v{SX}, v{SX+1}')
    a(f'v_fmac_f32 v{SUM}, 0.5, v{T1}')
    a(f'v_mfma_f32_16x16x16_bf16 {vr(PD[0])}, {vr(VM,2)}, {vr(PM,2)}, {vr(PD[0])}')
    a(f'v_add_f32_dpp v{SUM}, v{SUM}, v{SUM} row_ror:8 row_mask:0xf bank_mask:0xf')
    a(f'v_mfma_f32_16x16x16_bf16 {vr(PD[1])}, {vr(VM+2,2)}, {vr(PM,2)}, {vr(PD[1])}')
    a(f'v_mov_b32 v{T1}, v{SUM}')
    woread(0, WB[0]); woread(3, WB[3])
    a(f'v_permlane16_swap_b32 v{SUM}, v{T1}')
    a(f'v_add_f32 v{SUM}, v{SUM}, v{T1}')
    a(f'v_mov_b32 v{T1}, v{SUM}')
    for r in range(2): a(f'v_mov_b32_dpp v{PD[0]+r}, v{PD[1]+r} quad_perm:[0,1,2,3] row_mask:0xf bank_mask:0xc')
    a(f'v_permlane32_swap_b32 v{SUM}, v{T1}')
    a(f'v_add_f32 v{SUM}, v{SUM}, v{T1}')
    a(f'v_rcp_f32 v{SUM}, v{SUM}')
    for r in range(2,4): a(f'v_mov_b32_dpp v{PD[0]+r}, v{PD[1]+r} quad_perm:[0,1,2,3] row_mask:0xf bank_mask:0xc')
    O = PD[0]
    for r in (0, 2): a(f'v_pk_mul_f32 {vr(O+r,2)}, {vr(O+r,2)}, {vr(SUM,2)} op_sel_hi:[1,0]')
    a(cvt(O, O, O+1)); a(cvt(O+1, O+2, O+3))
    a(f'ds_write_b64 v{OW}, {vr(O,2)}')
    if OPT['es']: P.k += 1; P.names.append('pv')
    else: P('pv')
    for i in range(4, 7): woread(i, WB[i])
    wrap = 0xfffcffff
    a(f"""
    s_add_u32 s{sM1}, s{sM1}, {MB_STRIDE}
    s_and_b32 s{sM1}, s{sM1}, {wrap}
    s_add_u32 s{sM8}, s{sM8}, {MB_STRIDE}
    s_and_b32 s{sM8}, s{sM8}, {wrap}
    s_add_u32 s{sM2}, s{sM2}, {MB_STRIDE}
    s_and_b32 s{sM2}, s{sM2}, {wrap}
    s_add_u32 s{sMBO}, s{sMBO}, {MB_STRIDE}
    s_and_b32 s{sMBO}, s{sMBO}, {wrap}
    """)
    if not OPT['nw'] & 2: a('s_waitcnt lgkmcnt(3)')
    a('s_barrier')
    if not OPT['qs']: P('bar2')
    if prof:
        a(f's_cmp_lg_u32 s{sSTEP}, 40\ns_cbranch_scc1 {tag}_nd')
        a(f's_lshl_b32 s{sTO}, s{sH}, 2\ns_add_u32 s{sTO}, s{sTO}, s{sW}\ns_lshl_b32 s{sTO}, s{sTO}, 7\ns_add_u32 s{sTO}, s{sTO}, {WS_PROF+0x20000}\ns_waitcnt lgkmcnt(0)\ns_mov_b64 exec, 1')
        for k in range(14): a(f'v_mov_b32 v{T0}, s{P.base+2*k}\nbuffer_store_dword v{T0}, v{L16}, {srd}, s{sTO} offen offset:{4*k}')
        a(f's_mov_b64 exec, -1\n{tag}_nd:')
    OA = [AQ(3), AQ(4), Q1, AQ(0)]
    for u in range(4): a(f'ds_read_b128 {vr(OA[u])}, v{ORD} offset:{u*512}')
    a(f"""
    s_add_u32 s{sMBW}, s{sMBW}, {MB_STRIDE}
    s_and_b32 s{sMBW}, s{sMBW}, {wrap}
    s_add_u32 s{sKV}, s{sKV}, {0 if OPT['kv0'] else KV_SEG}
    s_add_u32 s{sMH}, s{sMH}, {MH_STRIDE}
    s_xor_b32 s{sPBO}, s{sPBO}, {PB_STRIDE}
    s_cmp_eq_u32 s{sW}, 0
    """)
    a(f'v_add_u32 v{T0}, s{sXA}, v{L16}')
    NB = 7
    DD = [U, TX0]
    S2 = OA[0]; RDa = OA[3]
    own = lambda c: (WOA, c*4096, sPBW+c)
    X1 = (T0, 0, sPBX); X2 = (T1, 0, sPBX+1)
    T_W0 = [own(c) for c in range(6)]
    T_10 = [own(c) for c in range(7)] + [X1, own(7), own(8)]
    T_11 = T_10
    class St: pass
    st = St(); st.issued = NB; st.q = [4, 5, 6, 'o0', 'o1', 'o2', 'o3']
    def fork():
        n = St(); n.issued = st.issued; n.q = list(st.q); return n
    def need(S, ids):
        idx = max([S.q.index(x) for x in ids if x in S.q], default=-1)
        if idx >= 0:
            a(f's_waitcnt lgkmcnt({min(len(S.q)-1-idx, 15)})')
            del S.q[:idx+1]
    def post(T, c, k):
        d = DD[c % 2]
        if k == 0: a(cvt(d, d, d+1))
        if k == 1: a(cvt(d+1, d+2, d+3))
        if k == 2: a(f'buffer_store_dwordx2 {vr(d,2)}, v{PBST}, {srd}, s{T[c][2]} offen {ST}')
    def wread(S, T):
        i = S.issued; adr, imm, _ = T[i // 4]
        a(f'ds_read_b128 {vr(WB[i % NB])}, v{adr} offset:{imm + (i % 4)*1024}'); S.q.append(i); S.issued += 1
    s2b = {0: f'v_mov_b64 {vr(S2,2)}, 0\nv_mov_b64 {vr(S2+2,2)}, 0',
           1: f'v_mov_b32_dpp v{S2}, v{SEL2} quad_perm:[0,1,2,3] row_mask:0xf bank_mask:0x1',
           2: f'v_mov_b32_dpp v{S2+1}, v{SEL2+1} quad_perm:[0,1,2,3] row_mask:0xf bank_mask:0x1',
           3: f'v_mov_b32_dpp v{S2+2}, v{SEL2} quad_perm:[0,1,2,3] row_mask:0xf bank_mask:0x2\nv_mov_b32_dpp v{S2+3}, v{SEL2+1} quad_perm:[0,1,2,3] row_mask:0xf bank_mask:0x2'}
    def rload(R, i): return f'buffer_load_dwordx4 {vr(R[i])}, v{L16}, {srd}, s{sPBR} offen offset:{i*1024} {LD}'
    def slots(S, T, i0, i1, extra=None, red=False):
        N = 4*len(T)
        for i in range(i0, i1):
            c, u = divmod(i, 4)
            d = DD[c % 2]
            if c == 0: need(S, [f'o{u}'])
            elif u % 2 == 0: need(S, [i, i+1])
            a(mfma(d, WB[i % NB], OA[u], None if u == 0 else d))
            if S.issued < N and (c > 0 or not OPT['p0']): wread(S, T)
            if extra and i in extra: a(extra[i])
            if c >= (2 if OPT['p0'] else 1) and u >= 1: post(T, c-1, u-1)
            if red and c == len(T)-1: a(s2b[u])
        if i1 == N:
            for c in range(2): a(f's_xor_b32 s{sPBW+c}, s{sPBW+c}, {PB_STRIDE}')
            a(f's_cmp_eq_u32 s{sKIND}, 0')
            for k in range(3): post(T, len(T)-1, k)
    def zacc(o=None, lo=0, hi=12):
        for r in list(range(Q0, VA1+4, 2))[lo:hi]: a(f'v_mov_b64 {vr(r,2)}, 0')
    def xors(o=None):
        for c in range(2, 10): a(f's_xor_b32 s{sPBW+c}, s{sPBW+c}, {PB_STRIDE}')
    gwr = f'v_mov_b32 v{T0}, s{sSTEP}\nds_write_b32 v{L16}, v{T0} offset:{LDS_GATE}'
    def reduce(R, young, lbl, fail, gw=False):
        for i in range(4):
            a(f's_waitcnt vmcnt({young[i]})')
            a(mfma(RDa, S2, R[i], None if i == 0 else RDa))
        a('s_nop 6')
        a(f'{lbl}_c:')
        a(f'v_cmp_u_f32 vcc, v{RDa}, v{RDa}')
        for r in range(4): a(f'v_add_f32_dpp v{RDa+r}, v{RDa+r}, v{RDa+r} row_ror:8 row_mask:0xf bank_mask:0xf')
        a(cvt(PUB, RDa, RDa+1)); a(cvt(PUB+1, RDa+2, RDa+3))
        a(br(fail))
        a(f'{lbl}_ok:')
        a('s_mov_b32 exec_hi, 0')
        a(f'buffer_store_dwordx2 {vr(PUB,2)}, v{PBST}, {srd}, s{sMBW} offen {ST}')
        a('s_mov_b64 exec, -1')
        if gw: a(gwr)
        a(f's_xor_b32 s{sPBR}, s{sPBR}, {PB_STRIDE}')
        a(f's_cmp_eq_u32 s{sSTEP}, 63')
        a(f's_cbranch_scc1 {DONE}')
    def rl4(R): return '\n'.join(rload(R, i) for i in range(4))
    def plain_retry(R, lbl, okl, cl, site):
        ool.append(f'{lbl}:\n' + cnt(site) + tmo(okl) + rl4(R) + '\n' +
                   '\n'.join(f's_waitcnt vmcnt({3-i})\n' + mfma(RDa, S2, R[i], None if i == 0 else RDa) for i in range(4)) + f'\ns_nop 7\ns_branch {cl}')
    def gate(lbl):
        a(f'{lbl}:')
        a(f'ds_read_b32 v{T0}, v{L16} offset:{LDS_GATE}')
        a(tmo(f'{lbl}d'))
        a('s_waitcnt lgkmcnt(0)')
        a(f'v_cmp_ne_u32 vcc, s{sSTEP}, v{T0}')
        a(f's_cbranch_vccnz {lbl}')
        a(f'{lbl}d:')
    def PS(k):
        if prof: a(f's_memtime s[{P.base+2*k}:{P.base+2*k+1}]')
    def nops(n, why):
        n *= 8
        while n > 0:
            k = min(n, 16); a(f's_nop {k-1}   ; {why}'); n -= k
    kwo = P.k + (0 if OPT['qs'] else 1)
    R0 = [AQ(1), AQ(2), VX, VX+4]
    slots(st, T_11, 0, 4)
    if OPT['p0']:
        for _ in range(4): wread(st, T_11)
        for k in range(3): post(T_11, 0, k)
    if not OPT['qs']: P('wo0')
    slots(st, T_11, 4, 16)
    S0 = fork()
    a(f's_cbranch_scc1 {tag}_w0')
    slots(st, T_11, 16, 29)
    S3e = fork()
    a(f's_cmp_eq_u32 s{sKIND}, 1')
    a(f's_cbranch_scc1 {tag}_w3e')
    slots(st, T_11, 29, 40, red=True)
    PS(kwo)
    a(f's_cbranch_scc1 {tag}_k2')
    if not OPT['lz']: zacc()
    xors()
    if OPT['lg']: gate(f'{tag}_lgate')
    if OPT['lz']: zacc(lo=0, hi=OPT['lz'])
    for i in range(OPT['l0']): a('s_nop 7')
    a(rl4(R0))
    if OPT['lz']: zacc(lo=OPT['lz'])
    if OPT['ld']:
        if not OPT['lz']: a('s_sleep 1')
        a(f'{tag}_l2:')
        a(rl4(R0))
        reduce(R0, [7, 6, 5, 4], f'{tag}_rl', f'{tag}_lf')
        ool.append(f'{tag}_lf:\n' + cnt(5) + tmo(f'{tag}_rl_ok') + f's_branch {tag}_l2')
    else:
        reduce(R0, [3, 2, 1, 0], f'{tag}_rl', f'{tag}_lf')
        plain_retry(R0, f'{tag}_lf', f'{tag}_rl_ok', f'{tag}_rl_c', 5)
    PS(kwo+1); PS(0)
    a('s_waitcnt vmcnt(1)')
    a(f's_branch {tag}_ok0')
    a(f'{tag}_w0:')
    a('s_nop 1')
    slots(S0, T_W0, 16, 24, red=True)
    P('wo')
    nops(OPT['z0'], 'let the last partial stores land before the first poll')
    a(rl4(R0))
    nops(OPT['z1'], 'spacing between two overlapped poll rounds')
    a(f'{tag}_e2:')
    a(rl4(R0))
    reduce(R0, [7, 6, 5, 4], f'{tag}_re', f'{tag}_ef', gw=True)
    ool.append(f'{tag}_ef:\n' + cnt(1) + tmo(f'{tag}_re_ok') + f's_branch {tag}_e2')
    nops(OPT['z2'], 'let the publish stores land before the first poll')
    P('red')
    a(f's_branch {LOOP}')
    a(f'{tag}_k2:')
    a(f's_cmp_eq_u32 s{sSTEP}, 63')
    a(f's_cbranch_scc1 {tag}_end')
    if F4: a(f's_branch {tag}_w3z')
    a(f's_cmp_eq_u32 s{sW}, 3')
    a(f's_cbranch_scc1 {tag}_w3z')
    if OPT['fg']: gate(f'{tag}_gate')
    for i in range(OPT['g2']): a('s_nop 7')
    PS(kwo+1)
    a(f's_branch {LOOP}')
    a(f'{tag}_w3e:')
    R3 = [WB[i % NB] for i in range(33, 37)]
    slots(S3e, T_10, 29, 40, extra={33+i: rload(R3, i) for i in range(4)}, red=True)
    PS(kwo)
    reduce(R3, [6, 5, 4, 2], f'{tag}_r3', f'{tag}_3f')
    plain_retry(R3, f'{tag}_3f', f'{tag}_r3_ok', f'{tag}_r3_c', 4)
    a(f'{tag}_w3z:')
    zacc(); xors()
    PS(kwo+1); PS(0)
    a(f's_branch {tag}_ok0')
    for o in ool: a(o)
    a(f'{DONE}:')

def init_sgprs(a):
    srd = f's[{sWS}:{sWS+3}]'
    a(f'''
    s_mov_b32 s{sSTEP}, 0
    s_mov_b32 s{sRT}, 0
    s_mov_b32 s{sOOB}, 0x7f000000
    s_lshl_b32 s{sM1}, s{sW}, 10
    s_add_u32 s{sMW}, s{sM1}, {LDS_MEM}
    s_add_u32 s{sM1}, s{sM1}, {WS_MB+1024}
    s_mov_b32 s{sM2}, {WS_MB+1024+4096}
    s_mul_i32 s{sM8}, s{sW}, 768
    s_add_u32 s{sMW3}, s{sM8}, {LDS_MEM+6144}
    s_add_u32 s{sM8}, s{sM8}, {WS_MB+1024+6144}
    {'s_mov_b32 s%d, %d' % (sM8, WS_MB+1024+8192) if OPT['dir'] else ''}
    s_lshl_b32 s{sTMP}, s{sH}, 7
    s_lshl_b32 s{sTMP2}, s{sW}, 13
    s_add_u32 s{sPBW}, s{sTMP}, s{sTMP2}
    s_add_u32 s{sPBW}, s{sPBW}, {WS_PB}
    ''')
    for c in range(1, 9): a(f's_add_u32 s{sPBW+c}, s{sPBW}, {c*32768}')
    a(f'''
    s_lshl_b32 s{sTMP}, s{sH}, 2
    s_add_u32 s{sTMP}, s{sTMP}, s{sW}
    s_lshl_b32 s{sKV}, s{sTMP}, 12
    s_add_u32 s{sKV}, s{sKV}, {WS_KV}
    s_lshl_b32 s{sKVF}, s{sTMP}, 8
    s_add_u32 s{sKVF}, s{sKVF}, {WS_KVF}
    s_add_u32 s{sTMP}, s{sW}, 5
    s_lshl_b32 s{sXA}, s{sTMP}, 12
    s_add_u32 s{sXA}, s{sXA}, {LDS_WO}
    s_add_u32 s{sXA+1}, s{sXA}, {3*4096}
    s_lshl_b32 s{sPBX}, s{sTMP}, 15
    s_lshl_b32 s{sTMP2}, s{sH}, 7
    s_add_u32 s{sPBX}, s{sPBX}, s{sTMP2}
    s_add_u32 s{sPBX}, s{sPBX}, {WS_PB}
    s_add_u32 s{sPBX+1}, s{sPBX}, {3*32768}
    s_mov_b32 s{sKIND}, 0
    s_mov_b32 s{sTMP}, 72
    s_cmp_eq_u32 s{sW}, 0
    s_cselect_b32 s{sKIND}, 2, s{sKIND}
    s_cselect_b32 s{sTMP}, s{sH}, s{sTMP}
    s_add_u32 s{sTMP2}, s{sH}, 40
    s_cmp_eq_u32 s{sW}, 1
    s_cselect_b32 s{sKIND}, 2, s{sKIND}
    s_cselect_b32 s{sTMP}, s{sTMP2}, s{sTMP}
    s_add_u32 s{sTMP2}, s{sH}, 32
    s_cmp_eq_u32 s{sW}, 3
    s_cselect_b32 s{sTO}, s{sTMP2}, 99
    s_cmp_lt_u32 s{sTO}, 40
    s_cselect_b32 s{sKIND}, 1, s{sKIND}
    s_cselect_b32 s{sTMP}, s{sTO}, s{sTMP}
    s_lshl_b32 s{sPBR}, s{sTMP}, 12
    s_add_u32 s{sPBR}, s{sPBR}, {WS_PB}
    s_lshl_b32 s{sRED}, s{sTMP}, 7
    s_add_u32 s{sRED}, s{sRED}, 1024
    s_cmp_eq_u32 s{sKIND}, 0
    s_cselect_b32 s{sRED}, 0x7f000000, s{sRED}
    s_lshl_b32 s{sMH}, s{sTMP}, 8
    s_cmp_eq_u32 s{sKIND}, 0
    s_cselect_b32 s{sMH}, 0x7f000000, s{sMH}
    s_add_u32 s{sMH}, s{sMH}, {WS_MH - LDS_OB}
    s_add_u32 s{sMBO}, s{sRED}, {WS_MB+2*MB_STRIDE}
    s_add_u32 s{sMBW}, s{sRED}, {WS_MB}
    s_xor_b32 s{sPBO}, s{sPBR}, {PB_STRIDE}
    s_cmp_eq_u32 s{sKIND}, 0
    s_cselect_b32 s{sPBO}, 0x7f000000, s{sPBO}
    ''')

def gen_chain(a, prof=False):
    srd = SRD_WS
    sA, sB, sC3, sD = 72, 76, 80, 84
    sM0 = 88
    from qkv import pstamp
    a('R_chain:')
    pstamp(a, prof, 0, 76)
    make_srd(a, sA, KA_WQ, 576*8192); make_srd(a, sB, KA_WK, 576*8192); make_srd(a, sC3, KA_WV, 576*8192)
    make_srd(a, sD, KA_WO, 4096*1152); make_srd(a, sM0, KA_MEM0, 9216)
    a(f's_load_dwordx2 s[92:93], s[0:1], {KA_DBG}')
    TA = 44; TMPB = 20; WOV = 26
    a(f'''
    s_mov_b32 s{sW}, s{sWAVE}
    s_mov_b32 s{sH}, s{sRANK}
    s_mul_i32 s{sTMP2}, s{sW}, 36864
    s_add_u32 s94, s{sTMP2}, {LDS_WO}
    s_lshl_b32 s95, s{sH}, 8
    s_lshl_b32 s{sTMP}, s{sW}, 17
    s_add_u32 s95, s95, s{sTMP}             ; h*256 + w*16*8192
    s_mul_i32 s97, s{sH}, {128*1152}
    s_lshl_b32 s{sTMP}, s{sW}, 5
    s_add_u32 s97, s97, s{sTMP}             ; h*128*1152 + w*32
    v_and_b32 v28, 63, v0
    s_mov_b32 s{sTMP}, s{sH}
    s_cmp_eq_u32 s{sW}, 1
    s_cselect_b32 s{sTMP2}, 40, 0
    s_add_u32 s{sTMP}, s{sTMP}, s{sTMP2}
    s_cmp_eq_u32 s{sW}, 3
    s_cselect_b32 s{sTMP2}, 32, 0
    s_add_u32 s{sTMP}, s{sTMP}, s{sTMP2}
    s_lshl_b32 s{sTMP}, s{sTMP}, 4
    v_and_b32 v70, 7, v28
    v_mul_u32_u24 v70, 1152, v70
    v_bfe_u32 v71, v28, 4, 1
    v_lshl_add_u32 v70, v71, 3, v70
    s_waitcnt lgkmcnt(0)
    buffer_load_dwordx2 {vr(PUB,2)}, v70, s[{sM0}:{sM0+3}], s{sTMP} offen
    ''')
    def after_issue():
        if DBG.get('bare'): return 0
        a(f's_waitcnt vmcnt(36)\nv_add_u32 v{TAGV}, 1, v4')
        a(f'''
        v_lshrrev_b32 v29, 4, v28               ; g'
        v_bfe_u32 v30, v28, 2, 2                ; r4
        v_and_b32 v31, 3, v28                   ; c4
        v_and_b32 v32, 1, v30                   ; r4&1
        v_lshrrev_b32 v33, 1, v30               ; r4>>1
        v_and_b32 v34, 1, v29                   ; g'&1
        v_lshl_add_u32 v35, v33, 3, v32
        v_lshl_add_u32 v35, v34, 2, v35         ; row16
        v_lshl_add_u32 v36, v34, 1, v32
        v_lshl_add_u32 v36, v33, 2, v36         ; swz
        s_lshl_b32 s{sTMP}, s{sW}, 1
        v_xor_b32 v36, s{sTMP}, v36
        v_lshlrev_b32 v35, 8, v35
        v_lshl_add_u32 v35, v36, 5, v35
        v_lshl_add_u32 v35, v31, 3, v35
        v_lshrrev_b32 v37, 1, v29
        v_mul_u32_u24 v37, 36864, v37
        v_add_u32 v35, v35, v37
        v_add_u32 v{TA}, {LDS_WO}, v35
        v_xor_b32 v{TA+1}, 32, v{TA}
        v_add_u32 v{TA+2}, {2*36864}, v{TA}
        v_add_u32 v{TA+3}, {2*36864}, v{TA+1}
        v_lshrrev_b32 v{WOV}, 1, v28
        v_mul_u32_u24 v{WOV}, 1152, v{WOV}
        v_and_b32 v38, 1, v28
        v_lshl_add_u32 v{WOV}, v38, 4, v{WOV}
        v_lshrrev_b32 v39, 2, v28
        v_lshlrev_b32 v39, 5, v39
        v_lshl_add_u32 v39, v31, 3, v39
        v_add_u32 v39, s94, v39
        ''')
        consts(a)
        init_sgprs(a)
        return 0
    def reads(m, c):
        out = []
        for t in range(2):
            tile = [0, 1, 4][m] + ([0, 2][t] if m < 2 else t)
            w = wreg(tile, c)
            k, lo = w[0], int(w[2:w.index(':')])
            for hb2 in range(2):
                for rh in range(2):
                    r = lo + 4*hb2 + 2*rh
                    out.append(f'ds_read_b64_tr_b16 {k}[{r}:{r+1}], v{TA+2*hb2+t} offset:{c*4096 + rh*512}')
        return out
    def wo_dma(c):
        if DBG.get('nowo'): return []
        return [f's_add_u32 s96, s97, {c*128 + j*32*1152}\ns_add_u32 m0, s94, {c*4096 + j*1024}\n'
                f'buffer_load_dwordx4 v{WOV}, s[{sD}:{sD+3}], s96 offen lds' for j in range(4)]
    pstamp(a, prof, 1, 76)
    def pr(m, c):
        n = 0
        if c == 8 and prof and not DBG.get('nops'): pstamp(a, prof, 2+m, 76); n += 1
        return n
    cnt = stage_weights(a, 'C', [f's[{x}:{x+3}]' for x in (sA, sB, sC3)], reads, 'chain', LDS_WO, TMPB, [95, 96, 94],
                        extra_dma=wo_dma, after_issue=after_issue, post_read=pr)
    if DBG.get('bare'):
        a('s_waitcnt vmcnt(0)'); pstamp(a, prof, 5, 76); a('s_endpgm')
        a('F_ok0:\nF_end:\ns_endpgm'); return
    a(f'''
    v_mov_b32 v{T0}, 64
    v_lshrrev_b32 v{T1}, 2, v{L16}
    global_load_dword v76, v{T0}, s[92:93] sc1
    global_load_dword v78, v{T0}, s[92:93] offset:128 sc1
    v_mov_b32 v79, 0
    buffer_load_dword v{FLG}, v{T1}, {srd}, s{sKVF} offen sc1
    v_lshlrev_b32 v77, 2, v{L16}
    buffer_load_dword v72, v77, {srd}, s{sPBO} offen sc1
    s_xor_b32 s{sTMP}, s{sPBO}, {PB_STRIDE}
    buffer_load_dword v72, v77, {srd}, s{sTMP} offen sc1
    s_mov_b32 exec_hi, 0
    ''')
    for k in range(1, 4):
        a(f's_add_u32 s{sTMP}, s{sRED}, {WS_MB + k*MB_STRIDE}')
        a(f'buffer_load_dwordx2 v[72:73], v{PBST}, {srd}, s{sTMP} offen sc1')
    a('s_mov_b32 exec_hi, -1')
    cnt[-1] += 8
    for c in range(9):
        a(f's_waitcnt vmcnt({sum(cnt[27+c+1:]) + (8 if c == 8 else 0)})')
        b = 40 + 16*(c % 2)
        for u in range(4):
            for rh in range(2):
                a(f'ds_read_b64_tr_b16 v[{b+4*u+2*rh}:{b+4*u+2*rh+1}], v39 offset:{c*4096 + u*1024 + rh*512}')
        a('s_waitcnt lgkmcnt(0)')
        for u in range(4):
            a(f'ds_write_b128 v{WOA}, {vr(b+4*u)} offset:{(4*c+u)*1024}')
    if OPT['noqkv']:
        a('s_waitcnt vmcnt(0)'); pstamp(a, prof, 5, 76); a('s_endpgm')
    a(f'''
    s_waitcnt vmcnt(0)
    s_branch C_wi2
C_wi:
    global_load_dword v76, v{T0}, s[92:93] sc1
    global_load_dword v79, v{T0}, s[92:93] offset:-32 sc1
    s_waitcnt vmcnt(0)
    global_load_dword v78, v{T0}, s[92:93] offset:128 sc1
    buffer_load_dword v{FLG}, v{T1}, {srd}, s{sKVF} offen sc1
    s_waitcnt vmcnt(0)
C_wi2:
    v_readfirstlane_b32 s{sTMP}, v76
    v_readfirstlane_b32 s96, v78
    v_readfirstlane_b32 s97, v79
    v_cmp_eq_u32 s[{sFM}:{sFM+1}], v{TAGV}, v{FLG}
    s_add_u32 s{sRT}, s{sRT}, 1
    s_cmp_gt_u32 s{sRT}, 0x100000
    s_cbranch_scc1 C_wfd
    s_cmp_lt_u32 s{sTMP}, 45
    s_cbranch_scc1 C_wi
    s_bitcmp1_b64 s[{sFM}:{sFM+1}], 0
    s_cbranch_scc0 C_wi
    s_cmp_ge_u32 s96, 32
    s_cbranch_scc1 C_wfd
    s_add_u32 s97, s97, s96
    s_cmp_lt_u32 s97, 256
    s_cbranch_scc1 C_wi
C_wfd:
    s_waitcnt lgkmcnt(0)
    buffer_load_dwordx4 {vr(KX)}, v{L16}, {srd}, s{sKV} offen sc1
    buffer_load_dwordx4 {vr(KX+4)}, v{L16}, {srd}, s{sKV} offen offset:1024 sc1
    ''')
    pstamp(a, prof, 5, 76)
    if OPT['noqkv']: a('s_endpgm')
    for r in range(Q0, VA1+4, 2): a(f'v_mov_b64 {vr(r,2)}, 0')
    if prof:
        for i in range(8): a(f's_mov_b32 s{sPROF+i}, 0')
        a('s_memrealtime s[28:29]\ns_memtime s[32:33]')
    def run(tag, ST):
        a(f's_bitcmp1_b32 s{sW}, 0\ns_cbranch_scc1 {tag}_ok0')
        for c in range(2, 10): a(f's_xor_b32 s{sPBW+c}, s{sPBW+c}, {PB_STRIDE}')
        if tag == 'F':
            a(f's_branch F_loop\n.p2align 6')
            for i in range(OPT['sh']): a('s_nop 0')
        gen_step(a, ST, 'sc1', prof and tag == 'F' and not OPT['lite'], tag)
        a(f'''
        s_mov_b32 exec_hi, 0
        buffer_store_dwordx4 {vr(PUB)}, v{ORD}, {srd}, s{sMH} offen sc1
        s_mov_b64 exec, -1
{tag}_end:
        ''')
    a('s_cmp_lt_u32 s96, 32\ns_cbranch_scc1 S_start')
    run('F', '')
    a('s_branch C_fin')
    a('S_start:')
    run('S', 'sc1')
    a('C_fin:')
    if prof:
        a(f'''
        s_memrealtime s[30:31]
        s_memtime s[74:75]
        s_waitcnt lgkmcnt(0)
        s_sub_u32 s74, s74, s32
        s_lshl_b32 s{sTMP}, s{sH}, 2
        s_add_u32 s{sTMP}, s{sTMP}, s{sW}
        s_lshl_b32 s{sTMP}, s{sTMP}, 7
        s_add_u32 s{sTMP}, s{sTMP}, {WS_PROF}
        v_mov_b32 v1, 0
        ''')
        regs = [sPROF+i for i in range(8)] + [sPROF]*4 + [70, 28, 30, sRT] + [74+2*i for i in range(14)]
        for i, r in enumerate(regs):
            a(f'v_mov_b32 v2, s{r}\nbuffer_store_dword v2, v1, {srd}, s{sTMP} offen offset:{4*i}')
    a('s_endpgm')
```
